```python
import torch

def _softmax(x, axis=-1):
    return torch.softmax(x, dim=axis)
def _gelu(x):
    return torch.nn.functional.gelu(x, approximate="tanh")
def _silu(x):
    return torch.nn.functional.silu(x)
def _sigmoid(x):
    return torch.sigmoid(x)
def _layernorm(x, axis=-1, eps=1e-5):
    m = x.mean(dim=axis, keepdim=True)
    v = x.var(dim=axis, keepdim=True, unbiased=False)
    return (x - m) / torch.sqrt(v + eps)
def _scatter_add(tgt, idx, src, axis=0):
    return tgt.clone().index_add_(axis, idx, src)
def _segment_sum(src, seg, n):
    out = torch.zeros((n,) + src.shape[1:], dtype=src.dtype)
    return out.index_add_(0, seg, src)
def _pad(x, pw):
    flat = tuple(v for pair in reversed(pw) for v in pair)
    return torch.nn.functional.pad(x, flat)

kernel_name = 'standalone__kv_cache_quant_int4_int2_kv_with_per_channel_or_per_token_scales__prompt'

def setup_inputs():

    _w = (lambda a: (lambda t: t.to(torch.bfloat16) if t.is_floating_point() else t)(torch.as_tensor(a)))
    B = 1
    Sq = 2048
    Skv = 2048
    Hq = 32
    Hkv = 32
    Dh = 192
    bits = 8
    G = 64
    if G <= 0 or G >= Skv:
        G = max(1, Skv // 2)
    Skv = (Skv // G) * G
    ngk = Skv // G
    qmax = (1 << bits) - 1
    return {
        "q": _w((lambda *s: torch.randn(*s, dtype=torch.bfloat16) * 0.2)(B, Hq, Sq, Dh)),
        "qk": _w(torch.randint(0, qmax + 1, (B, Hkv, Skv, Dh)).to(torch.int32)),
        "qv": _w(torch.randint(0, qmax + 1, (B, Hkv, Skv, Dh)).to(torch.int32)),
        "k_scales": _w(torch.abs((lambda *s: torch.randn(*s, dtype=torch.bfloat16) * 0.2)(B, Hkv, ngk, Dh)) * 0.05 + 0.02),
        "k_zeros": _w((lambda *s: torch.randn(*s, dtype=torch.bfloat16) * 0.2)(B, Hkv, ngk, Dh) + float(qmax) / 2.0),
        "v_scales": _w(torch.abs((lambda *s: torch.randn(*s, dtype=torch.bfloat16) * 0.05)(B, Hkv, Skv, 1)) * 0.05 + 0.02),
        "v_zeros": _w((lambda *s: torch.randn(*s, dtype=torch.bfloat16) * 0.05)(B, Hkv, Skv, 1) + float(qmax) / 2.0),
    }

def reference(q, qk, qv, k_scales, k_zeros, v_scales, v_zeros):
    B, Hq, Sq, Dh = q.shape
    Hkv, Skv = qk.shape[1], qk.shape[2]
    ngk = k_scales.shape[2]
    G = Skv // ngk
    ks = (lambda x, n, axis: torch.repeat_interleave(x, n, dim=axis))(k_scales, G, axis=2)
    kz = (lambda x, n, axis: torch.repeat_interleave(x, n, dim=axis))(k_zeros, G, axis=2)
    k = ((lambda x, dt: x.to(dt))(qk, q.dtype) - kz) * ks
    v = ((lambda x, dt: x.to(dt))(qv, q.dtype) - v_zeros) * v_scales
    rep = Hq // Hkv
    if rep > 1:
        k = (lambda x, n, axis: torch.repeat_interleave(x, n, dim=axis))(k, rep, axis=1)
        v = (lambda x, n, axis: torch.repeat_interleave(x, n, dim=axis))(v, rep, axis=1)
    scale = float(Dh) ** -0.5
    logits = torch.einsum("bhqd,bhkd->bhqk", q, k) * scale
    p = _softmax(logits, axis=-1)
    o = torch.einsum("bhqk,bhkd->bhqd", p, v)
    return o
```

```python
import re, struct

def f32bits(x):
    return struct.unpack("<I", struct.pack("<f", x))[0]

_reg_re = re.compile(r"^(-|abs\()?([vas])(?:(\d+)|\[(\d+):(\d+)\])\)?$")

def parse_reg(tok):
    tok = tok.strip()
    m = _reg_re.match(tok)
    if not m:
        return None
    k = m.group(2)
    if m.group(3) is not None:
        lo = hi = int(m.group(3))
    else:
        lo, hi = int(m.group(4)), int(m.group(5))
    return [(k, i) for i in range(lo, hi + 1)]

TRANS = ("v_exp_f32", "v_log_f32", "v_rcp_f32", "v_rsq_f32", "v_sqrt_f32", "v_sin_f32", "v_cos_f32")

class Ins:
    __slots__ = ("text", "op", "kind", "wr", "rd", "srcc", "ws", "label")
    def __init__(self, text):
        self.text = text
        t = text.split(";")[0].strip()
        self.label = t.endswith(":")
        self.wr = set(); self.rd = set(); self.srcc = set(); self.ws = 1
        if self.label or not t or t.startswith("."):
            self.op = ""; self.kind = "none"; self.ws = 0
            return
        parts = t.split(None, 1)
        op = parts[0]; self.op = op
        rest = parts[1] if len(parts) > 1 else ""
        ops = [o.strip() for o in rest.split(",")] if rest else []
        if ops:
            last = ops[-1].split()
            ops[-1] = last[0] if last else ""
            mods = last[1:]
        else:
            mods = []
        regs = [parse_reg(o) for o in ops]
        def R(i):
            return set(regs[i]) if i < len(regs) and regs[i] else set()
        special = lambda o: o in ("vcc", "exec", "m0", "scc")
        if op.startswith("v_mfma"):
            self.kind = "mfma"
            self.wr = R(0); self.rd = R(1) | R(2) | R(3); self.srcc = R(3)
        elif op.startswith("v_cmp"):
            self.kind = "valu"
            self.wr = R(0) | ({("x", ops[0])} if special(ops[0]) else set())
            self.rd = R(1) | R(2)
        elif op.startswith("v_readfirstlane") or op.startswith("v_readlane"):
            self.kind = "valu"; self.wr = R(0); self.rd = R(1) | R(2)
        elif op.startswith("v_permlane"):
            self.kind = "valu"; self.wr = R(0) | R(1); self.rd = R(0) | R(1)
        elif op.startswith("v_"):
            self.kind = "trans" if op.replace("_e32", "").replace("_e64", "") in TRANS else "valu"
            self.wr = R(0)
            for i in range(1, len(ops)):
                self.rd |= R(i)
                if special(ops[i]): self.rd.add(("x", ops[i]))
            if op.startswith("v_fmac") or op.startswith("v_pk_fmac") or op.startswith("v_dot2c"):
                self.rd |= R(0)
            if op.startswith("v_add_co") or op.startswith("v_addc_co") or op.startswith("v_sub_co"):
                self.wr |= {("x", "vcc")}
        elif op.startswith("ds_add_rtn"):
            self.kind = "dsr"; self.wr = R(0); self.rd = R(1) | R(2)
        elif op.startswith("ds_read"):
            self.kind = "dsr"; self.wr = R(0); self.rd = R(1)
        elif op.startswith("ds_write"):
            self.kind = "dsw"
            for i in range(len(ops)): self.rd |= R(i)
        elif op.startswith("buffer_load") or op.startswith("global_load"):
            if "lds" in mods or "_lds_" in op:
                self.kind = "dma"
                for i in range(len(ops)): self.rd |= R(i)
                self.rd.add(("x", "m0"))
            else:
                self.kind = "vload"; self.wr = R(0)
                for i in range(1, len(ops)): self.rd |= R(i)
        elif op.startswith("buffer_store") or op.startswith("global_store") or op.startswith("buffer_atomic") or op.startswith("global_atomic"):
            self.kind = "vstore"
            for i in range(len(ops)): self.rd |= R(i)
        elif op == "s_nop":
            self.kind = "nop"; self.ws = int(ops[0], 0) + 1
        elif op.startswith("s_"):
            self.kind = "salu"
            if op.startswith(("s_cmp", "s_waitcnt", "s_barrier", "s_cbranch", "s_branch", "s_endpgm", "s_setprio", "s_sleep")):
                for i in range(len(ops)): self.rd |= R(i)
            else:
                self.wr = R(0) | ({("x", ops[0])} if ops and special(ops[0]) else set())
                for i in range(1, len(ops)): self.rd |= R(i)
        else:
            self.kind = "other"

def check_hazards(ins, where=""):
    probs = []
    n = len(ins)
    for i, a in enumerate(ins):
        if a.kind == "none": continue
        dist = 0
        for j in range(i + 1, min(n, i + 40)):
            b = ins[j]
            if b.kind == "none": continue
            def need(k, why):
                if dist < k:
                    probs.append(f"{where} hazard {why}: need {k} got {dist}\n    {a.text}\n    {b.text}")
            vw = {r for r in a.wr if r[0] in "va"}
            sw = {r for r in a.wr if r[0] in "sx"}
            if a.kind in ("valu", "trans"):
                if b.kind == "mfma" and vw & b.rd: need(2, "valu->mfma")
                if b.op.startswith("v_permlane") and vw & b.rd: need(2, "valu->permlane")
                if b.op.startswith(("v_readfirstlane", "v_readlane")) and vw & b.rd: need(1, "valu->readlane")
                if a.kind == "trans" and b.kind == "valu" and vw & b.rd: need(1, "trans->valu")
                if a.kind == "trans" and b.kind in ("vstore", "dsw", "mfma") and vw & b.rd: need(1, "trans->mem")
                if sw and b.kind in ("valu", "trans") and sw & b.rd: need(2, "valu sgpr->valu")
                if sw and b.kind in ("vload", "vstore", "dma") and sw & b.rd: need(5, "valu sgpr->vmem")
            if a.kind == "mfma":
                big = "32x32" in a.op
                n1, n2, n3 = (12, 10, 7) if big else (8, 6, 3)
                if a.op.endswith("16x16x4_f32"): n1, n2, n3 = 10, 8, 0
                if "4x4x4" in a.op:
                    n1, n2, n3 = 5, 4, 1
                    if b.kind == "mfma" and vw & b.srcc: need(2, "small mfma chain")
                if b.kind == "mfma":
                    ab = b.rd - b.srcc
                    if vw & ab: need(n1, "mfma D->mfma AB")
                    if vw & b.srcc and vw != b.srcc: need(n2, "mfma D->mfma C overlap")
                    if vw & b.wr and not (vw == b.srcc): need(n1, "mfma D->mfma D WAW (conservative)")
                elif b.kind in ("valu", "trans", "vstore", "dsw", "dsr", "vload", "dma"):
                    if vw & (b.rd | b.wr): need(n1, "mfma D->valu/mem")
                    if b.kind in ("valu", "trans") and a.srcc & b.wr: need(n3, "mfma C WAR")
            if a.kind == "salu" and ("x", "m0") in a.wr and b.kind == "dma": need(1, "m0->dma")
            if a.kind == "vstore" and ("x4" in a.op or "x3" in a.op) and b.kind in ("valu", "trans"):
                if {r for r in a.rd if r[0] in "va"} & b.wr: need(2, "store data WAR")
            dist += b.ws
            if dist > 24: break
    return probs

class Prog:
    def __init__(self):
        self.ins = []
    def __call__(self, text):
        for l in text.strip("\n").split("\n"):
            self.ins.append(Ins(l.strip()))
    def extend(self, lst):
        for x in lst:
            self(x)
    def text(self):
        out = []
        for i in self.ins:
            out.append(i.text if (i.label or i.text.startswith(".")) else "    " + i.text)
        return "\n".join(out) + "\n"

def vr(base, n=1):
    return f"v{base}" if n == 1 else f"v[{base}:{base+n-1}]"
def ar(base, n=1):
    return f"a{base}" if n == 1 else f"a[{base}:{base+n-1}]"
def sr(base, n=1):
    return f"s{base}" if n == 1 else f"s[{base}:{base+n-1}]"
```

```python
import sys, math
from asmlib import *

NAME = "standalone__kv_cache_quant_int4_int2_kv_with_per_channel_or_per_token_scales__prompt"
OPT = dict(stamp=0, prod=1, vmgap=4, sb=6, sa=6, pl=10, ahead=4, thr=64, tden=44, ab=0, pf2=1,
           q0=0, qa=4, qb=4, qc=4, qd=4, qe=4, ord=1, kst0=57, rot=1, win=8, nv=2, tabpos=2)
for a in sys.argv[2:]:
    k, v = a.split("="); assert k in OPT, k; OPT[k] = int(v)
NS = 6; D = 4
STAGE = 24576
HEADBYTES = 64 * STAGE
RING = NS * STAGE
TS = 1792
TAB = RING + 128
LDS_BYTES = TAB + 8 * TS
CSCALE = (192.0 ** -0.5) * math.log2(math.e)
HEADER = open("cdna_kernels/" + NAME + ".s.ref").read().split("; Override launch geometry")[0]
MF = "v_mfma_f32_16x16x32_bf16"
NG = 96

V_FV = 55; V_RDV = [1, 21, 22]; V_RDK = [2, 3]; V_DMA = 4; V_L = [5, 6, 7, 8]
V_KLD = 9; V_KTAB = 10; V_KST = 11; V_VLD = 12; V_FLAG = 13
V_T = 16; NTP = 2
V_VST = 20; V_VTAB = 23
V_FR = 24; NFS = 6
TQ = [48, 56, 60]; V_VO = 52; BX = 224; BY = 240; BZ = 144
V_POLL = V_VO; V_KA = V_VO + 2
UNIT = [64, 80, 160, 176]; HI = [96, 112]
def Sq(t, qb, tb): return (UNIT[t % 4] if tb == 0 else HI[t % 2]) + 4 * qb
def P(t, qb): return UNIT[t % 4] + 4 * qb
def NEGM(qb): return 128 + 4 * qb
def O(qb, db): return (qb * 12 + db) * 4
def Qf(qb, s, half=None):
    i = qb * 6 + s
    base, f = (192 + 4 * i, ar) if i < 16 else (192 + 4 * (i - 16), vr)
    return f(base, 4) if half is None else f(base + 2 * half, 2)
def FR(f): return vr(V_FR + 4 * (f % NFS), 4)

S_RDELTA = 3; S_WS = 4; S_Q = 8; S_OUT = 12; S_FLG = 20
S_WAVE = 25; S_DMK = 26; S_GOFF = 27; S_RK = 28; S_TMP = 29; S_RV = 30; S_CNT = 31; S_GOFFK = 32
S_PK0 = 33; S_PK1 = 34; S_PV0 = 35; S_PV1 = 36; S_KW = 37; S_CS = 38; S_RET = 39; S_KW2 = 80; S_VW = 81; S_QL = 82; S_LEAD = 83
S_PT = 48; S_DMV = 56; S_TK = 57; S_TV = 58; S_TP = 59
S_QK = 64; S_QV = 68; S_DBG = 88
S_NEED = 92; S_HOFF = 93; S_HEAD = 94; S_QB = 95; S_BUDGET = 96; S_MASK = 97
FLAG_OFF = 64 << 20
WSHEAD = HEADBYTES + 8 * STAGE
SC1 = " sc1"; NTKV = " nt"; NTQ = " nt"; STF = " sc1"; OF = " sc0 sc1"

STAMPS = []
def SR(i): return ([40, 42, 44, 46, 60, 62, 0, 72, 74, 76, 78, 84, 86, 16] if OPT['stamp'] in (3, 6) else [16, 40, 42, 44, 84, 86, 0])[i]
def kstamp(name, mode=6):
    if OPT["stamp"] != mode: return []
    i = len(STAMPS); STAMPS.append(name)
    return [f"s_memtime s[{SR(i)}:{SR(i)+1}]"]
def vstamp(name):
    if OPT["stamp"] != 7: return []
    i = len(STAMPS); STAMPS.append(name)
    return ["s_memrealtime s[100:101]", "s_waitcnt lgkmcnt(0)", f"v_writelane_b32 v14, s100, {i}"]
def stamp(name):
    if OPT["stamp"] != 1: return []
    i = len(STAMPS); STAMPS.append(name)
    return [f"s_memrealtime s[{SR(i)}:{SR(i)+1}]"]

class W:
    def __init__(self, *tags): self.tags = tags; self.n = None
class VM:
    def __init__(self, tag, text): self.tag = tag; self.text = text
class LG:
    def __init__(self, tag, soft=False): self.tag = tag; self.n = None; self.need = False; self.soft = soft
class DS:
    def __init__(self, tag, text): self.tag = tag; self.text = text
class SIG:
    def __init__(self, name): self.name = name
class CHK:
    def __init__(self, name): self.name = name

def softmax_part(t, half):
    flat = []; prev = None
    for gp in range(8):
        qb = 2 * half + gp // 4; pi = gp % 4
        t0 = V_T + 2 * (gp % NTP); t1 = t0 + 1
        src = Sq(t, qb, pi >> 1) + 2 * (pi & 1)
        E = [f"v_exp_f32 v{t0}, v{src}", f"v_exp_f32 v{t1}, v{src+1}"]
        A = [f"v_add_f32 v{V_L[qb]}, v{V_L[qb]}, v{t0}", f"v_add_f32 v{V_L[qb]}, v{V_L[qb]}, v{t1}"]
        C = [f"v_cvt_pk_bf16_f32 v{P(t,qb)+pi}, v{t0}, v{t1}"]
        flat += E if prev is None else [E[0]] + prev[0] + [E[1]] + prev[1]
        prev = (A, C)
    return flat + prev[0] + prev[1]

def kfrag(g):
    return 2 * (g >> 2) + (g & 1), (g >> 1) & 1
def vfrag(db):
    return (db >> 2, (db & 3) * 768)
def frag_read(kind, f, regs=None, tag=None):
    if kind == "q":
        s, tb = kfrag(f % 12)
        return DS(tag or ("f", kind, f), f"ds_read_b128 {FR(f)}, v{V_RDK[s&1]} offset:{(f//12)*12288 + tb*6144 + (s>>1)*128}")
    a, off = vfrag(f >> 1)
    return DS(tag or ("f", kind, f), f"ds_read_b128 {FR(f)}, v{(regs or V_RDV)[a]} offset:{(f&1)*12288 + off}")

def dma_tile(part, pos, peel=False):
    dm, go, tmp = (S_DMK, S_GOFFK, S_TK) if part == "k" else (S_DMV, S_GOFF, S_TV)
    l = [f"s_mov_b32 m0, s{dm}"]
    for j in range(3):
        l.append(VM(("d" + part, (pos >> 1) % 4), f"buffer_load_dwordx4 v{V_DMA}, s[{S_WS}:{S_WS+3}], s{go} offen offset:{j*1024}{SC1} lds"))
    if peel and pos < 7:
        l += [f"s_add_u32 s{go}, s{go}, {STAGE}", f"s_sub_u32 s{tmp}, s{go}, {8*STAGE}", f"s_min_u32 s{go}, s{go}, s{tmp}"]
    elif peel and pos == 7:
        l += [f"s_mov_b32 s{go}, {8*STAGE + (0 if part == 'k' else 12288)}"]
    else:
        l += [f"s_add_u32 s{go}, s{go}, {STAGE}"]
    if pos % 2 == 0: l += [f"s_add_u32 s{dm}, s{dm}, 12288"]
    else: l += [f"s_add_u32 s{dm}, s{dm}, {2*STAGE - 12288}", f"s_sub_u32 s{tmp}, s{dm}, {RING}", f"s_min_u32 s{dm}, s{dm}, s{tmp}"]
    return l
def with_nop(l):
    out = []
    real = [i for i, x in enumerate(l) if not isinstance(x, (SIG, CHK))]
    nxt = {a: b for a, b in zip(real, real[1:])}
    for i, x in enumerate(l):
        out.append(x)
        if isinstance(x, str) and " m0," in x and i in nxt and isinstance(l[nxt[i]], VM): out.append("s_nop 0")
    return out
def rd_step(kind):
    cur, regs = (S_RK, V_RDK) if kind == "q" else (S_RV, V_RDV)
    return [f"s_add_u32 s{S_TMP}, s{cur}, {2*STAGE}", f"s_sub_u32 s{S_RDELTA}, s{S_TMP}, {RING}",
            f"s_min_u32 s{S_TMP}, s{S_TMP}, s{S_RDELTA}", f"s_sub_u32 s{S_RDELTA}, s{S_TMP}, s{cur}", f"s_mov_b32 s{cur}, s{S_TMP}"] + \
           [f"v_add_u32 v{r}, s{S_RDELTA}, v{r}" for r in regs]

def k_ld(h, buf, tag, js=range(4)):
    return [VM((tag, j >> 1), f"buffer_load_dwordx4 v[{buf+4*j}:{buf+4*j+3}], v{V_KLD}, s[{S_QK}:{S_QK+3}], s{S_PK0 if j < 2 else S_PK1} offen offset:{(j&1)*1536+384*h}{NTKV}")
            for j in js]
def v_ld(h, buf, tag, js=range(4)):
    return [VM((tag, r >> 1), f"buffer_load_dwordx4 v[{buf+4*r}:{buf+4*r+3}], v{V_VLD}, s[{S_QV}:{S_QV+3}], s{S_PV0 if h == 0 else S_PV1} offen offset:{r*768}{NTKV}")
            for r in js]
def k_unit(h, buf, out, jp, i, q):
    ab = [(buf + 4 * j + 2 * i, buf + 4 * j + 2 * i + 1) for j in (2 * jp, 2 * jp + 1)]
    return [f"v_cvt_f32_i32 v{r}, v{r}" for a, b in ab for r in (a, b)] + \
           [f"v_fma_f32 v{r}, v{r}, v{q+x}, v{q+2+x}" for a, b in ab for x, r in enumerate((a, b))] + \
           [f"v_cvt_pk_bf16_f32 v{out+4*j+2*h+i}, v{a}, v{b}" for j, (a, b) in zip((2 * jp, 2 * jp + 1), ab)]
def v_unit(buf, i, q):
    l = []
    for e0 in (0, 2):
        ab = [(buf + 8 * i + e, buf + 8 * i + 4 + e) for e in (e0, e0 + 1)]
        l += [f"v_cvt_f32_i32 v{r}, v{r}" for a, b in ab for r in (a, b)]
        l += [f"v_fma_f32 v{r}, v{r}, v{q+x}, v{q+2+x}" for a, b in ab for x, r in enumerate((a, b))]
    return l
def v_pack(h, buf, out, lst):
    return [f"v_cvt_pk_bf16_f32 v{out+4*e+2*h+i}, v{buf+8*i+e}, v{buf+8*i+4+e}" for e, i in lst]
V_INPLACE = [(0, 0), (1, 0), (0, 1), (1, 1), (2, 0), (2, 1), (3, 0), (3, 1)]
def tq_rd(name, q):
    if name[0] == "k": va, off = V_KTAB, "ab".index(name[1]) * 768 + int(name[2]) * 384
    else: va, off = V_VTAB, ("ab".index(name[1]) * 2 + int(name[2])) * 16
    return DS(("tq", name), f"ds_read_b128 v[{q}:{q+3}], v{va} offset:{off}")
def ins(l, i, x): return l[:i] + x + l[i:]
def chain_k():
    T0, T1, T2 = TQ
    c = [tq_rd("ka1", T1), W(("ka", 0)), LG(("tq", "ka0"), True)] + ins(k_unit(0, BX, BX, 0, 0, T0), 3, [tq_rd("kb0", T2)])
    c += [LG(("tq", "ka1"), True)] + k_unit(0, BX, BX, 0, 1, T1) + [W(("ka", 1))] + k_unit(0, BX, BX, 1, 0, T0) + k_unit(0, BX, BX, 1, 1, T1)
    c += [tq_rd("kb1", T0), W(("kb", 0)), LG(("tq", "kb0"), True)] + ins(k_unit(1, BY, BX, 0, 0, T2), 3, [tq_rd("va0", T1), f"v_add_u32 v{V_KTAB}, {TS}, v{V_KTAB}"])
    c += [LG(("tq", "kb1"), True)] + k_unit(1, BY, BX, 0, 1, T0) + [SIG("BY0"), W(("kb", 1))] + k_unit(1, BY, BX, 1, 0, T2) + k_unit(1, BY, BX, 1, 1, T0)
    return c + [SIG("BY1"), SIG("Kdone")]
def chain_v(last=False):
    T0, T1, T2 = TQ
    c = [tq_rd("va1", T2), W(("va", 0)), LG(("tq", "va0"), True)] + ins(v_unit(BZ, 0, T1), 3, [tq_rd("vb0", T0)])
    c += [tq_rd("vb1", T1), W(("va", 1)), LG(("tq", "va1"), True)] + ins(v_unit(BZ, 1, T2), 3, [f"v_add_u32 v{V_VTAB}, {TS}, v{V_VTAB}"]) + v_pack(0, BZ, BZ, V_INPLACE)
    c += [W(("vb", 0)), LG(("tq", "vb0"), True)] + v_unit(BY, 0, T0) + ([] if last else [tq_rd("ka0", T0)]) + v_pack(1, BY, BZ, [(e, 0) for e in range(4)]) + [SIG("BY0")]
    c += [W(("vb", 1)), LG(("tq", "vb1"), True)] + v_unit(BY, 1, T1) + v_pack(1, BY, BZ, [(e, 1) for e in range(4)])
    return c + [SIG("BY1"), SIG("Vdone")]
def cut(c, n0, n1):
    out = []; n = 0; pend = []
    for x in c:
        if isinstance(x, str) and x.startswith("v_"):
            if n0 <= n < n1: out += pend + [x]
            pend = []; n += 1
        elif isinstance(x, SIG):
            if n0 <= n - 1 < n1: out.append(x)
        else: pend.append(x)
    assert not pend
    return out
def k_st(j, out, tag="kst"):
    return [VM(tag, f"buffer_store_dwordx4 v[{out+4*j}:{out+4*j+3}], v{V_KA if j & 1 else V_KST}, s[{S_WS}:{S_WS+3}], s{S_KW if j < 2 else S_KW2} offen offset:{(j&1)*768}{STF}")]
def v_st(e, out, tag="vst"):
    return [VM(tag, f"buffer_store_dwordx4 v[{out+4*e}:{out+4*e+3}], v{V_VST}, s[{S_WS}:{S_WS+3}], s{S_VW} offen offset:{e*768}{STF}")]
def adv(r0, r1, w):
    return [f"s_add_u32 s{r0}, s{r0}, {8*STAGE}", f"s_sub_u32 s{r1}, s{r0}, {HEADBYTES}", f"s_min_u32 s{r0}, s{r0}, s{r1}", f"s_add_u32 s{r1}, s{r0}, 3072"] + \
           [f"s_add_u32 s{x}, s{x}, {8*STAGE}" for x in w]
def k_adv(): return adv(S_PK0, S_PK1, (S_KW, S_KW2))
def v_adv(): return adv(S_PV0, S_PV1, (S_VW,))
HT = {"ka": (k_ld, 0, BX), "kb": (k_ld, 1, BY), "va": (v_ld, 0, BZ), "vb": (v_ld, 1, BY)}
def flag_post():
    return [f"v_add_u32 v{V_FV}, 1, v{V_FV}",
            VM("flag", f"buffer_store_dword v{V_FV}, v{V_FLAG}, s[{S_FLG}:{S_FLG+3}], 0 offen sc1")]
def poll_addr():
    return [f"v_bfe_u32 v{V_POLL+1}, v{V_DMA}, 4, 6", f"v_lshlrev_b32 v{V_POLL+1}, 2, v{V_POLL+1}"]
def poll_load():
    return poll_addr() + [VM("poll", f"buffer_load_dword v{V_POLL}, v{V_POLL+1}, s[{S_FLG}:{S_FLG+3}], 0 offen sc1")]
def poll_test():
    return [f"v_subrev_u32 v{V_POLL}, s{S_NEED}, v{V_POLL}", f"v_cmp_lt_u32 vcc, 15, v{V_POLL}", "s_nop 0", f"s_and_b32 s{S_TP}, vcc_lo, 0xff"]
def smem_flags():
    return [f"s_buffer_load_dwordx8 s[{S_PT}:{S_PT+7}], s[{S_FLG}:{S_FLG+3}], 0 glc"]
def smem_test():
    l = smem_flags() + ["s_waitcnt lgkmcnt(0)"]
    for i in range(8): l.append(f"s_sub_u32 s{S_PT+i}, s{S_PT+i}, s{S_NEED}")
    for i in range(1, 8): l.append(f"s_max_u32 s{S_PT}, s{S_PT}, s{S_PT+i}")
    return l + [f"s_cmp_lt_u32 s{S_PT}, 16"]
def poll_slow(site):
    l = [f"L_pollslow{site}:"]
    if site != "P":
        l += [f"s_mov_b32 s{S_TP}, 200", f"L_pollsm{site}:"] + smem_test() + [f"s_cbranch_scc1 L_pollok{site}",
              f"s_sub_u32 s{S_TP}, s{S_TP}, 1", f"s_cbranch_scc1 L_pollvec{site}", "s_sleep 1", f"s_branch L_pollsm{site}"]
    l += [f"L_pollvec{site}:",
            f"s_sub_u32 s{S_BUDGET}, s{S_BUDGET}, 1",
            f"s_cbranch_scc1 L_pollgiveup{site}",
            "s_sleep 2",
            f"buffer_load_dword v{V_POLL}, v{V_POLL+1}, s[{S_FLG}:{S_FLG+3}], 0 offen sc1",
            "s_waitcnt vmcnt(0)"] + poll_test() + [
            f"s_cbranch_scc1 L_pollvec{site}",
            f"s_branch L_pollok{site}",
            f"L_pollgiveup{site}:",
            f"s_mov_b32 s{S_BUDGET}, 0",
            f"s_branch L_pollok{site}"]
    return l
def tag_load():
    return [VM("tag", f"buffer_load_dword v{V_POLL}, off, s[{S_DBG}:{S_DBG+3}], s{S_HOFF} sc1")]
def tag_check():
    return [f"v_readfirstlane_b32 s{S_NEED}, v{V_POLL}", f"s_mov_b32 s{S_RET}, 100",
            "L_tagretry:", f"s_cmp_lg_u32 s{S_NEED}, 0", "s_cbranch_scc1 L_tagok",
            f"s_sub_u32 s{S_RET}, s{S_RET}, 1", "s_cbranch_scc1 L_tagslow", "s_sleep 8",
            f"s_buffer_load_dword s{S_NEED}, s[{S_DBG}:{S_DBG+3}], s{S_HOFF} glc", "s_waitcnt lgkmcnt(0)", "s_branch L_tagretry",
            "L_tagok:", f"s_add_u32 s{S_NEED}, s{S_NEED}, 1", f"v_mov_b32 v{V_FV}, s{S_NEED}"]
def first_post():
    return ["s_mov_b64 exec, 1", f"v_mov_b32 v{V_T}, 1", f"v_mov_b32 v{V_T+1}, {RING}",
            f"ds_add_rtn_u32 v{V_T}, v{V_T+1}, v{V_T}", "s_waitcnt lgkmcnt(0)",
            f"v_readfirstlane_b32 s24, v{V_T}", "s_nop 0", "s_cmp_lg_u32 s24, 3", "s_cbranch_scc1 L_nopost",
            f"s_lshl_b32 s{S_RET}, s{S_QB}, 2",
            f"buffer_store_dword v{V_FV}, off, s[{S_FLG}:{S_FLG+3}], s{S_RET} sc1",
            "L_nopost:", "s_mov_b64 exec, -1"]
def poll_smem():
    l = poll_addr() + [f"s_mov_b32 s{S_RET}, 200", "s_waitcnt lgkmcnt(0)"]
    l += [f"s_sub_u32 s{72+i}, s{72+i}, s{S_NEED}" for i in range(8)] + [f"s_max_u32 s72, s72, s{72+i}" for i in range(1, 8)]
    l += ["s_cmp_lt_u32 s72, 16", "s_cbranch_scc1 L_pollokP", "L_pollretry:"] + smem_test()
    l += ["s_cbranch_scc1 L_pollokP",
          f"s_sub_u32 s{S_RET}, s{S_RET}, 1", "s_cbranch_scc1 L_pollslowP", "s_sleep 1", "s_branch L_pollretry",
          "L_pollokP:", f"s_add_u32 s{S_NEED}, s{S_NEED}, 1"]
    return l
def tag_slow():
    return ["L_tagslow:",
            f"s_sub_u32 s{S_BUDGET}, s{S_BUDGET}, 1",
            "s_cbranch_scc1 L_taggiveup",
            "s_sleep 2",
            f"buffer_load_dword v{V_POLL}, off, s[{S_DBG}:{S_DBG+3}], s{S_HOFF} sc1",
            "s_waitcnt vmcnt(0)",
            f"v_readfirstlane_b32 s{S_NEED}, v{V_POLL}", "s_nop 0", f"s_cmp_eq_u32 s{S_NEED}, 0", "s_cbranch_scc1 L_tagslow",
            "s_branch L_tagok",
            "L_taggiveup:",
            f"s_mov_b32 s{S_BUDGET}, 0",
            "s_branch L_tagok"]

def text_of(x):
    if isinstance(x, (W, LG)): return "s_waitcnt"
    if isinstance(x, (VM, DS)): return x.text
    return x
def kind_of(x):
    if isinstance(x, (SIG, CHK)) or (isinstance(x, LG) and x.soft): return "label"
    t = text_of(x)
    if t.endswith(":"): return "label"
    if t.startswith("v_"): return "valu"
    if t.startswith("ds_"): return "ds"
    if t.startswith("buffer_store"): return "store"
    if t.startswith("buffer_"): return "load"
    return "salu"
def cost_of(x):
    k = kind_of(x)
    if k == "label": return 0
    t = text_of(x)
    if k == "store": return 20 if "x4" in t else (12 if "x2" in t else 8)
    if k == "load": return 8
    if t.startswith("ds_write_b128"): return 12
    if t.startswith("v_exp"): return 8
    if t.startswith("s_nop"): return 4 * (int(t.split()[1]) + 1)
    if t.startswith("s_cbranch") or t.startswith("s_branch"): return 12
    if t.startswith("s_barrier"): return 8
    return 4
def gap_time(ops):
    t = 4; prev = None
    for o in ops:
        k = kind_of(o)
        if k == "label": continue
        if k == "salu": t += cost_of(o)
        else: t = max(t, 8) + cost_of(o) + (8 if (k != "valu" and prev == "valu") else 0)
        prev = k
    return t

class Stream:
    def __init__(self, ops, first, last, maxper=99):
        self.ops = list(ops); self.first = first; self.last = last; self.maxper = maxper
        self.total = sum(cost_of(o) for o in self.ops); self.done = 0; self.i = 0

def pack(A, B, C, T, streams, novm=(), nosalu=(), ng=NG):
    out = []; over = 0; lastvm = -99
    pend = {o.name for st in streams for o in st.ops if isinstance(o, SIG)} | {o.name for l in B for o in l if isinstance(o, SIG)}
    placed = set()
    for g in range(ng):
        pend -= placed
        placed |= {o.name for o in B[g] if isinstance(o, SIG)}
        a, b, c, tl = list(A[g]), list(B[g]), list(C[g]), list(T[g])
        cnt = {}; inC = set(); blocked = set()
        while True:
            best = None; bl = None; bsec = None
            for st in streams:
                if st.i >= len(st.ops) or g < st.first: continue
                force = g >= st.last
                o = st.ops[st.i]; k = kind_of(o); cst = cost_of(o)
                if isinstance(o, CHK) and o.name in pend:
                    assert not force, o.name
                    continue
                if k == "label":
                    if isinstance(o, SIG): placed.add(o.name)
                    best = st; bsec = "c" if (id(st) in inC or isinstance(o, SIG)) else "b"; bl = (True, True, 1e9); break
                if (cnt.get(id(st), 0) >= st.maxper or id(st) in blocked) and not force: continue
                if k == "salu" and g in nosalu:
                    assert not force
                    continue
                if k in ("load", "store") and (g in novm or g - lastvm < OPT["vmgap"]) and not force: continue
                if k == "ds" and any(kind_of(x) in ("ds", "load", "store") for x in b) and not force: continue
                if k in ("load", "store", "ds"):
                    sec = "b" if id(st) not in inC and id(st) not in blocked else "c"
                    if sec == "c" and not force: continue
                elif k == "salu" and not a and cnt.get(id(st), 0) == 0 and not any(x is not None for x in b if isinstance(x, (LG, CHK))):
                    sec = "a"
                else: sec = "c"
                tgt = st.total * (g - st.first + 1) / (st.last - st.first + 1)
                lag = tgt - st.done
                if not force:
                    if lag < cst / 2 - OPT["ahead"] and cst: continue
                    trial = (a + [o] if sec == "a" else a) + (b + [o] if sec == "b" else b) + (c + [o] if sec == "c" else c) + tl
                    if gap_time(trial) > 16:
                        if not (lag > 24 and gap_time(trial) <= 20): continue
                        if g % 2 == 0: continue
                key = (force, k in ("load", "store"), lag / max(1, (st.last - g + 1)) ** 0.5)
                if best is None or key > bl: best = st; bl = key; bsec = sec
            if best is None: break
            o = best.ops[best.i]
            {"a": a, "b": b, "c": c}[bsec].append(o)
            if bsec == "c": inC.add(id(best))
            if kind_of(o) != "label":
                if " m0," in text_of(o): blocked.add(id(best))
                if kind_of(o) in ("load", "store"): lastvm = g
                cnt[id(best)] = cnt.get(id(best), 0) + 1
            best.i += 1; best.done += cost_of(o)
        ops = a + b + c + tl
        tt = gap_time(ops)
        if tt > 16: over += tt - 16
        out.append(ops)
    for st in streams: assert st.i == len(st.ops), [text_of(o) for o in st.ops[st.i:]]
    return out, over

NK = 81; NV = 81
def steady(k, last=False):
    pl = OPT["pl"]; s0 = OPT["kst0"]
    st = lambda w: [(w, 0, s0), (w, 1, s0 + 8), (w, 2, s0 + 16), (w, 3, 85), ("dmaw", 0, s0 - 7)]
    t = {
        0: [("post", "kst"), ("cv", "v", 12, 40, 0, 95), ("ld", "vb", (2, 3), 0, 14), ("ld", "ka", (0, 1, 2, 3), 16, 50), ("dmaw", 20, 74)],
        1: [("cv", "v", 40, 66, 0, 95)],
        2: [("cv", "v", 66, NV, 0, s0 - 3), ("pollld", 0, 8), ("cv", "k", 0, 6, s0 + 6, 95), ("ld", "kb", (0, 1), 10, 30)] + st("vst"),
        3: [("post", "vst"), ("pollchk", 1), ("ld", "kb", (2, 3), 0, 20), ("cv", "k", 6, 23, 0, 95), ("dmaw", 8, 74)],
        4: [("cv", "k", 23, 40, 0, 95), ("ld", "va", (0, 1, 2, 3), 0, 44)],
        5: [("cv", "k", 40, 57, 0, 95), ("pollld", 2, 10)] + ([("pf", 80, 92)] if OPT["pf2"] else []),
        6: [("cv", "k", 57, 72, 0, 95), ("pollchk", 1), ("ld", "vb", (0, 1), 60, 90), ("dmaw", 8, 58)],
        7: [("cv", "k", 72, NK, 0, s0 - 3), ("cv", "v", 0, 12, s0 + 6, 94)] + st("kst"),
    }[k]
    if last:
        t = [x for x in t if not ((x[0] == "cv" and x[1] == "k") or (x[0] == "ld" and x[1] != "vb") or (x[0] == "ld" and k > 0))]
        t = [("cv", "vl") + x[2:] if x[:2] == ("cv", "v") else x for x in t]
    return t

POLLSITES = []
GBAR = 4 * (24 - D) - 1
def qk_mfma(t0, g):
    qb = (g >> 1) & 3
    F = 2 * (g >> 3) + (g & 1)
    t = t0 + F // 12; s, tb = kfrag(F % 12)
    d = vr(Sq(t, qb, tb), 4)
    c = vr(NEGM(qb), 4) if (s < 2 and g % 2 == 0) else d
    return f"{MF} {d}, {FR(F)}, {Qf(qb,s)}, {c}"
def pv_mfma(t0, db, qb, w, first=False):
    d = ar(O(qb, db), 4)
    return f"{MF} {d}, {vr(P(t0+w,qb),4)}, {FR(2*db+w)}, {'0' if (first and w == 0) else d}"

def gen_iter(it, tasks=(), dma=None, name=None, endops=(), peel=False, extra_sm=False, nostep=False, extra=(), extra_late=()):
    kind = "q" if it % 2 else "p"
    nk = "p" if kind == "q" else "q"
    A = [[] for _ in range(NG)]; B = [[] for _ in range(NG)]; C = [[] for _ in range(NG)]; T = [[] for _ in range(NG)]
    streams = []; novm = set(range(0, NG, 2)); nosalu = set()
    for F in range(24):
        fr = F + D
        B[4 * F].append(frag_read(kind, fr) if fr < 24 else frag_read(nk, fr - 24))
    for F in range(2, 25, 2):
        A[4 * F - 1].append(LG(("f", kind, F + 1) if F < 24 else ("f", nk, 1)))
    smB = softmax_part(it, 1); smA = softmax_part(it + 1, 0)
    if extra_sm: smB = softmax_part(it, 0) + smB
    if kind == "q":
        streams.append(Stream(smB, 0, 50)); streams.append(Stream(smA, 52, 95))
    else:
        streams.append(Stream(smB + smA, 0, 95))
    if endops:
        A[92] += endops[:1]; A[94] += [A[95][0]] + list(endops[1:-1]); A[95] = []; T[95] = list(endops[-1:]); nosalu |= {94, 95}
    if extra: streams.append(Stream(extra, 0, 90))
    if extra_late: streams.append(Stream(extra_late, GBAR + 1, 94))
    if not OPT["prod"]: tasks = ()
    if dma is None:
        w = [t[1:] for t in tasks if t[0] == "dmaw"]
        w = w[0] if w else (0, GBAR - 5)
        p0 = it + 5 if kind == "q" else it + 2
        c_ = "k" if kind == "q" else "v"
        dma = [((c_, p0), (c_, p0 + 1)) + tuple(w)]
    for grp in dma:
        dl = []
        for part, pos in grp[:-2]: dl += dma_tile(part, pos, peel)
        n = max(i for i, x in enumerate(dl) if isinstance(x, VM)) + 1
        streams.append(Stream(dl[:n], grp[-2], grp[-1], maxper=2))
        streams.append(Stream(dl[n:], grp[-1] + 1, min(93 if endops else 95, grp[-1] + 12), maxper=2))
    nj = ((it + 2) // 2) if nk == "q" else (it - 1) // 2
    wtags = [("dk" if nk == "q" else "dv", nj % 4)]
    if not nostep:
        streams.append(Stream(rd_step(nk), 30, GBAR - 3, maxper=1))
    for t in tasks:
        k_ = t[0]
        if k_ == "cv":
            c = {"k": chain_k, "v": chain_v, "vl": lambda: chain_v(True)}[t[1]]()
            streams.append(Stream(cut(c, t[2], t[3]), t[4], t[5]))
        elif k_ in ("kst", "vst"):
            grp = k_st(t[1], BX) if k_ == "kst" else v_st(t[1], BZ)
            g = t[2]; assert g % 4 == 1 and not B[g], g
            if t[1] == 0: B[g].append(CHK("Kdone" if k_ == "kst" else "Vdone"))
            B[g].append(grp[-1]); novm |= set(range(g - OPT["sb"], g + OPT["sa"] + 1))
            if t[1] == 3: B[g].append(SIG("BX" if k_ == "kst" else "BZ"))
            if grp[:-1]: streams.append(Stream(grp[:-1], max(0, g - 5), g - 1))
        elif k_ in ("ld", "ldn"):
            ld, h, buf = HT[t[1]]
            adv = ({"ka": k_adv(), "va": v_adv()}.get(t[1], []) if k_ == "ld" else [])
            chk = {"ka": [CHK("BX")], "va": [CHK("BZ")]}.get(t[1], [CHK(f"BY{j>>1}") for j in t[2] if j % 2 == 0])
            streams.append(Stream(chk + adv + ld(h, buf, t[1], t[2]), t[3], t[4], maxper=1))
        elif k_ == "post":
            wtags += list(t[1:])
            streams.append(Stream(flag_post(), GBAR + 1, 93, maxper=1))
        elif k_ == "pf":
            streams.append(Stream([VM("pf", f"buffer_load_dword v15, v{V_DMA}, s[{S_DBG}:{S_DBG+3}], s{S_HOFF} offen")], t[1], t[2]))
        elif k_ == "pollld": streams.append(Stream(poll_load(), t[1], t[2], maxper=1))
        elif k_ in ("pollchk", "pollchk0"):
            ps = len(POLLSITES); POLLSITES.append(ps)
            g = t[1]; assert g % 4 == 1 and not (GBAR - 6 <= g <= GBAR)
            pt = poll_test()
            A[g] += [W("poll")]; T[g] += pt[:2]; novm |= {g, g + 4}
            A[g + 3] += [pt[3]]; A[g + 4] += [f"s_cbranch_scc1 L_pollslow{ps}", f"L_pollok{ps}:"]; nosalu |= {g + 3, g + 4}
            if k_ == "pollchk": A[g + 5] += [f"s_add_u32 s{S_NEED}, s{S_NEED}, 1"]
    A[GBAR - 1] += [W(*wtags)]; novm |= {GBAR}
    A[GBAR - 2] += A[GBAR]; A[GBAR] = ["s_barrier"]
    if endops:
        for st_ in streams: st_.last = min(st_.last, 94)
    fill, over = pack(A, B, C, T, streams, novm, nosalu)
    if over: print(f"iter {name or it}: over budget by {over} cycles", file=sys.stderr)
    out = [f"; ---- iteration {name or it}"]
    for g in range(NG):
        if kind == "q": out.append(qk_mfma(it + 1, g))
        else: out.append(pv_mfma(it - 2, g >> 3, (g >> 1) & 3, g & 1, first=(peel and it == 2)))
        out += fill[g]
    return with_nop(out)

GA = [60, 61]; BP = 62; RD2 = [9, 10, 11]
RLQ = [48, 52, 56, 128]
RT = [20, 23]
def epi_addr():
    ta = 63
    return [f"v_bfe_u32 v{ta}, v{V_DMA}, 4, 6", f"v_and_b32 v{BP}, 48, v{ta}", f"v_and_b32 v{ta}, 15, v{ta}",
            f"v_mul_u32_u24 v{GA[1]}, 96, v{BP}", f"v_lshl_add_u32 v{GA[0]}, v{ta}, 4, v{GA[1]}", f"v_lshl_add_u32 v{GA[1]}, v{ta}, 3, v{GA[1]}",
            f"s_lshl_b32 s24, s{S_QB}, 2", f"s_add_u32 s24, s24, s{S_WAVE}", f"s_mul_i32 s24, s24, {STAGE}"] + \
           [f"s_add_u32 s{S_PK0+i}, s24, {6144*i}" for i in range(4)]
def epi_l(qs):
    fl = []
    for sw in ("v_permlane16_swap_b32", "v_permlane32_swap_b32"):
        fl += [f"v_mov_b32 v{RT[i]}, v{V_L[q]}" for i, q in enumerate(qs)] + ["s_nop 0"]
        fl += [f"{sw} v{V_L[q]}, v{RT[i]}" for i, q in enumerate(qs)] + ["s_nop 0"]
        fl += [f"v_add_f32 v{V_L[q]}, v{V_L[q]}, v{RT[i]}" for i, q in enumerate(qs)]
    fl += [f"v_rcp_f32 v{RT[i]}, v{V_L[q]}" for i, q in enumerate(qs)] + ["s_nop 0"]
    return fl + [DS(("rl", q, i), f"ds_bpermute_b32 v{RLQ[q]+i}, v{BP}, v{RT[j]} offset:{4*i}") for j, q in enumerate(qs) for i in range(4)]
def epi_q(qb, temps, pk):
    p = [LG(("rl", qb, 3))]
    for i in range(4):
        ob = temps[(4 * qb + i) % len(temps)]
        rl = RLQ[qb] + i
        p += [f"v_accvgpr_read_b32 v{ob+db}, a{O(qb,db)+i}" for db in range(12)]
        if pk: p += [f"v_pk_mul_f32 v[{ob+2*j}:{ob+2*j+1}], v[{ob+2*j}:{ob+2*j+1}], v[{rl&~1}:{(rl&~1)+1}] op_sel:[0,{rl&1}] op_sel_hi:[1,{rl&1}]" for j in range(6)]
        else: p += [f"v_mul_f32 v{ob+j}, v{ob+j}, v{rl}" for j in range(12)]
        p += [f"v_cvt_pk_bf16_f32 v{ob+j}, v{ob+2*j}, v{ob+2*j+1}" for j in range(6)]
        p += [f"buffer_store_dwordx4 v[{ob}:{ob+3}], v{GA[0]}, s[{S_OUT}:{S_OUT+3}], s{S_PK0+qb} offen offset:{384*i}{OF}",
              f"buffer_store_dwordx2 v[{ob+4}:{ob+5}], v{GA[1]}, s[{S_OUT}:{S_OUT+3}], s{S_PK0+qb} offen offset:{384*i+256}{OF}"]
    return p

def gen_tail():
    passes = [(60, (0, 1)), (62, (0, 1)), (60, (2, 3)), (62, (2, 3))]
    def tg(i): return ("f", "p", i) if i < 24 else ("f", "t", i)
    def rd(i):
        ps, f = divmod(i, 24)
        return frag_read("p", f, V_RDV if passes[ps][0] == 60 else RD2, tg(i))
    def run(ps, fill, lim):
        t0, qbs = passes[ps]
        out = []; fill = list(fill)
        for db in range(12):
            for i, (qb, w) in enumerate([(q, w) for q in qbs for w in (0, 1)]):
                out.append(pv_mfma(t0, db, qb, w))
                cur = []
                gi = 24 * ps + 2 * db
                if i in (0, 2) and gi + (i >> 1) + D < 96: cur.append(rd(gi + (i >> 1) + D))
                if i == 3 and gi + 3 < 96: cur.append(LG(tg(gi + 3)))
                L_ = 16 if i % 2 == 0 else lim
                while fill and gap_time(cur + [fill[0]]) <= L_ + (12 if (text_of(fill[0]).startswith(("buffer", "ds_")) and i % 2) else 0):
                    cur.append(fill.pop(0))
                out += cur
        return out, fill
    thr = f"s_mov_b32 s{S_TMP}, 0x{f32bits(2.0**OPT['thr']):08x}"
    seq = []
    c, r = run(0, softmax_part(63, 0), 16); seq += c + r + ["s_nop 1"]
    c, r = run(1, [f"v_max_f32 v{RT[0]}, v{V_L[0]}, v{V_L[1]}", thr, f"v_cmp_lt_f32 vcc, s{S_TMP}, v{RT[0]}"] + softmax_part(62, 1), 16)
    seq += c + r + ["s_cbranch_vccnz L_slow"]
    tempsA = [BX, BX + 12, BZ, 132]
    must = softmax_part(63, 1) + [f"v_max_f32 v{RT[0]}, v{V_L[2]}, v{V_L[3]}", f"v_cmp_lt_f32 vcc, s{S_TMP}, v{RT[0]}"]
    rest = epi_l((0, 1)) + epi_q(0, tempsA, False) + epi_q(1, tempsA, False)
    c, r = run(2, must + rest, OPT["tden"])
    nm = max(0, len(r) - len(rest)); c += r[:nm]; r = r[nm:]
    seq += c + ["s_nop 1", "s_cbranch_vccnz L_slow"]
    c, r = run(3, r + epi_l((2, 3)), OPT["tden"]); seq += c + r
    tempsB = [64 + 12 * i for i in range(5)]
    seq += ["s_nop 4"] + epi_q(2, tempsB, True) + epi_q(3, tempsB, True)
    return seq
def slow_epi():
    seq = epi_l((0, 1)) + epi_l((2, 3))
    for q in range(4): seq += epi_q(q, [64 + 12 * i for i in range(5)], True)
    return seq

def xlane(op, t):
    l = []
    for sw in ("v_permlane16_swap_b32", "v_permlane32_swap_b32"):
        l += [f"v_mov_b32 v{t+1}, v{t}", "s_nop 1", f"{sw} v{t}, v{t+1}", "s_nop 1", f"{op} v{t}, v{t}, v{t+1}"]
    return l

def gen_slow():
    KF = 64; VF = 112; SS = 160; PP = 224; M = [240, 241, 242, 243]; KA = [244, 245]; LA = [246, 247, 248]; AL = 250; t = V_T
    p = ["L_slow:", "s_waitcnt vmcnt(0) lgkmcnt(0)", "s_nop 15"]
    for i in range(192): p.append(f"v_accvgpr_write_b32 a{i}, 0")
    for q in range(4): p += [f"v_mov_b32 v{V_L[q]}, 0", f"v_mov_b32 v{M[q]}, 0xff7fffff"]
    p += [f"v_subrev_u32 v{KA[i]}, s{S_RK}, v{V_RDK[i]}" for i in range(2)] + [f"v_subrev_u32 v{LA[i]}, s{S_RV}, v{V_RDV[i]}" for i in range(3)]
    p += [f"s_mov_b32 s{S_PT}, 0", "L_slowloop:"]
    p += [f"s_add_u32 s{S_PT+1}, s{S_PT}, 6144", f"s_add_u32 s{S_PT+2}, s{S_PT}, 12288"]
    for f in range(12):
        s, tb = kfrag(f)
        p.append(f"buffer_load_dwordx4 v[{KF+4*f}:{KF+4*f+3}], v{KA[s&1]}, s[{S_WS}:{S_WS+3}], s{S_PT+tb} offen offset:{(s>>1)*128} sc1")
    for db in range(12):
        a, off = vfrag(db)
        p.append(f"buffer_load_dwordx4 v[{VF+4*db}:{VF+4*db+3}], v{LA[a]}, s[{S_WS}:{S_WS+3}], s{S_PT+2} offen offset:{off} sc1")
    p.append("s_waitcnt vmcnt(12)")
    for f in range(12):
        s, tb = kfrag(f)
        for qb in range(4):
            d = vr(SS + 8 * qb + 4 * tb, 4)
            p.append(f"{MF} {d}, v[{KF+4*f}:{KF+4*f+3}], {Qf(qb,s)}, {'0' if s == 0 else d}")
    p.append("s_nop 9")
    for qb in range(4):
        sb = SS + 8 * qb
        p += [f"v_max3_f32 v{t}, v{sb}, v{sb+1}, v{sb+2}", f"v_max3_f32 v{t}, v{t}, v{sb+3}, v{sb+4}",
              f"v_max3_f32 v{t}, v{t}, v{sb+5}, v{sb+6}", f"v_max3_f32 v{t}, v{t}, v{sb+7}, v{M[qb]}"]
        p += xlane("v_max_f32", t)
        p += [f"v_sub_f32 v{t+1}, v{M[qb]}, v{t}", f"v_exp_f32 v{t+1}, v{t+1}", f"v_mov_b32 v{M[qb]}, v{t}"]
        p += [f"ds_bpermute_b32 v{AL+i}, v{BP}, v{t+1} offset:{4*i}" for i in range(4)]
        for i in range(8): p.append(f"v_sub_f32 v{sb+i}, v{sb+i}, v{t}")
        for i in range(8): p.append(f"v_exp_f32 v{sb+i}, v{sb+i}")
        p.append(f"v_mul_f32 v{V_L[qb]}, v{V_L[qb]}, v{t+1}")
        for i in range(8): p.append(f"v_add_f32 v{V_L[qb]}, v{V_L[qb]}, v{sb+i}")
        for i in range(4): p.append(f"v_cvt_pk_bf16_f32 v{PP+4*qb+i}, v{sb+2*i}, v{sb+2*i+1}")
        p.append("s_waitcnt lgkmcnt(0)")
        for i in range(48):
            a = O(qb, 0) + i; tt = t + 2 + (i % 2)
            p += [f"v_accvgpr_read_b32 v{tt}, a{a}", f"v_mul_f32 v{tt}, v{tt}, v{AL+i%4}", f"v_accvgpr_write_b32 a{a}, v{tt}"]
    p += ["s_waitcnt vmcnt(0)", "s_nop 1"]
    for db in range(12):
        for qb in range(4):
            d = ar(O(qb, db), 4)
            p.append(f"{MF} {d}, v[{PP+4*qb}:{PP+4*qb+3}], v[{VF+4*db}:{VF+4*db+3}], {d}")
    p += [f"s_add_u32 s{S_PT}, s{S_PT}, {STAGE}", f"s_cmp_lt_u32 s{S_PT}, {HEADBYTES}", "s_nop 7", "s_cbranch_scc1 L_slowloop"]
    e = slow_epi(); resolve(e)
    return p + fin(e) + ["s_branch L_fin"]

def resolve(seq, check=True):
    vm = []; ds = []; done = 0; tok = set(); where = ""; nm = 0
    for x in seq:
        if isinstance(x, str) and x.startswith("; ----"): where = x; nm = 0
        if isinstance(x, str) and x.startswith("v_mfma"): nm += 1
        if isinstance(x, VM): vm.append(x.tag)
        elif isinstance(x, DS): ds.append(x.tag)
        elif isinstance(x, W):
            for tag in x.tags:
                idx = [i for i, t in enumerate(vm) if t == tag]
                if idx:
                    n = len(vm) - 1 - idx[-1]
                    x.n = n if x.n is None else min(x.n, n)
        elif isinstance(x, LG):
            idx = [i for i, t in enumerate(ds) if t == x.tag]
            assert idx, x.tag
            n = len(ds) - 1 - idx[-1]
            x.n = n if x.n is None else min(x.n, n)
            if idx[-1] >= done:
                x.need = True
                if x.soft: print(f"soft LDS wait needed: {x.tag} n={n} {where} gap {nm}", file=sys.stderr)
            done = max(done, idx[-1] + 1)
        elif isinstance(x, SIG): tok.add(x.name)
        elif isinstance(x, CHK):
            assert x.name in tok or not OPT["prod"], f"token {x.name} missing {where} gap {nm}"
            tok.discard(x.name)
        else:
            assert not x.startswith("ds_") or "lgkmcnt(0)" in " ".join(y for y in seq[seq.index(x):seq.index(x)+3] if isinstance(y, str)), x
            if "lgkmcnt(0)" in x: done = len(ds)
def fin(seq):
    out = []
    for x in seq:
        if isinstance(x, W):
            if not OPT["prod"] and x.n is None: continue
            assert x.n is not None, x.tags
            out.append(f"s_waitcnt vmcnt({min(x.n, 63)})")
        elif isinstance(x, LG):
            if x.need:
                out.append(f"s_waitcnt lgkmcnt({min(x.n, 15)})")
            elif not x.soft: out.append("s_nop 0")
        elif isinstance(x, (VM, DS)): out.append(x.text)
        elif isinstance(x, (SIG, CHK)): pass
        else: out.append(x)
    return out
def srd(s, lo, off_s, size):
    return [f"s_add_u32 s{s}, s{lo}, s{off_s}", f"s_addc_u32 s{s+1}, s{lo+1}, 0", f"s_mov_b32 s{s+2}, {size}", f"s_mov_b32 s{s+3}, 0x20000"]
def sprinkle(code, extra):
    out = []; n = len(code); m = len(extra); j = 0
    for i, x in enumerate(code):
        while j < m and (i + 1) * m > j * n:
            out += extra[j]; j += 1
        if isinstance(x, list): out += x
        else: out.append(x)
    for g in extra[j:]: out += g
    return out

def gen_prologue():
    p = []
    K = f"{NAME}_kernel"
    p += [f"{K}:", "s_load_dwordx16 s[40:55], s[0:1], 0", "s_getpc_b64 s[60:61]", "L_pc:",
          "s_movk_i32 s62, 0x4000", "s_lshl_b32 s63, 1, 17", "v_lshlrev_b32 v31, 6, v0",
          VM("pf", "buffer_load_dword v15, v31, s[60:63], 0 offen"),
          "s_lshr_b32 s24, s2, 8", "s_cbranch_scc1 L_done", "s_load_dwordx4 s[16:19], s[0:1], 64", "v_lshlrev_b32 v30, 4, v0"]
    if OPT["stamp"]:
        p += ["s_memtime s[100:101]", "s_memrealtime s[98:99]"]
    p += ["v_and_b32 v25, 63, v0", "v_lshrrev_b32 v24, 6, v0", "s_movk_i32 s24, 5120",
          "v_mul_u32_u24 v26, 43, v25", f"v_mad_u32_u24 v{V_VLD}, v24, s24, v30", "s_movk_i32 s24, 384", "v_lshrrev_b32 v26, 10, v26",
          "s_and_b32 s22, s2, 7", f"s_mul_i32 s{S_TMP}, s22, {264 if OPT['rot'] else 256}", f"v_mad_u32_u24 v{V_KLD}, v26, s24, v{V_VLD}",
          "s_andn2_b32 s23, s2, 63", f"s_bfe_u32 s{S_QB}, s2, 0x30003", f"s_add_u32 s{S_TMP}, s{S_TMP}, s23", f"s_add_u32 s{S_TMP}, s{S_TMP}, s{S_QB}",
          f"s_lshr_b32 s23, s{S_TMP}, 1", "s_mulk_i32 s23, 384", f"s_mul_i32 s24, s{S_TMP}, {STAGE}", "v_lshl_add_u32 v27, v25, 3, s23",
          "s_addk_i32 s24, 2048", "s_mov_b32 exec_hi, 0xffff"]
    p += ["s_waitcnt lgkmcnt(0)"] + vstamp("kernarg")
    p += [VM("ksc", "global_load_dwordx2 v[32:33], v27, s[46:47]"), VM("ksc", "global_load_dwordx2 v[34:35], v27, s[48:49]"),
          "s_add_u32 s56, s42, s24", "s_addc_u32 s57, s43, 0"]
    for h in range(2):
        p += [VM(("k0" + "ab"[h], j >> 1), f"global_load_dwordx4 v[{64+16*h+4*j}:{67+16*h+4*j}], v{V_KLD}, s[56:57] offset:{1536*j+384*h-2048}{NTKV}") for j in range(4)]
    p += vstamp("iss k") + ["s_add_u32 s58, s44, s24", "s_addc_u32 s59, s45, 0"]
    vl = [VM(("v0" + "ab"[r >> 2], (r >> 1) & 1), f"global_load_dwordx4 v[{96+4*r}:{99+4*r}], v{V_VLD}, s[58:59] offset:{768*r-2048}{NTKV}") for r in range(8)]
    nv = OPT["nv"]
    p += vl[:nv]
    p += [f"v_readfirstlane_b32 s{S_WAVE}, v24", f"s_lshl_b32 s23, s{S_TMP}, 6", f"s_lshr_b32 s{S_HEAD}, s{S_TMP}, 6",
          f"s_lshl4_add_u32 s23, s{S_WAVE}, s23",
          "s_load_dwordx4 s[64:67], s[50:51], s23", "s_load_dwordx4 s[68:71], s[52:53], s23"]
    p += [f"s_lshl_b32 s22, s{S_HEAD}, 10", f"s_add_u32 s22, s22, {FLAG_OFF}", f"s_or_b32 s{S_LEAD}, s{S_QB}, s{S_WAVE}", "s_cbranch_scc1 L_notleader0",
          "s_load_dwordx8 s[72:79], s[18:19], s22 glc", "L_notleader0:"]
    p += ["s_mov_b32 exec_hi, -1"]
    pv = len(p)
    VQD = 232
    p += [f"s_mul_i32 s24, s{S_HEAD}, 786432"] + srd(S_Q, 40, 24, 786432) + srd(S_OUT, 54, 24, 786432)
    p += [f"s_lshl2_add_u32 s24, s{S_QB}, s{S_WAVE}", f"s_mul_i32 s24, s24, {STAGE}",
          f"s_mul_i32 s{S_QL}, s{S_WAVE}, 18432", f"s_add_u32 s{S_QL}, s{S_QL}, {3*STAGE}"]
    p += [f"v_add_u32 v{VQD+b}, {64*b}, v25" for b in range(6)]
    p += [f"v_mul_u32_u24 v{VQD+8+b}, 2731, v{VQD+b}" for b in range(6)]
    p += [f"v_bfe_u32 v{VQD+8+b}, v{VQD+8+b}, 17, 3" for b in range(6)]
    p += [f"v_xor_b32 v{VQD+b}, v{VQD+b}, v{VQD+8+b}" for b in range(6)]
    p += [f"v_lshl_add_u32 v{VQD+b}, v{VQD+b}, 4, s24" for b in range(6)]
    def q_dma(lst):
        l = []
        for i in lst:
            a, b = divmod(i, 6)
            l.append(([f"s_waitcnt vmcnt({OPT['win']})"] if (OPT["win"] and i >= n2) else []) + [f"s_add_u32 m0, s{S_QL}, {(a%3)*6144 + b*1024}", f"s_movk_i32 s24, {a*6144}",
                      VM(("q", a), f"buffer_load_dwordx4 v{VQD+b}, s[{S_Q}:{S_Q+3}], s24 offen{NTQ} lds")])
        return l
    flat = lambda gs: [x for g in gs for x in g]
    n0 = OPT["q0"]; n1 = n0 + OPT["qa"]; n2 = n1 + OPT["qb"]; n3 = n2 + OPT["qc"]
    assert n3 <= 18
    QD = 128
    def kprep(q, s_, z_):
        return [f"v_lshlrev_b32 v{q}, 16, v{s_}", f"v_and_b32 v{q+1}, s{S_MASK}, v{s_}", f"v_lshlrev_b32 v{q+2}, 16, v{z_}", f"v_and_b32 v{q+3}, s{S_MASK}, v{z_}"]
    t0 = [f"s_mov_b32 s{S_MASK}, 0xffff0000", f"s_mov_b32 s{S_CS}, 0x{f32bits(CSCALE):08x}",
          "v_mul_u32_u24 v27, 24, v26", "v_sub_u32 v27, v25, v27",
          f"v_lshlrev_b32 v{V_KTAB}, 4, v27", f"v_add_u32 v{V_KTAB}, {TAB}, v{V_KTAB}",
          "v_mul_u32_u24 v36, 768, v26", f"v_add_u32 v36, v36, v{V_KTAB}",
          W("ksc")] + kprep(QD, 32, 34) + kprep(QD + 4, 33, 35)
    t0 += [f"v_mul_f32 v{QD+4*u+x}, s{S_CS}, v{QD+4*u+x}" for u in range(2) for x in range(2)]
    t0 += [f"v_mul_f32_e64 v{QD+4*u+2+x}, -v{QD+4*u+2+x}, v{QD+4*u+x}" for u in range(2) for x in range(2)]
    t0 += [["s_mov_b32 exec_hi, 0xffff"] + [DS("t0w", f"ds_write_b128 v36, v[{QD+4*i}:{QD+4*i+3}] offset:{384*i}") for i in range(2)] + ["s_mov_b32 exec_hi, -1"]]
    t0 += [DS("t0r", f"ds_read_b128 v[{QD+4*u}:{QD+4*u+3}], v{V_KTAB} offset:{384*u}") for u in range(4)]
    setup0 = [f"v_mov_b32 v{V_T}, 0", f"v_mov_b32 v{V_T+1}, {RING}", DS("cnt", f"ds_write_b32 v{V_T+1}, v{V_T}")]
    setup = ["v_lshrrev_b32 v48, 1, v26", "v_lshlrev_b32 v48, 30, v48",
          "v_lshlrev_b32 v31, 4, v25", "v_mul_u32_u24 v30, 3072, v24", f"v_add_u32 v{V_DMA}, v30, v31",
          "v_lshl_add_u32 v49, v24, 2, v26", "v_mul_u32_u24 v49, 384, v49", "v_lshlrev_b32 v50, 1, v24", "v_xor_b32 v50, v27, v50",
          "v_lshl_add_u32 v49, v50, 4, v49", f"v_or_b32 v{V_KST}, v49, v48", f"v_xor_b32 v{V_KA}, 16, v{V_KST}",
          "v_lshrrev_b32 v49, 5, v25", "v_sub_u32 v49, 1, v49", "v_and_b32 v49, v49, v24", "v_lshlrev_b32 v49, 4, v49",
          f"v_xor_b32 v49, v49, v{V_DMA}", "v_add_u32 v49, 12288, v49", f"v_or_b32 v{V_VST}, v49, v48",
          f"s_mul_i32 s{S_KW}, s{S_QB}, {STAGE}", f"s_add_u32 s{S_KW2}, s{S_KW}, 6144", f"s_mov_b32 s{S_VW}, s{S_KW}",
          f"s_mul_i32 s{S_RET}, s{S_HEAD}, {WSHEAD}"]
    kv_or = [f"v_or_b32 v{V_KLD}, v{V_KLD}, v48", f"v_or_b32 v{V_VLD}, v{V_VLD}, v48"]
    p += setup0 + t0 + setup
    p[pv:] = sprinkle(p[pv:], [["s_mov_b32 exec_hi, 0xffff", x, "s_mov_b32 exec_hi, -1"] for x in vl[nv:]])
    p += vstamp("iss v") + kv_or + flat(q_dma(range(0, n0))) + vstamp("iss q0") + ["s_waitcnt lgkmcnt(0)"]
    p += srd(S_WS, 18, S_RET, HEADBYTES)
    p += srd(S_FLG, 18, 22, 32)
    p += [f"s_mov_b32 s{S_DBG}, s16", f"s_mov_b32 s{S_DBG+1}, s17", f"s_movk_i32 s{S_DBG+2}, 256", f"s_mov_b32 s{S_DBG+3}, s63", f"s_lshl_b32 s{S_HOFF}, s{S_HEAD}, 3"]
    p += [f"s_cmp_lg_u32 s{S_LEAD}, 0", "s_cbranch_scc1 L_notleader", "s_mov_b32 s24, 1"]
    for i in range(8):
        p += [f"s_lshr_b32 s{72+i}, s{72+i}, 8", f"s_min_u32 s{72+i}, s{72+i}, 31", f"s_bitset1_b32 s24, s{72+i}"]
    p += ["s_ff0_i32_b32 s24, s24", "s_lshl_b32 s24, s24, 8", f"v_mov_b32 v{V_POLL}, s24",
          "s_mov_b64 exec, 1", f"buffer_store_dword v{V_POLL}, off, s[{S_DBG}:{S_DBG+3}], s{S_HOFF} sc1", "s_mov_b64 exec, -1",
          "L_notleader:"]
    kc = []
    for h, buf in ((0, 64), (1, 80)):
        for jp in range(2):
            kc += [W(("k0a" if h == 0 else "k0b", jp))] + k_unit(h, buf, 64, jp, 0, QD + 8 * h) + k_unit(h, buf, 64, jp, 1, QD + 8 * h + 4)
    p += sprinkle(kc, q_dma(range(n0, n1))) + vstamp("kcv")
    p += [k_st(j, 64, "st0")[-1] for j in range(4)]
    p += ["s_mov_b32 exec_hi, 0xffff"] + [DS("own", f"ds_write_b128 v{V_KA if j & 1 else V_KST}, v[{64+4*j}:{64+4*j+3}] offset:{(j&1)*768+(j>>1)*6144}") for j in range(4)] + ["s_mov_b32 exec_hi, -1"]
    p += vstamp("kst")
    vc = []
    for u in range(4):
        q = QD + 4 * u
        vc += [f"s_lshl_b32 s57, s{64+u}, 16", f"s_and_b32 s58, s{64+u}, s{S_MASK}", f"v_mov_b32 v{q}, s57", f"v_mov_b32 v{q+1}, s58",
               f"s_lshl_b32 s57, s{68+u}, 16", f"s_and_b32 s58, s{68+u}, s{S_MASK}", f"v_mul_f32_e64 v{q+2}, -s57, v{q}", f"v_mul_f32_e64 v{q+3}, -s58, v{q+1}"]
    vc += [W(("v0a", 0))] + v_unit(96, 0, QD) + [W(("v0a", 1))] + v_unit(96, 1, QD + 4) + v_pack(0, 96, 96, V_INPLACE)
    vc += [W(("v0b", 0))] + v_unit(112, 0, QD + 8) + [W(("v0b", 1))] + v_unit(112, 1, QD + 12) + v_pack(1, 112, 96, V_INPLACE)
    p += sprinkle(vc, q_dma(range(n1, n2))) + vstamp("vcv")
    p += [x for e in range(4) for x in v_st(e, 96, "st0")]
    p += ["s_mov_b32 exec_hi, 0xffff"] + [DS("own", f"ds_write_b128 v{V_VST}, v[{96+4*e}:{96+4*e+3}] offset:{STAGE - 12288 + e*768}") for e in range(4)] + ["s_mov_b32 exec_hi, -1"]
    p += vstamp("vst")
    s2 = [f"s_lshl_b32 s{S_RET}, s{S_QB}, 2", f"v_lshl_add_u32 v{V_FLAG}, v0, 2, s{S_RET}", "v_cmp_lt_u32 vcc, 0, v0", "v_mov_b32 v30, 0x40000000",
          f"s_mov_b32 s{S_BUDGET}, 100000", f"v_cndmask_b32 v{V_FLAG}, v{V_FLAG}, v30, vcc"]
    s2 += [f"s_mul_i32 s{S_RET}, s{S_HEAD}, {HEADBYTES}"] + [srd(S_QK, 42, S_RET, HEADBYTES), srd(S_QV, 44, S_RET, HEADBYTES)]
    s2 += [f"s_and_b32 s{S_PK0}, s{S_TMP}, 63", f"s_mul_i32 s{S_PK0}, s{S_PK0}, {STAGE}", f"s_mov_b32 s{S_PV0}, s{S_PK0}"]
    s2 += [f"s_mul_i32 s{S_DMK}, s{S_WAVE}, 3072", f"s_add_u32 s{S_DMK}, s{S_DMK}, 12288", f"s_add_u32 s{S_DMV}, s{S_DMK}, {STAGE}",
          f"s_add_u32 s{S_RET}, s{S_QB}, 1", f"s_and_b32 s{S_RET}, s{S_RET}, 7", f"s_mul_i32 s{S_GOFFK}, s{S_RET}, {STAGE}", f"s_add_u32 s{S_GOFF}, s{S_GOFFK}, 12288",
          f"s_mov_b32 s{S_RK}, 0", f"s_mov_b32 s{S_RV}, {STAGE}"]
    s2 += ["v_and_b32 v26, 15, v25", "v_lshrrev_b32 v49, 4, v25", "v_bfe_u32 v28, v25, 1, 3",
           "v_xor_b32 v29, v49, v28", "v_mul_u32_u24 v30, 384, v26", f"v_lshl_add_u32 v{V_RDK[0]}, v29, 4, v30",
           f"v_xor_b32 v{V_RDK[1]}, 64, v{V_RDK[0]}"]
    s2 += [f"v_mul_u32_u24 v50, 3072, v49", f"v_add_u32 v50, {STAGE}, v50", "v_and_b32 v51, 1, v49", "v_lshl_add_u32 v51, v26, 1, v51",
           f"v_lshl_add_u32 v{V_RDV[0]}, v51, 4, v50", f"v_xor_b32 v{V_RDV[1]}, 16, v{V_RDV[0]}",
           f"v_lshl_add_u32 v{V_RDV[2]}, v26, 4, v50", f"v_add_u32 v{V_RDV[2]}, 512, v{V_RDV[2]}"]
    s2 += ["v_lshrrev_b32 v29, 1, v49", "v_xor_b32 v29, v29, v28", "v_lshl_add_u32 v31, v29, 4, v30",
           "v_and_b32 v29, 1, v49", "v_lshl_add_u32 v31, v29, 3, v31"]
    s2 += [f"v_xor_b32 v{32+kk}, {32*kk}, v31" for kk in range(4)] + [f"v_add_u32 v{32+kk}, s{S_QL}, v{32+kk}" for kk in range(4)]
    s2 += [f"v_mov_b32 v{V_L[q]}, 0" for q in range(4)]
    qd = [[f"v_mov_b32 v{V_POLL}, 0"] + tag_load()] + q_dma(range(n2, n3))
    p += sprinkle(s2, qd) + vstamp("iss s2")
    pf2 = ["s_mov_b32 s62, L_slow-L_pc", "s_bfe_u32 s24, s2, 0x20003", "s_add_u32 s24, s24, 1", "s_lshl_b32 s24, s24, 14", "v_lshlrev_b32 v30, 6, v0",
           VM("pf", "buffer_load_dword v15, v30, s[60:63], s24 offen")]
    TR = 80
    tl = [f"s_lshl_b32 s24, s{S_WAVE}, 4", f"s_add_u32 s24, s24, s{S_TMP}",
          f"s_and_b32 s58, s24, 63", f"s_add_u32 s24, s24, 8", "s_and_b32 s57, s24, 63", f"s_andn2_b32 s24, s{S_TMP}, 63",
          "s_or_b32 s58, s58, s24", "s_or_b32 s57, s57, s24",
          "v_mov_b32 v37, s58", "v_mov_b32 v38, s57", "v_cmp_lt_u32 vcc, 15, v25",
          "s_lshr_b32 s58, s58, 1", "s_lshr_b32 s57, s57, 1", "s_mulk_i32 s58, 384", "s_mulk_i32 s57, 384",
          "v_cndmask_b32 v37, v37, v38, vcc", "v_lshl_add_u32 v38, v25, 3, s58", "v_lshl_add_u32 v39, v25, 3, s57",
          "v_lshlrev_b32 v37, 6, v37", "v_lshl_add_u32 v37, v26, 2, v37", "s_mov_b32 exec_hi, 0xffff"]
    for x in range(2):
        tl += [VM("tab", f"global_load_dwordx2 v[{TR+4*x+2*i}:{TR+4*x+2*i+1}], v{38+x}, s[{46+2*i}:{47+2*i}]") for i in range(2)]
    tl += ["s_mov_b32 exec_hi, 0"] + [VM("tab", f"global_load_dword v{TR+8+i}, v37, s[{50+2*i}:{51+2*i}]") for i in range(2)] + ["s_mov_b32 exec_hi, -1"]
    tc = [W("tab")]
    for x in range(2):
        for i in range(2): tc += kprep(112 + 8 * x + 4 * i, TR + 4 * x + i, TR + 4 * x + 2 + i)
    tc += kprep(92, TR + 8, TR + 9)
    tc += [f"v_mul_f32 v{112+4*u+x}, s{S_CS}, v{112+4*u+x}" for u in range(4) for x in range(2)]
    tc += [f"v_mul_f32_e64 v{q+2+x}, -v{q+2+x}, v{q+x}" for q in (112, 116, 120, 124, 92) for x in range(2)]
    tc += [f"s_mul_i32 s57, s{S_WAVE}, {2*TS}", "v_add_u32 v36, s57, v36", f"s_add_u32 s57, s57, {TAB}", "v_lshrrev_b32 v37, 4, v25",
           f"v_mul_u32_u24 v37, {TS}, v37", "v_lshl_add_u32 v37, v26, 4, v37", "v_add_u32 v37, s57, v37",
           ]
    tc += [["s_mov_b32 exec_hi, 0xffff"] + [DS("tabw", f"ds_write_b128 v36, v[{112+8*x+4*i}:{115+8*x+4*i}] offset:{TS*x+384*i}") for x in range(2) for i in range(2)] +
           ["s_mov_b32 exec_hi, 0", DS("tabw", "ds_write_b128 v37, v[92:95] offset:1536"), "s_mov_b32 exec_hi, -1"],
           f"v_add_u32 v{V_KTAB}, {TS}, v{V_KTAB}",
           f"s_lshl_b32 s57, s{S_WAVE}, 6", f"s_add_u32 s57, s57, {TAB+TS+1536}", f"v_mov_b32 v{V_VTAB}, s57"]
    KF = 144
    tq = 48
    def q_read(qb):
        l = [W(("q", qb))] + vstamp(f"q{qb}")
        for s in range(6):
            for h in range(2):
                sp = s + 6 * h
                l.append(DS("qr", f"ds_read_b64 {Qf(qb,s,h)}, v{32+(sp&3)} offset:{(qb%3)*6144 + (sp>>2)*128}"))
        return l
    def qk0(qb):
        l = ["s_waitcnt lgkmcnt(0)"]
        for f in sorted(range(12), key=lambda f: kfrag(f)[::-1]):
            s, tb = kfrag(f)
            d = vr(Sq(0, qb, tb), 4)
            l.append(f"{MF} {d}, v[{KF+4*f}:{KF+4*f+3}], {Qf(qb,s)}, {'0' if s == 0 else d}")
        return l
    def sm0(qb):
        a, b = Sq(0, qb, 0), Sq(0, qb, 1)
        l = [f"v_max3_f32 v{tq}, v{a}, v{a+1}, v{a+2}", f"v_max3_f32 v{tq}, v{tq}, v{a+3}, v{b}",
             f"v_max3_f32 v{tq}, v{tq}, v{b+1}, v{b+2}", f"v_max_f32 v{tq}, v{tq}, v{b+3}"] + xlane("v_max_f32", tq)
        l += [f"v_sub_f32 v{NEGM(qb)+i}, 0, v{tq}" for i in range(4)]
        rest = [f"v_sub_f32 v{r+i}, v{r+i}, v{tq}" for r in (a, b) for i in range(4)]
        rest += [f"v_exp_f32 v{r+i}, v{r+i}" for r in (a, b) for i in range(4)]
        rest += [f"v_add_f32 v{V_L[qb]}, v{V_L[qb]}, v{r+i}" for r in (a, b) for i in range(4)]
        rest += [f"v_cvt_pk_bf16_f32 v{a}, v{a}, v{a+1}", f"v_cvt_pk_bf16_f32 v{a+1}, v{a+2}, v{a+3}",
                 f"v_cvt_pk_bf16_f32 v{a+2}, v{b}, v{b+1}", f"v_cvt_pk_bf16_f32 v{a+3}, v{b+2}, v{b+3}"]
        return l, rest
    def step(qb, extra=()):
        l, rest = sm0(qb)
        return qk0(qb) + ["s_nop 7"] + sprinkle(l + rest, extra)
    post = vstamp("pre tag") + [W("tag", "st0")] + vstamp("tag") + tag_check() + first_post() + stamp("posted") + vstamp("posted")
    bar = q_read(0) + ["s_waitcnt lgkmcnt(0)", "s_barrier"] + stamp("barA") + vstamp("barA")
    kf = []
    for f in range(12):
        s, tb = kfrag(f)
        kf.append(DS("k0f", f"ds_read_b128 v[{KF+4*f}:{KF+4*f+3}], v{V_RDK[s&1]} offset:{tb*6144 + (s>>1)*128}"))
    n4 = n3 + OPT["qd"]; n5 = min(24, n4 + OPT["qe"])
    if OPT["ord"] == 0:
        p += bar + kf + step(0, q_dma(range(n3, n4))) + vstamp("qk0") + post
    else:
        p += bar + post + kf + step(0, q_dma(range(n3, n4))) + vstamp("qk0")
    if OPT["tabpos"] == 0: p += tl
    p += q_read(1) + step(1, q_dma(range(n4, n5))) + vstamp("qk1")
    if OPT["tabpos"] == 1: p += tl
    misc = [k_adv(), v_adv()]
    if OPT["pf2"]:
        misc += [f"s_mov_b32 s{S_DBG}, s60", f"s_mov_b32 s{S_DBG+1}, s61", f"s_mov_b32 s{S_DBG+2}, L_slow-L_pc",
              f"s_lshr_b32 s{S_TP}, s2, 3", f"s_mul_i32 s{S_HOFF}, s{S_TP}, 43", f"s_lshr_b32 s{S_HOFF}, s{S_HOFF}, 7",
              f"s_mul_i32 s{S_RET}, s{S_HOFF}, 3", f"s_sub_u32 s{S_TP}, s{S_TP}, s{S_RET}", f"s_lshl_b32 s{S_TP}, s{S_TP}, 10",
              f"s_mul_i32 s{S_HOFF}, s{S_HOFF}, 12288", f"s_add_u32 s{S_HOFF}, s{S_HOFF}, s{S_TP}"]
    p += stamp("at poll") + vstamp("at poll") + [x.replace(f"s[{S_PT}:{S_PT+7}]", "s[72:79]") for x in smem_flags()]
    p += sprinkle(misc, q_dma(range(n5, 24))) + vstamp("iss q")
    if OPT["tabpos"] == 2: p += tl
    p += poll_smem() + stamp("poll ok") + vstamp("poll ok")
    dm = [with_nop(dma_tile(a, b, True)) for a, b in (("k", 1), ("k", 2), ("k", 3), ("v", 1))]
    p += dm[0] + q_read(2) + step(2, dm[1:] + [pf2]) + vstamp("qk2")
    p += sprinkle(tc, [[x] for x in k_ld(0, BX, "ka") + k_ld(1, BY, "kb")]) + vstamp("tc")
    p += q_read(3) + qk0(3)
    p += [W(("dk", 0))] + vstamp("dk0") + ["s_waitcnt lgkmcnt(0)", "s_barrier"] + [frag_read("q", 12 + f) for f in range(NFS)]
    l, fl = sm0(3)
    p += l
    if OPT["stamp"] == 7:
        p += vstamp("loop start") + ["v_writelane_b32 v14, s98, 31", "s_add_u32 s40, s18, 0xfa00000", "s_addc_u32 s41, s19, 0", "s_mov_b32 s42, 1048576", "s_mov_b32 s43, 0x20000",
              "s_lshl_b32 s24, s2, 2", f"s_add_u32 s24, s24, s{S_WAVE}", "s_lshl_b32 s24, s24, 7", f"v_bfe_u32 v15, v{V_DMA}, 4, 6", "v_lshlrev_b32 v15, 2, v15", "s_mov_b64 exec, 0xffffffff",
              VM("stamp", "buffer_store_dword v14, v15, s[40:43], s24 offen"), "s_mov_b64 exec, -1"]
        open(sys.argv[1] + ".stamps", "w").write("\n".join(STAMPS))
    elif OPT["stamp"]:
        p += stamp("loop start") + ["s_memtime s[8:9]"]
    l = dma_tile("v", 2, True) + dma_tile("v", 3, True)
    dl = [l[0:1], l[1:2], l[2:3], l[3:4], l[4:8], l[8:9], l[9:10], l[10:11], l[11:12], l[12:15], l[15:]]
    p.append("s_nop 0")
    for g in range(48, 96):
        F = 2 * (g >> 3)
        if g % 8 == 0: p.append(LG(("f", "q", F + 1)))
        p.append(qk_mfma(0, g))
        cur = []
        if g % 8 == 7 and F + NFS < 24: cur = [frag_read("q", F + NFS), frag_read("q", F + NFS + 1)]
        elif g % 4 == 1 and dl: cur = dl.pop(0)
        while fl and gap_time(cur + [fl[0]]) <= 16: cur.append(fl.pop(0))
        p += cur
    assert not dl and not fl, (dl, fl)
    p += rd_step("q") + [W(("dk", 1)), "s_barrier"] + [frag_read("q", f) for f in range(D)] + [tq_rd("ka0", TQ[0])]
    p += [f"s_mov_b32 s{S_CNT}, 5", LG(("f", "q", 1)), SIG("BZ")]
    return p

def gen_main():
    p = gen_prologue()
    K_ = lambda *j: tuple(("k", x) for x in j)
    V_ = lambda *j: tuple(("v", x) for x in j)
    G = lambda it, t, d, **kw: kstamp(f"p{it}", 3) + gen_iter(it, t, dma=d, name=f"p{it}", peel=True, **kw)
    ST = lambda w, g0=57: [(w, 0, g0), (w, 1, g0 + 8), (w, 2, g0 + 16), (w, 3, 85)]
    A4 = (0, 1, 2, 3)
    p += G(1, [("ldn", "va", A4, 0, 30), ("cv", "k", 0, 40, 30, 95)], [K_(4, 5) + (20, 74)], extra_sm=True, nostep=True)
    p += G(2, [("cv", "k", 40, NK, 0, 54), ("ld", "vb", (0, 1), 34, 50)] + ST("kst"), [K_(6, 7) + (0, 32)])
    p += G(3, [("ld", "vb", (2, 3), 0, 12), ("ld", "ka", A4, 14, 40), ("post", "kst"), ("cv", "v", 0, 32, 0, 95)], [V_(4, 5) + (40, 74)])
    p += G(4, [("cv", "v", 32, 64, 0, 95), ("pollld", 70, 90)], [V_(6, 7) + (0, 66)])
    p += G(5, [("pollchk", 1), ("cv", "v", 64, NV, 0, 54), ("ld", "kb", (0, 1), 36, 50), ("cv", "k", 0, 10, 63, 95)] + ST("vst"), [K_(8, 9) + (7, 34)])
    p += G(6, [("ld", "kb", (2, 3), 0, 12), ("ld", "va", A4, 14, 40), ("post", "vst"), ("cv", "k", 10, 38, 0, 95)], [K_(10, 11) + (40, 74)])
    p += G(7, [("cv", "k", 38, 66, 0, 95), ("pollld", 70, 90)], [K_(12, 13) + (0, 66)])
    p += G(8, [("pollchk", 1), ("cv", "k", 66, NK, 0, 54), ("ld", "vb", (0, 1), 36, 50), ("cv", "v", 0, 10, 63, 95)] + ST("kst"), [V_(8, 9) + (7, 34)])
    p += G(9, [("ld", "vb", (2, 3), 0, 8), ("ld", "ka", A4, 76, 94), ("post", "kst"), ("cv", "v", 10, 38, 0, 95)], [V_(10, 11) + K_(14, 15) + (10, 74)])
    p += G(10, [("cv", "v", 38, 66, 0, 95), ("pollld", 70, 90)], [V_(12, 13) + (0, 66)])
    p += G(11, [("pollchk", 1), ("cv", "v", 66, NV, 0, 54), ("ld", "kb", (0, 1), 36, 50), ("cv", "k", 0, 10, 63, 95)] + ST("vst"), [K_(16, 17) + (7, 34)])
    p += G(12, [("ld", "kb", (2, 3), 0, 12), ("ld", "va", A4, 14, 40), ("post", "vst"), ("cv", "k", 10, 34, 0, 95)], [V_(14, 15) + (40, 74)])
    p += G(13, [("cv", "k", 34, 57, 0, 94), ("pollld", 70, 90)], [K_(18, 19) + (0, 66)], endops=["s_nop 0", "s_branch L_join"])
    JOIN = 6
    p += [".p2align 6", "L_loop:"]
    pro_ = p
    bodyA = []
    for k in range(8):
        if k == JOIN: bodyA.append("L_join:"); jpos = len(bodyA)
        eo = [f"s_sub_u32 s{S_CNT}, s{S_CNT}, 1", f"s_cmp_lg_u32 s{S_CNT}, 0", "s_cbranch_scc1 L_loop"] if k == 7 else ()
        bodyA += kstamp(f"k{k}") + gen_iter(16 + k, steady(k), endops=eo, name=f"k{k}")
    mid = []
    for k in range(4): mid += kstamp(f"m{k}") + gen_iter(48 + k, steady(k, last=True), name=f"mid{k}")
    mid += [f"s_mov_b32 s{S_CNT}, 2", ".p2align 6", "L_loop2:"]
    bodyC = []
    for k in range(4):
        eo = [f"s_sub_u32 s{S_CNT}, s{S_CNT}, 1", f"s_cmp_lg_u32 s{S_CNT}, 0", "s_cbranch_scc1 L_loop2"] if k == 3 else ()
        t = {1: [("pollld", 2, 10)] + ([("pf", 80, 92)] if OPT["pf2"] else []), 2: [("pollchk0", 1), ("dmaw", 8, 74)]}.get(k, [])
        bodyC += gen_iter(52 + k, t, name=f"C{k}", endops=eo)
    LE = (stamp("loop end") + ["s_memtime s[10:11]"]) if OPT["stamp"] not in (0, 7) else []
    t60 = gen_iter(60, name="T60", extra=epi_addr())
    t61 = gen_iter(61, dma=[], name="T61", extra_late=[f"v_add_u32 v{RD2[i]}, {2*STAGE}, v{V_RDV[i]}" for i in range(3)])
    for x in t61:
        if isinstance(x, W): x.n = 0; x.tags = ()
    tailc = LE + t60 + t61 + gen_tail() + ["L_fin:"]
    resolve(pro_ + bodyA[jpos:] + bodyA + bodyA + mid + bodyC + bodyC + tailc)
    P_ = Prog()
    P_.extend(fin(pro_))
    a0 = len(P_.ins); P_.extend(fin(bodyA)); a1 = len(P_.ins)
    P_.extend(fin(mid))
    c0_ = len(P_.ins); P_.extend(fin(bodyC)); c1 = len(P_.ins)
    P_.extend(fin(tailc))
    p = P_
    if OPT["stamp"] and OPT["stamp"] != 7:
        p("s_waitcnt vmcnt(0)")
        p.extend(stamp("end"))
        p("s_memtime s[22:23]")
        p("s_waitcnt lgkmcnt(0)")
        p("s_sub_u32 s22, s22, s100")
        regs = [98] + [SR(i) for i in range(len(STAMPS))]
        p("s_sub_u32 s10, s10, s8")
        regs += [10] * (14 - len(regs)) + [22, S_BUDGET]
        regs = regs[:16]
        for i, s in enumerate(regs): p(f"v_mov_b32 v{64+i}, s{s}")
        p("s_add_u32 s8, s18, 0xfa00000"); p("s_addc_u32 s9, s19, 0"); p("s_mov_b32 s10, 1048576"); p("s_mov_b32 s11, 0x20000")
        p("s_lshl_b32 s24, s2, 2"); p(f"s_add_u32 s24, s24, s{S_WAVE}"); p("s_lshl_b32 s24, s24, 6")
        p("v_mov_b32 v32, s24")
        p(f"v_cmp_eq_u32 vcc, 0, v{GA[0]}")
        p("s_and_saveexec_b64 s[20:21], vcc")
        for i in range(4):
            p(f"buffer_store_dwordx4 v[{64+4*i}:{67+4*i}], v32, s[8:11], 0 offen offset:{16*i}")
        open(sys.argv[1] + ".stamps", "w").write("\n".join(STAMPS))
    p("L_done:")
    p("s_endpgm")
    main_end0 = len(p.ins)
    for ps in POLLSITES + ["P"]: p.extend(poll_slow(ps))
    p.extend(tag_slow())
    main_end = len(p.ins)
    p.extend(gen_slow())
    slow_end = len(p.ins)
    ji = [i for i, x in enumerate(p.ins) if x.text == "L_join:"][0]
    lin = p.ins[:a0] + p.ins[ji:a1] + p.ins[a0:c1] + p.ins[c0_:main_end0]
    sl = [i for i, x in enumerate(p.ins) if x.text == "L_slowloop:"][0]
    ei = [i for i, x in enumerate(p.ins) if x.text == "L_fin:"][0]
    bi = [i for i, x in enumerate(p.ins) if x.text == "s_cbranch_scc1 L_slowloop"][0]
    probs = check_hazards(lin, "main") + check_hazards(p.ins[main_end:bi+1] + p.ins[sl:slow_end] + p.ins[ei:ei+60], "slow") + check_hazards(p.ins[main_end0:main_end], "aux")
    for x in probs: print(x, file=sys.stderr)
    return p

def kd(name, vgpr, sgpr, accum):
    return f""".amdhsa_kernel {name}
  .amdhsa_next_free_vgpr {vgpr}
  .amdhsa_next_free_sgpr {sgpr}
  .amdhsa_accum_offset {accum}
  .amdhsa_group_segment_fixed_size 0
  .amdhsa_kernarg_size 80
  .amdhsa_user_sgpr_count 2
  .amdhsa_user_sgpr_kernarg_segment_ptr 1
  .amdhsa_system_sgpr_workgroup_id_x 1
.end_amdhsa_kernel
"""
out = HEADER
out += f"; @launch grid=(256,1,1) block=(256,1,1) lds={LDS_BYTES}\n"
out += '.amdgcn_target "amdgcn-amd-amdhsa--gfx950"\n.text\n'
out += f".globl {NAME}_kernel\n.p2align 8\n.type {NAME}_kernel,@function\n" + gen_main().text()
out += '.section .rodata,"a"\n.p2align 6\n' + kd(NAME + "_kernel", 512, 102, 256)
open(sys.argv[1], "w").write(out)
```

```python
import sys, math
from asmlib import *

NAME = "standalone__kv_cache_quant_int4_int2_kv_with_per_channel_or_per_token_scales__prompt"
OPT = dict(stamp=0, prod=1, vmgap=4, sb=6, sa=6, pl=10, ahead=4, thr=64, tden=44, ab=0, pf2=1,
           q0=0, qa=4, qb=4, qc=4, qd=4, qe=4, ord=1, kst0=57, rot=1, win=8, nv=8, sch=1, sd=8, pc=29, plate=0, su=1, pa=58, pb=29, fin=1, wins=4, qf=2)
for a in sys.argv[2:]:
    k, v = a.split("="); assert k in OPT, k; OPT[k] = int(v)
NS = 6; D = 4
STAGE = 24576
HEADBYTES = 64 * STAGE
RING = NS * STAGE
TS = 1792
TAB = RING + 128
LDS_BYTES = TAB + 8 * TS
CSCALE = (192.0 ** -0.5) * math.log2(math.e)
HEADER = open("cdna_kernels/" + NAME + ".s.ref").read().split("; Override launch geometry")[0]
MF = "v_mfma_f32_16x16x32_bf16"
NG = 96

V_FV = 55; V_RDV = [1, 21, 22]; V_RDK = [2, 3]; V_DMA = 4; V_L = [5, 6, 7, 8]
V_KLD = 9; V_KTAB = 10; V_KST = 11; V_VLD = 12; V_FLAG = 13
V_T = 16; NTP = 2
V_VST = 20; V_VTAB = 23
V_FR = 24; NFS = 6
TQ = [48, 56, 60]; V_VO = 52; BX = 224; BY = 240; BZ = 144
V_POLL = V_VO; V_KA = V_VO + 2
UNIT = [64, 80, 160, 176]; HI = [96, 112]
def Sq(t, qb, tb): return (UNIT[t % 4] if tb == 0 else HI[t % 2]) + 4 * qb
def P(t, qb): return UNIT[t % 4] + 4 * qb
def NEGM(qb): return 128 + 4 * qb
def O(qb, db): return (qb * 12 + db) * 4
def Qf(qb, s, half=None):
    i = qb * 6 + s
    base, f = (192 + 4 * i, ar) if i < 16 else (192 + 4 * (i - 16), vr)
    return f(base, 4) if half is None else f(base + 2 * half, 2)
def FR(f): return vr(V_FR + 4 * (f % NFS), 4)

S_RDELTA = 3; S_WS = 4; S_Q = 8; S_OUT = 12; S_FLG = 20
S_WAVE = 25; S_DMK = 26; S_GOFF = 27; S_RK = 28; S_TMP = 29; S_RV = 30; S_CNT = 31; S_GOFFK = 32
S_PK0 = 33; S_PK1 = 34; S_PV0 = 35; S_PV1 = 36; S_KW = 37; S_CS = 38; S_RET = 39; S_KW2 = 80; S_VW = 81; S_QL = 82; S_LEAD = 83
S_PT = 48; S_DMV = 56; S_TK = 57; S_TV = 58; S_TP = 59
S_QK = 64; S_QV = 68; S_DBG = 88
S_NEED = 92; S_HOFF = 93; S_HEAD = 94; S_QB = 95; S_BUDGET = 96; S_MASK = 97
FLAG_OFF = 64 << 20
WSHEAD = HEADBYTES + 8 * STAGE
SC1 = " sc1"; NTKV = " nt"; NTQ = " nt"; STF = " sc1"; OF = " sc0 sc1"

STAMPS = []
def SR(i): return ([40, 42, 44, 46, 0, 72, 74, 76, 78, 84, 86, 16, 98, 100] if OPT['stamp'] in (3, 6) else [16, 40, 42, 44, 84, 86, 0])[i]
def kstamp(name, mode=6):
    if OPT["stamp"] != mode: return []
    i = len(STAMPS); STAMPS.append(name)
    return [f"s_memtime s[{SR(i)}:{SR(i)+1}]"]
def vstamp(name):
    if OPT["stamp"] != 7: return []
    i = len(STAMPS); STAMPS.append(name)
    return ["s_memrealtime s[100:101]", "s_waitcnt lgkmcnt(0)", f"v_writelane_b32 v14, s100, {i}"]
def stamp(name):
    if OPT["stamp"] != 1: return []
    i = len(STAMPS); STAMPS.append(name)
    return [f"s_memrealtime s[{SR(i)}:{SR(i)+1}]"]

class W:
    def __init__(self, *tags): self.tags = tags; self.n = None
class VM:
    def __init__(self, tag, text): self.tag = tag; self.text = text
class LG:
    def __init__(self, tag, soft=False): self.tag = tag; self.n = None; self.need = False; self.soft = soft
class DS:
    def __init__(self, tag, text): self.tag = tag; self.text = text
class SIG:
    def __init__(self, name): self.name = name
class CHK:
    def __init__(self, name): self.name = name

def softmax_part(t, half):
    flat = []; prev = None
    for gp in range(8):
        qb = 2 * half + gp // 4; pi = gp % 4
        t0 = V_T + 2 * (gp % NTP); t1 = t0 + 1
        src = Sq(t, qb, pi >> 1) + 2 * (pi & 1)
        E = [f"v_exp_f32 v{t0}, v{src}", f"v_exp_f32 v{t1}, v{src+1}"]
        A = [f"v_add_f32 v{V_L[qb]}, v{V_L[qb]}, v{t0}", f"v_add_f32 v{V_L[qb]}, v{V_L[qb]}, v{t1}"]
        C = [f"v_cvt_pk_bf16_f32 v{P(t,qb)+pi}, v{t0}, v{t1}"]
        if OPT["ab"] == 1: A = []
        if OPT["ab"] == 2: A = [f"v_pk_add_f32 v[6:7], v[6:7], v[{t0}:{t1}]"]
        if OPT["ab"] == 3: A = []; C = C + [f"v_dot2_f32_bf16 v{V_L[qb]}, v{P(t,qb)+pi}, v14, v{V_L[qb]}"]
        if OPT["ab"] == 4: A = []; C = C + [f"v_dot2c_f32_bf16 v{V_L[qb]}, v{P(t,qb)+pi}, v14"]
        flat += E if prev is None else [E[0]] + prev[0] + [E[1]] + prev[1]
        prev = (A, C)
    return flat + prev[0] + prev[1]

def kfrag(g):
    return 2 * (g >> 2) + (g & 1), (g >> 1) & 1
def vfrag(db):
    return (db >> 2, (db & 3) * 768)
def frag_read(kind, f, regs=None, tag=None):
    if kind == "q":
        s, tb = kfrag(f % 12)
        return DS(tag or ("f", kind, f), f"ds_read_b128 {FR(f)}, v{V_RDK[s&1]} offset:{(f//12)*12288 + tb*6144 + (s>>1)*128}")
    a, off = vfrag(f >> 1)
    return DS(tag or ("f", kind, f), f"ds_read_b128 {FR(f)}, v{(regs or V_RDV)[a]} offset:{(f&1)*12288 + off}")

def dma_tile(part, pos, peel=False):
    dm, go, tmp = (S_DMK, S_GOFFK, S_TK) if part == "k" else (S_DMV, S_GOFF, S_TV)
    l = [f"s_mov_b32 m0, s{dm}"]
    for j in range(3):
        l.append(VM(("d" + part, (pos >> 1) % 4), f"buffer_load_dwordx4 v{V_DMA}, s[{S_WS}:{S_WS+3}], s{go} offen offset:{j*1024}{SC1} lds"))
    if peel and pos < 7:
        l += [f"s_add_u32 s{go}, s{go}, {STAGE}", f"s_sub_u32 s{tmp}, s{go}, {8*STAGE}", f"s_min_u32 s{go}, s{go}, s{tmp}"]
    elif peel and pos == 7:
        l += [f"s_mov_b32 s{go}, {8*STAGE + (0 if part == 'k' else 12288)}"]
    else:
        l += [f"s_add_u32 s{go}, s{go}, {STAGE}"]
    if pos % 2 == 0: l += [f"s_add_u32 s{dm}, s{dm}, 12288"]
    else: l += [f"s_add_u32 s{dm}, s{dm}, {2*STAGE - 12288}", f"s_sub_u32 s{tmp}, s{dm}, {RING}", f"s_min_u32 s{dm}, s{dm}, s{tmp}"]
    return l
def with_nop(l):
    out = []
    real = [i for i, x in enumerate(l) if not isinstance(x, (SIG, CHK))]
    nxt = {a: b for a, b in zip(real, real[1:])}
    for i, x in enumerate(l):
        out.append(x)
        if isinstance(x, str) and " m0," in x and i in nxt and isinstance(l[nxt[i]], VM): out.append("s_nop 0")
    return out
def rd_step(kind):
    cur, regs = (S_RK, V_RDK) if kind == "q" else (S_RV, V_RDV)
    return [f"s_add_u32 s{S_TMP}, s{cur}, {2*STAGE}", f"s_sub_u32 s{S_RDELTA}, s{S_TMP}, {RING}",
            f"s_min_u32 s{S_TMP}, s{S_TMP}, s{S_RDELTA}", f"s_sub_u32 s{S_RDELTA}, s{S_TMP}, s{cur}", f"s_mov_b32 s{cur}, s{S_TMP}"] + \
           [f"v_add_u32 v{r}, s{S_RDELTA}, v{r}" for r in regs]

def k_ld(h, buf, tag, js=range(4)):
    return [VM((tag, j >> 1), f"buffer_load_dwordx4 v[{buf+4*j}:{buf+4*j+3}], v{V_KLD}, s[{S_QK}:{S_QK+3}], s{S_PK0 if j < 2 else S_PK1} offen offset:{(j&1)*1536+384*h}{NTKV}")
            for j in js]
def v_ld(h, buf, tag, js=range(4)):
    return [VM((tag, r >> 1), f"buffer_load_dwordx4 v[{buf+4*r}:{buf+4*r+3}], v{V_VLD}, s[{S_QV}:{S_QV+3}], s{S_PV0 if h == 0 else S_PV1} offen offset:{r*768}{NTKV}")
            for r in js]
def k_unit(h, buf, out, jp, i, q):
    ab = [(buf + 4 * j + 2 * i, buf + 4 * j + 2 * i + 1) for j in (2 * jp, 2 * jp + 1)]
    return [f"v_cvt_f32_i32 v{r}, v{r}" for a, b in ab for r in (a, b)] + \
           [f"v_fma_f32 v{r}, v{r}, v{q+x}, v{q+2+x}" for a, b in ab for x, r in enumerate((a, b))] + \
           [f"v_cvt_pk_bf16_f32 v{out+4*j+2*h+i}, v{a}, v{b}" for j, (a, b) in zip((2 * jp, 2 * jp + 1), ab)]
def v_unit(buf, i, q):
    l = []
    for e0 in (0, 2):
        ab = [(buf + 8 * i + e, buf + 8 * i + 4 + e) for e in (e0, e0 + 1)]
        l += [f"v_cvt_f32_i32 v{r}, v{r}" for a, b in ab for r in (a, b)]
        l += [f"v_fma_f32 v{r}, v{r}, v{q+x}, v{q+2+x}" for a, b in ab for x, r in enumerate((a, b))]
    return l
def v_pack(h, buf, out, lst):
    return [f"v_cvt_pk_bf16_f32 v{out+4*e+2*h+i}, v{buf+8*i+e}, v{buf+8*i+4+e}" for e, i in lst]
V_INPLACE = [(0, 0), (1, 0), (0, 1), (1, 1), (2, 0), (2, 1), (3, 0), (3, 1)]
def tq_rd(name, q):
    if name[0] == "k": va, off = V_KTAB, "ab".index(name[1]) * 768 + int(name[2]) * 384
    else: va, off = V_VTAB, ("ab".index(name[1]) * 2 + int(name[2])) * 16
    return DS(("tq", name), f"ds_read_b128 v[{q}:{q+3}], v{va} offset:{off}")
def ins(l, i, x): return l[:i] + x + l[i:]
def chain_k():
    T0, T1, T2 = TQ
    c = [tq_rd("ka1", T1), W(("ka", 0)), LG(("tq", "ka0"), True)] + ins(k_unit(0, BX, BX, 0, 0, T0), 3, [tq_rd("kb0", T2)])
    c += [LG(("tq", "ka1"), True)] + k_unit(0, BX, BX, 0, 1, T1) + [W(("ka", 1))] + k_unit(0, BX, BX, 1, 0, T0) + k_unit(0, BX, BX, 1, 1, T1)
    c += [tq_rd("kb1", T0), W(("kb", 0)), LG(("tq", "kb0"), True)] + ins(k_unit(1, BY, BX, 0, 0, T2), 3, [tq_rd("va0", T1), f"v_add_u32 v{V_KTAB}, {TS}, v{V_KTAB}"])
    c += [LG(("tq", "kb1"), True)] + k_unit(1, BY, BX, 0, 1, T0) + [SIG("BY0"), W(("kb", 1))] + k_unit(1, BY, BX, 1, 0, T2) + k_unit(1, BY, BX, 1, 1, T0)
    return c + [SIG("BY1"), SIG("Kdone")]
def chain_v(last=False):
    T0, T1, T2 = TQ
    c = [tq_rd("va1", T2), W(("va", 0)), LG(("tq", "va0"), True)] + ins(v_unit(BZ, 0, T1), 3, [tq_rd("vb0", T0)])
    c += [tq_rd("vb1", T1), W(("va", 1)), LG(("tq", "va1"), True)] + ins(v_unit(BZ, 1, T2), 3, [f"v_add_u32 v{V_VTAB}, {TS}, v{V_VTAB}"]) + v_pack(0, BZ, BZ, V_INPLACE)
    c += [W(("vb", 0)), LG(("tq", "vb0"), True)] + v_unit(BY, 0, T0) + ([] if last else [tq_rd("ka0", T0)]) + v_pack(1, BY, BZ, [(e, 0) for e in range(4)]) + [SIG("BY0")]
    c += [W(("vb", 1)), LG(("tq", "vb1"), True)] + v_unit(BY, 1, T1) + v_pack(1, BY, BZ, [(e, 1) for e in range(4)])
    return c + [SIG("BY1"), SIG("Vdone")]
def cut(c, n0, n1):
    out = []; n = 0; pend = []
    for x in c:
        if isinstance(x, str) and x.startswith("v_"):
            if n0 <= n < n1: out += pend + [x]
            pend = []; n += 1
        elif isinstance(x, SIG):
            if n0 <= n - 1 < n1: out.append(x)
        else: pend.append(x)
    assert not pend
    return out
def k_st(j, out, tag="kst"):
    return [VM(tag, f"buffer_store_dwordx4 v[{out+4*j}:{out+4*j+3}], v{V_KA if j & 1 else V_KST}, s[{S_WS}:{S_WS+3}], s{S_KW if j < 2 else S_KW2} offen offset:{(j&1)*768}{STF}")]
def v_st(e, out, tag="vst"):
    return [VM(tag, f"buffer_store_dwordx4 v[{out+4*e}:{out+4*e+3}], v{V_VST}, s[{S_WS}:{S_WS+3}], s{S_VW} offen offset:{e*768}{STF}")]
def adv(r0, r1, w):
    return [f"s_add_u32 s{r0}, s{r0}, {8*STAGE}", f"s_sub_u32 s{r1}, s{r0}, {HEADBYTES}", f"s_min_u32 s{r0}, s{r0}, s{r1}", f"s_add_u32 s{r1}, s{r0}, 3072"] + \
           [f"s_add_u32 s{x}, s{x}, {8*STAGE}" for x in w]
def k_adv(): return adv(S_PK0, S_PK1, (S_KW, S_KW2))
def v_adv(): return adv(S_PV0, S_PV1, (S_VW,))
HT = {"ka": (k_ld, 0, BX), "kb": (k_ld, 1, BY), "va": (v_ld, 0, BZ), "vb": (v_ld, 1, BY)}
def flag_post():
    return [f"v_add_u32 v{V_FV}, 1, v{V_FV}",
            VM("flag", f"buffer_store_dword v{V_FV}, v{V_FLAG}, s[{S_FLG}:{S_FLG+3}], 0 offen sc1")]
def poll_addr():
    return [f"v_bfe_u32 v{V_POLL+1}, v{V_DMA}, 4, 6", f"v_lshlrev_b32 v{V_POLL+1}, 2, v{V_POLL+1}"]
def poll_load():
    return poll_addr() + [VM("poll", f"buffer_load_dword v{V_POLL}, v{V_POLL+1}, s[{S_FLG}:{S_FLG+3}], 0 offen sc1")]
def poll_test():
    return [f"v_subrev_u32 v{V_POLL}, s{S_NEED}, v{V_POLL}", f"v_cmp_lt_u32 vcc, 15, v{V_POLL}", "s_nop 0", f"s_and_b32 s{S_TP}, vcc_lo, 0xff"]
def smem_flags():
    return [f"s_buffer_load_dwordx8 s[{S_PT}:{S_PT+7}], s[{S_FLG}:{S_FLG+3}], 0 glc"]
def smem_test():
    l = smem_flags() + ["s_waitcnt lgkmcnt(0)"]
    for i in range(8): l.append(f"s_sub_u32 s{S_PT+i}, s{S_PT+i}, s{S_NEED}")
    for i in range(1, 8): l.append(f"s_max_u32 s{S_PT}, s{S_PT}, s{S_PT+i}")
    return l + [f"s_cmp_lt_u32 s{S_PT}, 16"]
def poll_slow(site):
    l = [f"L_pollslow{site}:"]
    if OPT["stamp"] and site != "P": l += [f"s_add_u32 s{S_LEAD}, s{S_LEAD}, {1 << (3 * site)}"]
    if site != "P":
        l += [f"s_mov_b32 s{S_TP}, 200", f"L_pollsm{site}:"] + smem_test() + [f"s_cbranch_scc1 L_pollok{site}",
              f"s_sub_u32 s{S_TP}, s{S_TP}, 1", f"s_cbranch_scc1 L_pollvec{site}", "s_sleep 1", f"s_branch L_pollsm{site}"]
    l += [f"L_pollvec{site}:",
            f"s_sub_u32 s{S_BUDGET}, s{S_BUDGET}, 1",
            f"s_cbranch_scc1 L_pollgiveup{site}",
            "s_sleep 2",
            f"buffer_load_dword v{V_POLL}, v{V_POLL+1}, s[{S_FLG}:{S_FLG+3}], 0 offen sc1",
            "s_waitcnt vmcnt(0)"] + poll_test() + [
            f"s_cbranch_scc1 L_pollvec{site}",
            f"s_branch L_pollok{site}",
            f"L_pollgiveup{site}:",
            f"s_mov_b32 s{S_BUDGET}, 0",
            f"s_branch L_pollok{site}"]
    return l
def tag_load():
    return [VM("tag", f"buffer_load_dword v{V_POLL}, off, s[{S_DBG}:{S_DBG+3}], s{S_HOFF} sc1")]
def tag_check():
    return [f"v_readfirstlane_b32 s{S_NEED}, v{V_POLL}", f"s_mov_b32 s{S_RET}, 100",
            "L_tagretry:", f"s_cmp_lg_u32 s{S_NEED}, 0", "s_cbranch_scc1 L_tagok",
            f"s_sub_u32 s{S_RET}, s{S_RET}, 1", "s_cbranch_scc1 L_tagslow", "s_sleep 8",
            f"s_buffer_load_dword s{S_NEED}, s[{S_DBG}:{S_DBG+3}], s{S_HOFF} glc", "s_waitcnt lgkmcnt(0)", "s_branch L_tagretry",
            "L_tagok:", f"s_add_u32 s{S_NEED}, s{S_NEED}, 1", f"v_mov_b32 v{V_FV}, s{S_NEED}"]
def first_post():
    return ["s_mov_b64 exec, 1", f"v_mov_b32 v{V_T}, 1", f"v_mov_b32 v{V_T+1}, {RING}",
            f"ds_add_rtn_u32 v{V_T}, v{V_T+1}, v{V_T}", "s_waitcnt lgkmcnt(0)",
            f"v_readfirstlane_b32 s24, v{V_T}", "s_nop 0", "s_cmp_lg_u32 s24, 3", "s_cbranch_scc1 L_nopost",
            f"s_lshl_b32 s{S_RET}, s{S_QB}, 2",
            f"buffer_store_dword v{V_FV}, off, s[{S_FLG}:{S_FLG+3}], s{S_RET} sc1",
            "L_nopost:", "s_mov_b64 exec, -1"]
def poll_smem():
    l = poll_addr() + [f"s_mov_b32 s{S_RET}, 200", "s_waitcnt lgkmcnt(0)"]
    l += [f"s_sub_u32 s{72+i}, s{72+i}, s{S_NEED}" for i in range(8)] + [f"s_max_u32 s72, s72, s{72+i}" for i in range(1, 8)]
    l += ["s_cmp_lt_u32 s72, 16", "s_cbranch_scc1 L_pollokP", "L_pollretry:"] + smem_test()
    l += ["s_cbranch_scc1 L_pollokP",
          f"s_sub_u32 s{S_RET}, s{S_RET}, 1", "s_cbranch_scc1 L_pollslowP", "s_sleep 1", "s_branch L_pollretry",
          "L_pollokP:", f"s_add_u32 s{S_NEED}, s{S_NEED}, 1"]
    return l
def tag_slow():
    return ["L_tagslow:",
            f"s_sub_u32 s{S_BUDGET}, s{S_BUDGET}, 1",
            "s_cbranch_scc1 L_taggiveup",
            "s_sleep 2",
            f"buffer_load_dword v{V_POLL}, off, s[{S_DBG}:{S_DBG+3}], s{S_HOFF} sc1",
            "s_waitcnt vmcnt(0)",
            f"v_readfirstlane_b32 s{S_NEED}, v{V_POLL}", "s_nop 0", f"s_cmp_eq_u32 s{S_NEED}, 0", "s_cbranch_scc1 L_tagslow",
            "s_branch L_tagok",
            "L_taggiveup:",
            f"s_mov_b32 s{S_BUDGET}, 0",
            "s_branch L_tagok"]

def text_of(x):
    if isinstance(x, (W, LG)): return "s_waitcnt"
    if isinstance(x, (VM, DS)): return x.text
    return x
def kind_of(x):
    if isinstance(x, (SIG, CHK)) or (isinstance(x, LG) and x.soft): return "label"
    t = text_of(x)
    if t.endswith(":"): return "label"
    if t.startswith("v_"): return "valu"
    if t.startswith("ds_"): return "ds"
    if t.startswith("buffer_store"): return "store"
    if t.startswith("buffer_"): return "load"
    return "salu"
def cost_of(x):
    k = kind_of(x)
    if k == "label": return 0
    t = text_of(x)
    if k == "store": return 20 if "x4" in t else (12 if "x2" in t else 8)
    if k == "load": return 8
    if t.startswith("ds_write_b128"): return 12
    if t.startswith("v_exp"): return 8
    if t.startswith("s_nop"): return 4 * (int(t.split()[1]) + 1)
    if t.startswith("s_cbranch") or t.startswith("s_branch"): return 12
    if t.startswith("s_barrier"): return 8
    return 4
def gap_time(ops):
    t = 4; prev = None
    for o in ops:
        k = kind_of(o)
        if k == "label": continue
        if k == "salu": t += cost_of(o)
        else: t = max(t, 8) + cost_of(o) + (8 if (k != "valu" and prev == "valu") else 0)
        prev = k
    return t

class Stream:
    def __init__(self, ops, first, last, maxper=99):
        self.ops = list(ops); self.first = first; self.last = last; self.maxper = maxper
        self.total = sum(cost_of(o) for o in self.ops); self.done = 0; self.i = 0

def pack(A, B, C, T, streams, novm=(), nosalu=(), ng=NG):
    out = []; over = 0; lastvm = -99
    pend = {o.name for st in streams for o in st.ops if isinstance(o, SIG)} | {o.name for l in B for o in l if isinstance(o, SIG)}
    placed = set()
    for g in range(ng):
        pend -= placed
        placed |= {o.name for o in B[g] if isinstance(o, SIG)}
        a, b, c, tl = list(A[g]), list(B[g]), list(C[g]), list(T[g])
        cnt = {}; inC = set(); blocked = set()
        while True:
            best = None; bl = None; bsec = None
            for st in streams:
                if st.i >= len(st.ops) or g < st.first: continue
                force = g >= st.last
                o = st.ops[st.i]; k = kind_of(o); cst = cost_of(o)
                if isinstance(o, CHK) and o.name in pend:
                    assert not force, o.name
                    continue
                if k == "label":
                    if isinstance(o, SIG): placed.add(o.name)
                    best = st; bsec = "c" if (id(st) in inC or isinstance(o, SIG)) else "b"; bl = (True, True, 1e9); break
                if (cnt.get(id(st), 0) >= st.maxper or id(st) in blocked) and not force: continue
                if k == "salu" and g in nosalu:
                    assert not force
                    continue
                if k in ("load", "store") and (g in novm or g - lastvm < OPT["vmgap"]) and not force: continue
                if k == "ds" and any(kind_of(x) in ("ds", "load", "store") for x in b) and not force: continue
                if k in ("load", "store", "ds"):
                    sec = "b" if id(st) not in inC and id(st) not in blocked else "c"
                    if sec == "c" and not force: continue
                elif k == "salu" and not a and cnt.get(id(st), 0) == 0 and not any(x is not None for x in b if isinstance(x, (LG, CHK))):
                    sec = "a"
                else: sec = "c"
                tgt = st.total * (g - st.first + 1) / (st.last - st.first + 1)
                lag = tgt - st.done
                if not force:
                    if lag < cst / 2 - OPT["ahead"] and cst: continue
                    trial = (a + [o] if sec == "a" else a) + (b + [o] if sec == "b" else b) + (c + [o] if sec == "c" else c) + tl
                    if gap_time(trial) > 16:
                        if not (lag > 24 and gap_time(trial) <= 20): continue
                        if g % 2 == 0: continue
                key = (force, k in ("load", "store"), lag / max(1, (st.last - g + 1)) ** 0.5)
                if best is None or key > bl: best = st; bl = key; bsec = sec
            if best is None: break
            o = best.ops[best.i]
            {"a": a, "b": b, "c": c}[bsec].append(o)
            if bsec == "c": inC.add(id(best))
            if kind_of(o) != "label":
                if " m0," in text_of(o): blocked.add(id(best))
                if kind_of(o) in ("load", "store"): lastvm = g
                cnt[id(best)] = cnt.get(id(best), 0) + 1
            best.i += 1; best.done += cost_of(o)
        ops = a + b + c + tl
        tt = gap_time(ops)
        if tt > 16: over += tt - 16
        out.append(ops)
    for st in streams: assert st.i == len(st.ops), [text_of(o) for o in st.ops[st.i:]]
    return out, over

NK = 81; NV = 81
SCHED = {
    0: ((0, 6, 23, 40, 57, 72, NK), (0, 12, 40, 66, NV)),
    1: ((0, 0, 19, 38, 57, 76, NK), (0, 6, 37, 69, NV)),
    2: ((0, 0, 20, 40, 60, 80, NK), (0, 6, 38, 70, NV)),
    3: ((0, 0, 20, 40, 61, NK, NK), (0, 8, 38, 70, NV)),
}
def steady(k, last=False):
    s0 = OPT["kst0"]; sd = OPT["sd"]; kc, vc = SCHED[OPT["sch"]]
    gs = [s0, s0 + sd, s0 + 2 * sd, s0 + 3 * sd]
    gs = [g + 4 if GBAR - 2 <= g <= GBAR + 2 else g for g in gs]
    st = lambda w: [(w, j, g) for j, g in enumerate(gs)] + [("dmaw", 0, s0 - OPT["sb"] - 1)]
    pc = OPT["pc"]
    if OPT["plate"]:
        pl2, pl5 = [("pollld", 92, 94)], [("pollld", 84, 94)]
    else:
        pl2, pl5 = [("pollld", 0, 8)], [("pollld", 2, 10)]
    k0s = kc[5] if OPT["sch"] == 3 else None
    t = {
        0: [("post", "kst"), ("cv", "v", vc[1], vc[2], 0, 95), ("ld", "vb", (2, 3), 0, 14), ("ld", "ka", (0, 1, 2, 3), 16, 50), ("dmaw", 20, 74)],
        1: [("cv", "v", vc[2], vc[3], 0, 95), ("ld", "kb", (0, 1), 76, 94)],
        2: [("cv", "v", vc[3], NV, 0, s0 - 3), ("cv", "k", kc[0], kc[1], s0 + 6, 95)] + pl2 + st("vst"),
        3: [("post", "vst"), ("pollchk", pc), ("ld", "kb", (2, 3), 0, 20), ("cv", "k", kc[1], kc[2], 0, 95), ("dmaw", pc + 7, 76)],
        4: [("cv", "k", kc[2], kc[3], 0, 95), ("ld", "va", (0, 1, 2, 3), 0, 44)],
        5: [("cv", "k", kc[3], kc[4], 0, 95)] + pl5 + ([("pf", 60, 76)] if OPT["pf2"] else []),
        6: [("cv", "k", kc[4], kc[5], 0, 95), ("pollchk", pc), ("ld", "vb", (0, 1), 80, 94), ("dmaw", pc + 7, 76)],
        7: [("cv", "k", kc[5], kc[6], 0, s0 - 3), ("cv", "v", vc[0], vc[1], s0 + 6 if kc[5] < NK else 0, 94)] + st("kst"),
    }[k]
    t = [x for x in t if not (x[0] == "cv" and x[2] >= x[3])]
    if last:
        t = [x for x in t if not ((x[0] == "cv" and x[1] == "k") or (x[0] == "ld" and x[1] != "vb") or (x[0] == "ld" and k > 0))]
        t = [("cv", "vl") + x[2:] if x[:2] == ("cv", "v") else x for x in t]
    return t

GBAR = 4 * (24 - D) - 1
POLLSITES = []
def qk_mfma(t0, g):
    qb = (g >> 1) & 3
    F = 2 * (g >> 3) + (g & 1)
    t = t0 + F // 12; s, tb = kfrag(F % 12)
    d = vr(Sq(t, qb, tb), 4)
    c = vr(NEGM(qb), 4) if (s < 2 and g % 2 == 0) else d
    return f"{MF} {d}, {FR(F)}, {Qf(qb,s)}, {c}"
def pv_mfma(t0, db, qb, w, first=False):
    d = ar(O(qb, db), 4)
    return f"{MF} {d}, {vr(P(t0+w,qb),4)}, {FR(2*db+w)}, {'0' if (first and w == 0) else d}"

def gen_iter(it, tasks=(), dma=None, name=None, endops=(), peel=False, extra_sm=False, nostep=False, extra=(), extra_late=()):
    kind = "q" if it % 2 else "p"
    nk = "p" if kind == "q" else "q"
    A = [[] for _ in range(NG)]; B = [[] for _ in range(NG)]; C = [[] for _ in range(NG)]; T = [[] for _ in range(NG)]
    streams = []; novm = set(range(0, NG, 2)); nosalu = set()
    for F in range(24):
        fr = F + D
        B[4 * F].append(frag_read(kind, fr) if fr < 24 else frag_read(nk, fr - 24))
    for F in range(2, 25, 2):
        A[4 * F - 1].append(LG(("f", kind, F + 1) if F < 24 else ("f", nk, 1)))
    smB = softmax_part(it, 1); smA = softmax_part(it + 1, 0)
    if extra_sm: smB = softmax_part(it, 0) + smB
    if kind == "q":
        streams.append(Stream(smB, 0, 50)); streams.append(Stream(smA, 52, 95))
    else:
        streams.append(Stream(smB + smA, 0, 95))
    if endops:
        A[92] += endops[:1]; A[94] += [A[95][0]] + list(endops[1:-1]); A[95] = []; T[95] = list(endops[-1:]); nosalu |= {94, 95}
    if extra: streams.append(Stream(extra, 0, 90))
    if extra_late: streams.append(Stream(extra_late, GBAR + 1, 94))
    if not OPT["prod"]: tasks = ()
    if dma is None:
        w = [t[1:] for t in tasks if t[0] == "dmaw"]
        w = w[0] if w else (0, GBAR - 5)
        p0 = it + 5 if kind == "q" else it + 2
        c_ = "k" if kind == "q" else "v"
        dma = [((c_, p0), (c_, p0 + 1)) + tuple(w)]
    for grp in dma:
        dl = []
        for part, pos in grp[:-2]: dl += dma_tile(part, pos, peel)
        n = max(i for i, x in enumerate(dl) if isinstance(x, VM)) + 1
        streams.append(Stream(dl[:n], grp[-2], grp[-1], maxper=2))
        streams.append(Stream(dl[n:], grp[-1] + 1, min(93 if endops else 95, grp[-1] + 12), maxper=2))
    nj = ((it + 2) // 2) if nk == "q" else (it - 1) // 2
    wtags = [("dk" if nk == "q" else "dv", nj % 4)]
    if not nostep:
        streams.append(Stream(rd_step(nk), 30, GBAR - 3, maxper=1))
    for t in tasks:
        k_ = t[0]
        if k_ == "cv":
            c = {"k": chain_k, "v": chain_v, "vl": lambda: chain_v(True)}[t[1]]()
            streams.append(Stream(cut(c, t[2], t[3]), t[4], t[5]))
        elif k_ in ("kst", "vst"):
            grp = k_st(t[1], BX) if k_ == "kst" else v_st(t[1], BZ)
            g = t[2]; assert g % 4 == 1 and not B[g], g
            if t[1] == 0: B[g].append(CHK("Kdone" if k_ == "kst" else "Vdone"))
            B[g].append(grp[-1]); novm |= set(range(g - OPT["sb"], g + OPT["sa"] + 1))
            if t[1] == 3: B[g].append(SIG("BX" if k_ == "kst" else "BZ"))
            if grp[:-1]: streams.append(Stream(grp[:-1], max(0, g - 5), g - 1))
        elif k_ in ("ld", "ldn"):
            ld, h, buf = HT[t[1]]
            adv = ({"ka": k_adv(), "va": v_adv()}.get(t[1], []) if k_ == "ld" else [])
            chk = {"ka": [CHK("BX")], "va": [CHK("BZ")]}.get(t[1], [CHK(f"BY{j>>1}") for j in t[2] if j % 2 == 0])
            streams.append(Stream(chk + adv + ld(h, buf, t[1], t[2]), t[3], t[4], maxper=1))
        elif k_ == "post":
            wtags += list(t[1:])
            streams.append(Stream(flag_post(), GBAR + 1, 93, maxper=1))
        elif k_ == "pf":
            streams.append(Stream([VM("pf", f"buffer_load_dword v15, v{V_DMA}, s[{S_DBG}:{S_DBG+3}], s{S_HOFF} offen")], t[1], t[2]))
        elif k_ == "pollld": streams.append(Stream(poll_load(), t[1], t[2], maxper=1))
        elif k_ in ("pollchk", "pollchk0"):
            ps = len(POLLSITES); POLLSITES.append(ps)
            g = t[1]; assert g % 4 == 1 and not (GBAR - 6 <= g <= GBAR)
            pt = poll_test()
            A[g] += [W("poll")]; T[g] += pt[:2]; novm |= {g, g + 4}
            A[g + 3] += [pt[3]]; A[g + 4] += [f"s_cbranch_scc1 L_pollslow{ps}", f"L_pollok{ps}:"]; nosalu |= {g + 3, g + 4}
            if k_ == "pollchk": A[g + 5] += [f"s_add_u32 s{S_NEED}, s{S_NEED}, 1"]
    A[GBAR - 1] += [W(*wtags)]; novm |= {GBAR}
    A[GBAR - 2] += A[GBAR]; A[GBAR] = ["s_barrier"]
    if endops:
        for st_ in streams: st_.last = min(st_.last, 94)
    fill, over = pack(A, B, C, T, streams, novm, nosalu)
    if over: print(f"iter {name or it}: over budget by {over} cycles", file=sys.stderr)
    out = [f"; ---- iteration {name or it}"]
    for g in range(NG):
        if kind == "q": out.append(qk_mfma(it + 1, g))
        else: out.append(pv_mfma(it - 2, g >> 3, (g >> 1) & 3, g & 1, first=(peel and it == 2)))
        out += fill[g]
    return with_nop(out)

GA = [60, 61]; BP = 62; RD2 = [9, 10, 11]
RLQ = [48, 52, 56, 128]
RT = [20, 23]
def epi_addr():
    ta = 63
    return [f"v_bfe_u32 v{ta}, v{V_DMA}, 4, 6", f"v_and_b32 v{BP}, 48, v{ta}", f"v_and_b32 v{ta}, 15, v{ta}",
            f"v_mul_u32_u24 v{GA[1]}, 96, v{BP}", f"v_lshl_add_u32 v{GA[0]}, v{ta}, 4, v{GA[1]}", f"v_lshl_add_u32 v{GA[1]}, v{ta}, 3, v{GA[1]}",
            f"s_lshl_b32 s24, s{S_QB}, 2", f"s_add_u32 s24, s24, s{S_WAVE}", f"s_mul_i32 s24, s24, {STAGE}"] + \
           [f"s_add_u32 s{S_PK0+i}, s24, {6144*i}" for i in range(4)]
def epi_l(qs):
    fl = []
    for sw in ("v_permlane16_swap_b32", "v_permlane32_swap_b32"):
        fl += [f"v_mov_b32 v{RT[i]}, v{V_L[q]}" for i, q in enumerate(qs)] + ["s_nop 0"]
        fl += [f"{sw} v{V_L[q]}, v{RT[i]}" for i, q in enumerate(qs)] + ["s_nop 0"]
        fl += [f"v_add_f32 v{V_L[q]}, v{V_L[q]}, v{RT[i]}" for i, q in enumerate(qs)]
    fl += [f"v_rcp_f32 v{RT[i]}, v{V_L[q]}" for i, q in enumerate(qs)] + ["s_nop 0"]
    return fl + [DS(("rl", q, i), f"ds_bpermute_b32 v{RLQ[q]+i}, v{BP}, v{RT[j]} offset:{4*i}") for j, q in enumerate(qs) for i in range(4)]
def epi_q(qb, temps, pk):
    p = [LG(("rl", qb, 3))]
    for i in range(4):
        ob = temps[(4 * qb + i) % len(temps)]
        rl = RLQ[qb] + i
        p += [f"v_accvgpr_read_b32 v{ob+db}, a{O(qb,db)+i}" for db in range(12)]
        if pk: p += [f"v_pk_mul_f32 v[{ob+2*j}:{ob+2*j+1}], v[{ob+2*j}:{ob+2*j+1}], v[{rl&~1}:{(rl&~1)+1}] op_sel:[0,{rl&1}] op_sel_hi:[1,{rl&1}]" for j in range(6)]
        else: p += [f"v_mul_f32 v{ob+j}, v{ob+j}, v{rl}" for j in range(12)]
        p += [f"v_cvt_pk_bf16_f32 v{ob+j}, v{ob+2*j}, v{ob+2*j+1}" for j in range(6)]
        p += [f"buffer_store_dwordx4 v[{ob}:{ob+3}], v{GA[0]}, s[{S_OUT}:{S_OUT+3}], s{S_PK0+qb} offen offset:{384*i}{OF}",
              f"buffer_store_dwordx2 v[{ob+4}:{ob+5}], v{GA[1]}, s[{S_OUT}:{S_OUT+3}], s{S_PK0+qb} offen offset:{384*i+256}{OF}"]
    return p

def gen_tail():
    passes = [(60, (0, 1)), (62, (0, 1)), (60, (2, 3)), (62, (2, 3))]
    def tg(i): return ("f", "p", i) if i < 24 else ("f", "t", i)
    def rd(i):
        ps, f = divmod(i, 24)
        return frag_read("p", f, V_RDV if passes[ps][0] == 60 else RD2, tg(i))
    def run(ps, fill, lim):
        t0, qbs = passes[ps]
        out = []; fill = list(fill)
        for db in range(12):
            for i, (qb, w) in enumerate([(q, w) for q in qbs for w in (0, 1)]):
                out.append(pv_mfma(t0, db, qb, w))
                cur = []
                gi = 24 * ps + 2 * db
                if i in (0, 2) and gi + (i >> 1) + D < 96: cur.append(rd(gi + (i >> 1) + D))
                if i == 3 and gi + 3 < 96: cur.append(LG(tg(gi + 3)))
                L_ = 16 if i % 2 == 0 else lim
                while fill and gap_time(cur + [fill[0]]) <= L_ + (12 if (text_of(fill[0]).startswith(("buffer", "ds_")) and i % 2) else 0):
                    cur.append(fill.pop(0))
                out += cur
        return out, fill
    thr = f"s_mov_b32 s{S_TMP}, 0x{f32bits(2.0**OPT['thr']):08x}"
    seq = []
    c, r = run(0, softmax_part(63, 0), 16); seq += c + r + ["s_nop 1"]
    c, r = run(1, [f"v_max_f32 v{RT[0]}, v{V_L[0]}, v{V_L[1]}", thr, f"v_cmp_lt_f32 vcc, s{S_TMP}, v{RT[0]}"] + softmax_part(62, 1), 16)
    seq += c + r + ["s_cbranch_vccnz L_slow"]
    tempsA = [BX, BX + 12, BZ, 132]
    must = softmax_part(63, 1) + [f"v_max_f32 v{RT[0]}, v{V_L[2]}, v{V_L[3]}", f"v_cmp_lt_f32 vcc, s{S_TMP}, v{RT[0]}"]
    rest = epi_l((0, 1)) + epi_q(0, tempsA, False) + epi_q(1, tempsA, False)
    c, r = run(2, must + rest, OPT["tden"])
    nm = max(0, len(r) - len(rest)); c += r[:nm]; r = r[nm:]
    seq += c + ["s_nop 1", "s_cbranch_vccnz L_slow"]
    c, r = run(3, r + epi_l((2, 3)), OPT["tden"]); seq += c + r
    tempsB = [64 + 12 * i for i in range(5)]
    seq += ["s_nop 4"] + epi_q(2, tempsB, True) + epi_q(3, tempsB, True)
    return seq
def slow_epi():
    seq = epi_l((0, 1)) + epi_l((2, 3))
    for q in range(4): seq += epi_q(q, [64 + 12 * i for i in range(5)], True)
    return seq

def xlane(op, t):
    l = []
    for sw in ("v_permlane16_swap_b32", "v_permlane32_swap_b32"):
        l += [f"v_mov_b32 v{t+1}, v{t}", "s_nop 1", f"{sw} v{t}, v{t+1}", "s_nop 1", f"{op} v{t}, v{t}, v{t+1}"]
    return l

def gen_slow():
    KF = 64; VF = 112; SS = 160; PP = 224; M = [240, 241, 242, 243]; KA = [244, 245]; LA = [246, 247, 248]; AL = 250; t = V_T
    p = ["L_slow:", "s_waitcnt vmcnt(0) lgkmcnt(0)", "s_nop 15"]
    for i in range(192): p.append(f"v_accvgpr_write_b32 a{i}, 0")
    for q in range(4): p += [f"v_mov_b32 v{V_L[q]}, 0", f"v_mov_b32 v{M[q]}, 0xff7fffff"]
    p += [f"v_subrev_u32 v{KA[i]}, s{S_RK}, v{V_RDK[i]}" for i in range(2)] + [f"v_subrev_u32 v{LA[i]}, s{S_RV}, v{V_RDV[i]}" for i in range(3)]
    p += [f"s_mov_b32 s{S_PT}, 0", "L_slowloop:"]
    p += [f"s_add_u32 s{S_PT+1}, s{S_PT}, 6144", f"s_add_u32 s{S_PT+2}, s{S_PT}, 12288"]
    for f in range(12):
        s, tb = kfrag(f)
        p.append(f"buffer_load_dwordx4 v[{KF+4*f}:{KF+4*f+3}], v{KA[s&1]}, s[{S_WS}:{S_WS+3}], s{S_PT+tb} offen offset:{(s>>1)*128} sc1")
    for db in range(12):
        a, off = vfrag(db)
        p.append(f"buffer_load_dwordx4 v[{VF+4*db}:{VF+4*db+3}], v{LA[a]}, s[{S_WS}:{S_WS+3}], s{S_PT+2} offen offset:{off} sc1")
    p.append("s_waitcnt vmcnt(12)")
    for f in range(12):
        s, tb = kfrag(f)
        for qb in range(4):
            d = vr(SS + 8 * qb + 4 * tb, 4)
            p.append(f"{MF} {d}, v[{KF+4*f}:{KF+4*f+3}], {Qf(qb,s)}, {'0' if s == 0 else d}")
    p.append("s_nop 9")
    for qb in range(4):
        sb = SS + 8 * qb
        p += [f"v_max3_f32 v{t}, v{sb}, v{sb+1}, v{sb+2}", f"v_max3_f32 v{t}, v{t}, v{sb+3}, v{sb+4}",
              f"v_max3_f32 v{t}, v{t}, v{sb+5}, v{sb+6}", f"v_max3_f32 v{t}, v{t}, v{sb+7}, v{M[qb]}"]
        p += xlane("v_max_f32", t)
        p += [f"v_sub_f32 v{t+1}, v{M[qb]}, v{t}", f"v_exp_f32 v{t+1}, v{t+1}", f"v_mov_b32 v{M[qb]}, v{t}"]
        p += [f"ds_bpermute_b32 v{AL+i}, v{BP}, v{t+1} offset:{4*i}" for i in range(4)]
        for i in range(8): p.append(f"v_sub_f32 v{sb+i}, v{sb+i}, v{t}")
        for i in range(8): p.append(f"v_exp_f32 v{sb+i}, v{sb+i}")
        p.append(f"v_mul_f32 v{V_L[qb]}, v{V_L[qb]}, v{t+1}")
        for i in range(8): p.append(f"v_add_f32 v{V_L[qb]}, v{V_L[qb]}, v{sb+i}")
        for i in range(4): p.append(f"v_cvt_pk_bf16_f32 v{PP+4*qb+i}, v{sb+2*i}, v{sb+2*i+1}")
        p.append("s_waitcnt lgkmcnt(0)")
        for i in range(48):
            a = O(qb, 0) + i; tt = t + 2 + (i % 2)
            p += [f"v_accvgpr_read_b32 v{tt}, a{a}", f"v_mul_f32 v{tt}, v{tt}, v{AL+i%4}", f"v_accvgpr_write_b32 a{a}, v{tt}"]
    p += ["s_waitcnt vmcnt(0)", "s_nop 1"]
    for db in range(12):
        for qb in range(4):
            d = ar(O(qb, db), 4)
            p.append(f"{MF} {d}, v[{PP+4*qb}:{PP+4*qb+3}], v[{VF+4*db}:{VF+4*db+3}], {d}")
    p += [f"s_add_u32 s{S_PT}, s{S_PT}, {STAGE}", f"s_cmp_lt_u32 s{S_PT}, {HEADBYTES}", "s_nop 7", "s_cbranch_scc1 L_slowloop"]
    e = slow_epi(); resolve(e)
    return p + fin(e) + ["s_branch L_fin"]

def resolve(seq, check=True):
    vm = []; ds = []; done = 0; tok = set(); where = ""; nm = 0
    for x in seq:
        if isinstance(x, str) and x.startswith("; ----"): where = x; nm = 0
        if isinstance(x, str) and x.startswith("v_mfma"): nm += 1
        if isinstance(x, VM): vm.append(x.tag)
        elif isinstance(x, DS): ds.append(x.tag)
        elif isinstance(x, W):
            for tag in x.tags:
                idx = [i for i, t in enumerate(vm) if t == tag]
                if idx:
                    n = len(vm) - 1 - idx[-1]
                    x.n = n if x.n is None else min(x.n, n)
        elif isinstance(x, LG):
            idx = [i for i, t in enumerate(ds) if t == x.tag]
            assert idx, x.tag
            n = len(ds) - 1 - idx[-1]
            x.n = n if x.n is None else min(x.n, n)
            if idx[-1] >= done:
                x.need = True
                if x.soft: print(f"soft LDS wait needed: {x.tag} n={n} {where} gap {nm}", file=sys.stderr)
            done = max(done, idx[-1] + 1)
        elif isinstance(x, SIG): tok.add(x.name)
        elif isinstance(x, CHK):
            assert x.name in tok or not OPT["prod"], f"token {x.name} missing {where} gap {nm}"
            tok.discard(x.name)
        else:
            assert not x.startswith("ds_") or "lgkmcnt(0)" in " ".join(y for y in seq[seq.index(x):seq.index(x)+3] if isinstance(y, str)), x
            if "lgkmcnt(0)" in x: done = len(ds)
def fin(seq):
    out = []
    for x in seq:
        if isinstance(x, W):
            if not OPT["prod"] and x.n is None: continue
            assert x.n is not None, x.tags
            out.append(f"s_waitcnt vmcnt({min(x.n, 63)})")
        elif isinstance(x, LG):
            if x.need:
                out.append(f"s_waitcnt lgkmcnt({min(x.n, 15)})")
            elif not x.soft: out.append("s_nop 0")
        elif isinstance(x, (VM, DS)): out.append(x.text)
        elif isinstance(x, (SIG, CHK)): pass
        else: out.append(x)
    return out
def srd(s, lo, off_s, size):
    return [f"s_add_u32 s{s}, s{lo}, s{off_s}", f"s_addc_u32 s{s+1}, s{lo+1}, 0", f"s_mov_b32 s{s+2}, {size}", f"s_mov_b32 s{s+3}, 0x20000"]
def sprinkle(code, extra):
    out = []; n = len(code); m = len(extra); j = 0
    for i, x in enumerate(code):
        while j < m and (i + 1) * m > j * n:
            out += extra[j]; j += 1
        if isinstance(x, list): out += x
        else: out.append(x)
    for g in extra[j:]: out += g
    return out

def gen_prologue():
    p = []
    K = f"{NAME}_kernel"
    p += [f"{K}:", "s_load_dwordx16 s[40:55], s[0:1], 0", "s_getpc_b64 s[60:61]", "L_pc:",
          "s_movk_i32 s62, 0x4000", "s_lshl_b32 s63, 1, 17", "v_lshlrev_b32 v31, 6, v0",
          VM("pf", "buffer_load_dword v15, v31, s[60:63], 0 offen"),
          "s_lshr_b32 s24, s2, 8", "s_cbranch_scc1 L_done", "s_load_dwordx4 s[16:19], s[0:1], 64", "v_lshlrev_b32 v30, 4, v0"]
    if OPT["stamp"]:
        p += ["s_memtime s[100:101]", "s_memrealtime s[98:99]"]
    p += ["v_and_b32 v25, 63, v0", "v_lshrrev_b32 v24, 6, v0", "s_movk_i32 s24, 5120",
          "v_mul_u32_u24 v26, 43, v25", f"v_mad_u32_u24 v{V_VLD}, v24, s24, v30", "s_movk_i32 s24, 384", "v_lshrrev_b32 v26, 10, v26",
          "s_and_b32 s22, s2, 7", f"s_mul_i32 s{S_TMP}, s22, {264 if OPT['rot'] else 256}", f"v_mad_u32_u24 v{V_KLD}, v26, s24, v{V_VLD}",
          "s_andn2_b32 s23, s2, 63", f"s_bfe_u32 s{S_QB}, s2, 0x30003", f"s_add_u32 s{S_TMP}, s{S_TMP}, s23", f"s_add_u32 s{S_TMP}, s{S_TMP}, s{S_QB}",
          f"s_lshr_b32 s23, s{S_TMP}, 1", "s_mulk_i32 s23, 384", f"s_mul_i32 s24, s{S_TMP}, {STAGE}", "v_lshl_add_u32 v27, v25, 3, s23",
          "s_addk_i32 s24, 2048", "s_mov_b32 exec_hi, 0xffff"]
    p += ["s_waitcnt lgkmcnt(0)"] + vstamp("kernarg")
    p += [VM("ksc", "global_load_dwordx2 v[32:33], v27, s[46:47]"), VM("ksc", "global_load_dwordx2 v[34:35], v27, s[48:49]"),
          "s_add_u32 s56, s42, s24", "s_addc_u32 s57, s43, 0"]
    for h in range(2):
        p += [VM(("k0" + "ab"[h], j >> 1), f"global_load_dwordx4 v[{64+16*h+4*j}:{67+16*h+4*j}], v{V_KLD}, s[56:57] offset:{1536*j+384*h-2048}{NTKV}") for j in range(4)]
    p += vstamp("iss k") + ["s_add_u32 s58, s44, s24", "s_addc_u32 s59, s45, 0"]
    vl = [VM(("v0" + "ab"[r >> 2], (r >> 1) & 1), f"global_load_dwordx4 v[{96+4*r}:{99+4*r}], v{V_VLD}, s[58:59] offset:{768*r-2048}{NTKV}") for r in range(8)]
    nv = OPT["nv"]
    p += vl[:nv]
    p += [f"v_readfirstlane_b32 s{S_WAVE}, v24", f"s_lshl_b32 s23, s{S_TMP}, 6", f"s_lshr_b32 s{S_HEAD}, s{S_TMP}, 6",
          f"s_lshl4_add_u32 s23, s{S_WAVE}, s23",
          "s_load_dwordx4 s[64:67], s[50:51], s23", "s_load_dwordx4 s[68:71], s[52:53], s23"]
    p += [f"s_lshl_b32 s22, s{S_HEAD}, 10", f"s_add_u32 s22, s22, {FLAG_OFF}", f"s_or_b32 s{S_LEAD}, s{S_QB}, s{S_WAVE}", "s_cbranch_scc1 L_notleader0",
          "s_load_dwordx8 s[72:79], s[18:19], s22 glc", "L_notleader0:"]
    p += ["s_mov_b32 exec_hi, -1"]
    pv = len(p)
    VQD = 232
    p += [f"s_mul_i32 s24, s{S_HEAD}, 786432"] + srd(S_Q, 40, 24, 786432) + srd(S_OUT, 54, 24, 786432)
    p += [f"s_lshl2_add_u32 s24, s{S_QB}, s{S_WAVE}", f"s_mul_i32 s24, s24, {STAGE}",
          f"s_mul_i32 s{S_QL}, s{S_WAVE}, 18432", f"s_add_u32 s{S_QL}, s{S_QL}, {3*STAGE}"]
    p += [f"v_add_u32 v{VQD+b}, {64*b}, v25" for b in range(6)]
    p += [f"v_mul_u32_u24 v{VQD+8+b}, 2731, v{VQD+b}" for b in range(6)]
    p += [f"v_bfe_u32 v{VQD+8+b}, v{VQD+8+b}, 17, 3" for b in range(6)]
    p += [f"v_xor_b32 v{VQD+b}, v{VQD+b}, v{VQD+8+b}" for b in range(6)]
    p += [f"v_lshl_add_u32 v{VQD+b}, v{VQD+b}, 4, s24" for b in range(6)]
    def q_dma(lst):
        l = []
        for i in lst:
            a, b = divmod(i, 6)
            l.append(([f"s_waitcnt vmcnt({OPT['win'] + (OPT['wins'] if i < n3 + OPT['qd'] else 0)})"] if (OPT["win"] and i >= n2) else []) + [f"s_add_u32 m0, s{S_QL}, {(a%3)*6144 + b*1024}", f"s_movk_i32 s24, {a*6144}",
                      VM(("q", a), f"buffer_load_dwordx4 v{VQD+b}, s[{S_Q}:{S_Q+3}], s24 offen{NTQ} lds")])
        return l
    flat = lambda gs: [x for g in gs for x in g]
    n0 = OPT["q0"]; n1 = n0 + OPT["qa"]; n2 = n1 + OPT["qb"]; n3 = n2 + OPT["qc"]
    assert n3 <= 18
    QD = 128
    def kprep(q, s_, z_):
        return [f"v_lshlrev_b32 v{q}, 16, v{s_}", f"v_and_b32 v{q+1}, s{S_MASK}, v{s_}", f"v_lshlrev_b32 v{q+2}, 16, v{z_}", f"v_and_b32 v{q+3}, s{S_MASK}, v{z_}"]
    t0 = [f"s_mov_b32 s{S_MASK}, 0xffff0000", f"s_mov_b32 s{S_CS}, 0x{f32bits(CSCALE):08x}",
          "v_mul_u32_u24 v27, 24, v26", "v_sub_u32 v27, v25, v27",
          f"v_lshlrev_b32 v{V_KTAB}, 4, v27", f"v_add_u32 v{V_KTAB}, {TAB}, v{V_KTAB}",
          "v_mul_u32_u24 v36, 768, v26", f"v_add_u32 v36, v36, v{V_KTAB}",
          W("ksc")] + kprep(QD, 32, 34) + kprep(QD + 4, 33, 35)
    t0 += [f"v_mul_f32 v{QD+4*u+x}, s{S_CS}, v{QD+4*u+x}" for u in range(2) for x in range(2)]
    t0 += [f"v_mul_f32_e64 v{QD+4*u+2+x}, -v{QD+4*u+2+x}, v{QD+4*u+x}" for u in range(2) for x in range(2)]
    t0 += [["s_mov_b32 exec_hi, 0xffff"] + [DS("t0w", f"ds_write_b128 v36, v[{QD+4*i}:{QD+4*i+3}] offset:{384*i}") for i in range(2)] + ["s_mov_b32 exec_hi, -1"]]
    t0 += [DS("t0r", f"ds_read_b128 v[{QD+4*u}:{QD+4*u+3}], v{V_KTAB} offset:{384*u}") for u in range(4)]
    setup0 = [f"v_mov_b32 v{V_T}, 0", f"v_mov_b32 v{V_T+1}, {RING}", DS("cnt", f"ds_write_b32 v{V_T+1}, v{V_T}")]
    setup = ["v_lshrrev_b32 v48, 1, v26", "v_lshlrev_b32 v48, 30, v48",
          "v_lshlrev_b32 v31, 4, v25", "v_mul_u32_u24 v30, 3072, v24", f"v_add_u32 v{V_DMA}, v30, v31",
          "v_lshl_add_u32 v49, v24, 2, v26", "v_mul_u32_u24 v49, 384, v49", "v_lshlrev_b32 v50, 1, v24", "v_xor_b32 v50, v27, v50",
          "v_lshl_add_u32 v49, v50, 4, v49", f"v_or_b32 v{V_KST}, v49, v48", f"v_xor_b32 v{V_KA}, 16, v{V_KST}",
          "v_lshrrev_b32 v49, 5, v25", "v_sub_u32 v49, 1, v49", "v_and_b32 v49, v49, v24", "v_lshlrev_b32 v49, 4, v49",
          f"v_xor_b32 v49, v49, v{V_DMA}", "v_add_u32 v49, 12288, v49", f"v_or_b32 v{V_VST}, v49, v48",
          f"s_mul_i32 s{S_KW}, s{S_QB}, {STAGE}", f"s_add_u32 s{S_KW2}, s{S_KW}, 6144", f"s_mov_b32 s{S_VW}, s{S_KW}",
          f"s_mul_i32 s{S_RET}, s{S_HEAD}, {WSHEAD}"]
    kv_or = [f"v_or_b32 v{V_KLD}, v{V_KLD}, v48", f"v_or_b32 v{V_VLD}, v{V_VLD}, v48"]
    p += setup0 + t0 + setup
    p[pv:] = sprinkle(p[pv:], [["s_mov_b32 exec_hi, 0xffff", x, "s_mov_b32 exec_hi, -1"] for x in vl[nv:]])
    p += vstamp("iss v") + kv_or + flat(q_dma(range(0, n0))) + vstamp("iss q0") + ["s_waitcnt lgkmcnt(0)"]
    p += srd(S_WS, 18, S_RET, HEADBYTES)
    p += srd(S_FLG, 18, 22, 32)
    p += [f"s_mov_b32 s{S_DBG}, s16", f"s_mov_b32 s{S_DBG+1}, s17", f"s_movk_i32 s{S_DBG+2}, 256", f"s_mov_b32 s{S_DBG+3}, s63", f"s_lshl_b32 s{S_HOFF}, s{S_HEAD}, 3"]
    p += [f"s_cmp_lg_u32 s{S_LEAD}, 0", "s_cbranch_scc1 L_notleader", "s_mov_b32 s24, 1"]
    for i in range(8):
        p += [f"s_lshr_b32 s{72+i}, s{72+i}, 8", f"s_min_u32 s{72+i}, s{72+i}, 31", f"s_bitset1_b32 s24, s{72+i}"]
    p += ["s_ff0_i32_b32 s24, s24", "s_lshl_b32 s24, s24, 8", f"v_mov_b32 v{V_POLL}, s24",
          "s_mov_b64 exec, 1", f"buffer_store_dword v{V_POLL}, off, s[{S_DBG}:{S_DBG+3}], s{S_HOFF} sc1", "s_mov_b64 exec, -1",
          "L_notleader:"]
    kc = []
    for h, buf in ((0, 64), (1, 80)):
        for jp in range(2):
            kc += [W(("k0a" if h == 0 else "k0b", jp))] + k_unit(h, buf, 64, jp, 0, QD + 8 * h) + k_unit(h, buf, 64, jp, 1, QD + 8 * h + 4)
    p += sprinkle(kc, q_dma(range(n0, n1))) + vstamp("kcv")
    p += [k_st(j, 64, "st0")[-1] for j in range(4)]
    p += ["s_mov_b32 exec_hi, 0xffff"] + [DS("own", f"ds_write_b128 v{V_KA if j & 1 else V_KST}, v[{64+4*j}:{64+4*j+3}] offset:{(j&1)*768+(j>>1)*6144}") for j in range(4)] + ["s_mov_b32 exec_hi, -1"]
    p += vstamp("kst")
    vc = []
    for u in range(4):
        q = QD + 4 * u
        vc += [f"s_lshl_b32 s57, s{64+u}, 16", f"s_and_b32 s58, s{64+u}, s{S_MASK}", f"v_mov_b32 v{q}, s57", f"v_mov_b32 v{q+1}, s58",
               f"s_lshl_b32 s57, s{68+u}, 16", f"s_and_b32 s58, s{68+u}, s{S_MASK}", f"v_mul_f32_e64 v{q+2}, -s57, v{q}", f"v_mul_f32_e64 v{q+3}, -s58, v{q+1}"]
    vc += [W(("v0a", 0))] + v_unit(96, 0, QD) + [W(("v0a", 1))] + v_unit(96, 1, QD + 4) + v_pack(0, 96, 96, V_INPLACE)
    vc += [W(("v0b", 0))] + v_unit(112, 0, QD + 8) + [W(("v0b", 1))] + v_unit(112, 1, QD + 12) + v_pack(1, 112, 96, V_INPLACE)
    p += sprinkle(vc, q_dma(range(n1, n2))) + vstamp("vcv")
    p += [x for e in range(4) for x in v_st(e, 96, "st0")]
    p += ["s_mov_b32 exec_hi, 0xffff"] + [DS("own", f"ds_write_b128 v{V_VST}, v[{96+4*e}:{96+4*e+3}] offset:{STAGE - 12288 + e*768}") for e in range(4)] + ["s_mov_b32 exec_hi, -1"]
    p += vstamp("vst")
    s2 = [f"s_lshl_b32 s{S_RET}, s{S_QB}, 2", f"v_lshl_add_u32 v{V_FLAG}, v0, 2, s{S_RET}", "v_cmp_lt_u32 vcc, 0, v0", "v_mov_b32 v30, 0x40000000",
          f"s_mov_b32 s{S_BUDGET}, 100000", f"v_cndmask_b32 v{V_FLAG}, v{V_FLAG}, v30, vcc"]
    s2 += [f"s_mul_i32 s{S_RET}, s{S_HEAD}, {HEADBYTES}"] + [srd(S_QK, 42, S_RET, HEADBYTES), srd(S_QV, 44, S_RET, HEADBYTES)]
    s2 += [f"s_and_b32 s{S_PK0}, s{S_TMP}, 63", f"s_mul_i32 s{S_PK0}, s{S_PK0}, {STAGE}", f"s_mov_b32 s{S_PV0}, s{S_PK0}"]
    s2 += [f"s_mul_i32 s{S_DMK}, s{S_WAVE}, 3072", f"s_add_u32 s{S_DMK}, s{S_DMK}, 12288", f"s_add_u32 s{S_DMV}, s{S_DMK}, {STAGE}",
          f"s_add_u32 s{S_RET}, s{S_QB}, 1", f"s_and_b32 s{S_RET}, s{S_RET}, 7", f"s_mul_i32 s{S_GOFFK}, s{S_RET}, {STAGE}", f"s_add_u32 s{S_GOFF}, s{S_GOFFK}, 12288",
          f"s_mov_b32 s{S_RK}, 0", f"s_mov_b32 s{S_RV}, {STAGE}"]
    s2 += ["v_and_b32 v26, 15, v25", "v_lshrrev_b32 v49, 4, v25", "v_bfe_u32 v28, v25, 1, 3",
           "v_xor_b32 v29, v49, v28", "v_mul_u32_u24 v30, 384, v26", f"v_lshl_add_u32 v{V_RDK[0]}, v29, 4, v30",
           f"v_xor_b32 v{V_RDK[1]}, 64, v{V_RDK[0]}"]
    s2 += [f"v_mul_u32_u24 v50, 3072, v49", f"v_add_u32 v50, {STAGE}, v50", "v_and_b32 v51, 1, v49", "v_lshl_add_u32 v51, v26, 1, v51",
           f"v_lshl_add_u32 v{V_RDV[0]}, v51, 4, v50", f"v_xor_b32 v{V_RDV[1]}, 16, v{V_RDV[0]}",
           f"v_lshl_add_u32 v{V_RDV[2]}, v26, 4, v50", f"v_add_u32 v{V_RDV[2]}, 512, v{V_RDV[2]}"]
    s2 += ["v_lshrrev_b32 v29, 1, v49", "v_xor_b32 v29, v29, v28", "v_lshl_add_u32 v31, v29, 4, v30",
           "v_and_b32 v29, 1, v49", "v_lshl_add_u32 v31, v29, 3, v31"]
    s2 += [f"v_xor_b32 v{32+kk}, {32*kk}, v31" for kk in range(4)] + [f"v_add_u32 v{32+kk}, s{S_QL}, v{32+kk}" for kk in range(4)]
    s2 += [f"v_mov_b32 v{V_L[q]}, 0" for q in range(4)]
    qd = [[f"v_mov_b32 v{V_POLL}, 0"] + tag_load()] + q_dma(range(n2, n3))
    p += sprinkle(s2, qd) + vstamp("iss s2")
    pf2 = ["s_mov_b32 s62, L_slow-L_pc", "s_bfe_u32 s24, s2, 0x20003", "s_add_u32 s24, s24, 1", "s_lshl_b32 s24, s24, 14", "v_lshlrev_b32 v15, 6, v0",
           VM("pf", "buffer_load_dword v15, v15, s[60:63], s24 offen")]
    TR = 80
    tl = [f"s_lshl_b32 s24, s{S_WAVE}, 4", f"s_add_u32 s24, s24, s{S_TMP}",
          f"s_and_b32 s58, s24, 63", f"s_add_u32 s24, s24, 8", "s_and_b32 s57, s24, 63", f"s_andn2_b32 s24, s{S_TMP}, 63",
          "s_or_b32 s58, s58, s24", "s_or_b32 s57, s57, s24",
          "v_mov_b32 v37, s58", "v_mov_b32 v38, s57", "v_cmp_lt_u32 vcc, 15, v25",
          "s_lshr_b32 s58, s58, 1", "s_lshr_b32 s57, s57, 1", "s_mulk_i32 s58, 384", "s_mulk_i32 s57, 384",
          "v_cndmask_b32 v37, v37, v38, vcc", "v_lshl_add_u32 v38, v25, 3, s58", "v_lshl_add_u32 v39, v25, 3, s57",
          "v_lshlrev_b32 v37, 6, v37", "v_lshl_add_u32 v37, v26, 2, v37", "s_mov_b32 exec_hi, 0xffff"]
    for x in range(2):
        tl += [VM("tab", f"global_load_dwordx2 v[{TR+4*x+2*i}:{TR+4*x+2*i+1}], v{38+x}, s[{46+2*i}:{47+2*i}]") for i in range(2)]
    tl += ["s_mov_b32 exec_hi, 0"] + [VM("tab", f"global_load_dword v{TR+8+i}, v37, s[{50+2*i}:{51+2*i}]") for i in range(2)] + ["s_mov_b32 exec_hi, -1"]
    tc = [W("tab")]
    for x in range(2):
        for i in range(2): tc += kprep(112 + 8 * x + 4 * i, TR + 4 * x + i, TR + 4 * x + 2 + i)
    tc += kprep(92, TR + 8, TR + 9)
    tc += [f"v_mul_f32 v{112+4*u+x}, s{S_CS}, v{112+4*u+x}" for u in range(4) for x in range(2)]
    tc += [f"v_mul_f32_e64 v{q+2+x}, -v{q+2+x}, v{q+x}" for q in (112, 116, 120, 124, 92) for x in range(2)]
    tc += [f"s_mul_i32 s57, s{S_WAVE}, {2*TS}", "v_add_u32 v36, s57, v36", f"s_add_u32 s57, s57, {TAB}", "v_lshrrev_b32 v37, 4, v25",
           f"v_mul_u32_u24 v37, {TS}, v37", "v_lshl_add_u32 v37, v26, 4, v37", "v_add_u32 v37, s57, v37",
           ]
    tc += [["s_mov_b32 exec_hi, 0xffff"] + [DS("tabw", f"ds_write_b128 v36, v[{112+8*x+4*i}:{115+8*x+4*i}] offset:{TS*x+384*i}") for x in range(2) for i in range(2)] +
           ["s_mov_b32 exec_hi, 0", DS("tabw", "ds_write_b128 v37, v[92:95] offset:1536"), "s_mov_b32 exec_hi, -1"],
           f"v_add_u32 v{V_KTAB}, {TS}, v{V_KTAB}",
           f"s_lshl_b32 s57, s{S_WAVE}, 6", f"s_add_u32 s57, s57, {TAB+TS+1536}", f"v_mov_b32 v{V_VTAB}, s57"]
    KF = 144
    tq = 48
    def q_read(qb):
        l = [W(("q", qb))] + vstamp(f"q{qb}")
        for s in range(6):
            for h in range(2):
                sp = s + 6 * h
                l.append(DS("qr", f"ds_read_b64 {Qf(qb,s,h)}, v{32+(sp&3)} offset:{(qb%3)*6144 + (sp>>2)*128}"))
        return l
    def qk0(qb):
        l = ["s_waitcnt lgkmcnt(0)"]
        for f in sorted(range(12), key=lambda f: kfrag(f)[::-1]):
            s, tb = kfrag(f)
            d = vr(Sq(0, qb, tb), 4)
            l.append(f"{MF} {d}, v[{KF+4*f}:{KF+4*f+3}], {Qf(qb,s)}, {'0' if s == 0 else d}")
        return l
    def sm0(qb):
        a, b = Sq(0, qb, 0), Sq(0, qb, 1)
        l = [f"v_max3_f32 v{tq}, v{a}, v{a+1}, v{a+2}", f"v_max3_f32 v{tq}, v{tq}, v{a+3}, v{b}",
             f"v_max3_f32 v{tq}, v{tq}, v{b+1}, v{b+2}", f"v_max_f32 v{tq}, v{tq}, v{b+3}"] + xlane("v_max_f32", tq)
        l += [f"v_sub_f32 v{NEGM(qb)+i}, 0, v{tq}" for i in range(4)]
        rest = [f"v_sub_f32 v{r+i}, v{r+i}, v{tq}" for r in (a, b) for i in range(4)]
        rest += [f"v_exp_f32 v{r+i}, v{r+i}" for r in (a, b) for i in range(4)]
        rest += [f"v_add_f32 v{V_L[qb]}, v{V_L[qb]}, v{r+i}" for r in (a, b) for i in range(4)]
        rest += [f"v_cvt_pk_bf16_f32 v{a}, v{a}, v{a+1}", f"v_cvt_pk_bf16_f32 v{a+1}, v{a+2}, v{a+3}",
                 f"v_cvt_pk_bf16_f32 v{a+2}, v{b}, v{b+1}", f"v_cvt_pk_bf16_f32 v{a+3}, v{b+2}, v{b+3}"]
        return l, rest
    def step(qb, extra=()):
        l, rest = sm0(qb)
        return qk0(qb) + ["s_nop 7"] + sprinkle(l + rest, extra)
    post = vstamp("pre tag") + [W("tag", "st0")] + vstamp("tag") + tag_check() + first_post() + stamp("posted") + vstamp("posted")
    bar = q_read(0) + ["s_waitcnt lgkmcnt(0)", "s_barrier"] + stamp("barA") + vstamp("barA")
    kf = []
    for f in range(12):
        s, tb = kfrag(f)
        kf.append(DS("k0f", f"ds_read_b128 v[{KF+4*f}:{KF+4*f+3}], v{V_RDK[s&1]} offset:{tb*6144 + (s>>1)*128}"))
    n4 = n3 + OPT["qd"]; n5 = min(24, n4 + OPT["qe"])
    if OPT["ord"] == 0:
        p += bar + kf + step(0, q_dma(range(n3, n4))) + vstamp("qk0") + post
    else:
        p += bar + post + kf + step(0, q_dma(range(n3, n4))) + vstamp("qk0")
    p += tl
    p += q_read(1) + step(1, q_dma(range(n4, n5))) + vstamp("qk1")
    misc = [k_adv(), v_adv()]
    if OPT["pf2"]:
        misc += [f"s_mov_b32 s{S_DBG}, s60", f"s_mov_b32 s{S_DBG+1}, s61", f"s_mov_b32 s{S_DBG+2}, L_slow-L_pc",
              f"s_lshr_b32 s{S_TP}, s2, 3", f"s_mul_i32 s{S_HOFF}, s{S_TP}, 43", f"s_lshr_b32 s{S_HOFF}, s{S_HOFF}, 7",
              f"s_mul_i32 s{S_RET}, s{S_HOFF}, 3", f"s_sub_u32 s{S_TP}, s{S_TP}, s{S_RET}", f"s_lshl_b32 s{S_TP}, s{S_TP}, 10",
              f"s_mul_i32 s{S_HOFF}, s{S_HOFF}, 12288", f"s_add_u32 s{S_HOFF}, s{S_HOFF}, s{S_TP}"]
    n6 = min(24, n5 + OPT["qf"])
    p += stamp("at poll") + vstamp("at poll") + [x.replace(f"s[{S_PT}:{S_PT+7}]", "s[72:79]") for x in smem_flags()]
    p += sprinkle(misc + tc, q_dma(range(n5, n6))) + vstamp("tc")
    p += poll_smem() + stamp("poll ok") + vstamp("poll ok")
    dm = [with_nop(dma_tile(a, b, True)) for a, b in (("k", 1), ("k", 2), ("k", 3), ("v", 1))]
    kraw = k_ld(0, BX, "ka") + k_ld(1, BY, "kb")
    p += dm[0] + flat(q_dma(range(n6, 24))) + vstamp("iss q")
    p += q_read(2) + step(2, dm[1:3]) + vstamp("qk2") + dm[3]
    l, fl = sm0(3)
    p += q_read(3) + qk0(3) + kraw[:4] + ["s_nop 3"] + l + vstamp("qk3")
    p += [W(("dk", 0))] + vstamp("dk0") + ["s_waitcnt lgkmcnt(0)", "s_barrier"] + [frag_read("q", 12 + f) for f in range(NFS)]
    p += fl[:12]; fl = fl[12:]
    if OPT["stamp"] == 7:
        p += vstamp("loop start") + ["v_writelane_b32 v14, s98, 31", "s_add_u32 s40, s18, 0xfa00000", "s_addc_u32 s41, s19, 0", "s_mov_b32 s42, 1048576", "s_mov_b32 s43, 0x20000",
              "s_lshl_b32 s24, s2, 2", f"s_add_u32 s24, s24, s{S_WAVE}", "s_lshl_b32 s24, s24, 7", f"v_bfe_u32 v15, v{V_DMA}, 4, 6", "v_lshlrev_b32 v15, 2, v15", "s_mov_b64 exec, 0xffffffff",
              VM("stamp", "buffer_store_dword v14, v15, s[40:43], s24 offen"), "s_mov_b64 exec, -1"]
        open(sys.argv[1] + ".stamps", "w").write("\n".join(STAMPS))
    elif OPT["stamp"]:
        p += stamp("loop start") + ["s_memtime s[8:9]"]
    l = dma_tile("v", 2, True) + dma_tile("v", 3, True)
    dl = [l[0:1], l[1:2], l[2:3], l[3:4], l[4:8], l[8:9], l[9:10], l[10:11], l[11:12], l[12:15], l[15:]]
    dl = [[x] for x in kraw[4:]] + [pf2[:5], pf2[5:]]
    p.append("s_nop 0")
    for g in range(48, 96):
        F = 2 * (g >> 3)
        if g % 8 == 0: p.append(LG(("f", "q", F + 1)))
        p.append(qk_mfma(0, g))
        cur = []
        if g % 8 == 7 and F + NFS < 24: cur = [frag_read("q", F + NFS), frag_read("q", F + NFS + 1)]
        elif g % 4 == 1 and dl: cur = dl.pop(0)
        while fl and gap_time(cur + [fl[0]]) <= 16: cur.append(fl.pop(0))
        p += cur
    assert not dl and not fl, (dl, fl)
    p += rd_step("q") + [W(("dk", 1)), "s_barrier"] + [frag_read("q", f) for f in range(D)] + [tq_rd("ka0", TQ[0])]
    if OPT["stamp"]: p += [f"s_mov_b32 s{S_LEAD}, 0"]
    p += [f"s_mov_b32 s{S_CNT}, 5", LG(("f", "q", 1)), SIG("BZ")]
    return p

def gen_main():
    p = gen_prologue()
    K_ = lambda *j: tuple(("k", x) for x in j)
    V_ = lambda *j: tuple(("v", x) for x in j)
    G = lambda it, t, d, **kw: kstamp(f"p{it}", 3) + gen_iter(it, t, dma=d, name=f"p{it}", peel=True, **kw)
    ST = lambda w, g0=57: [(w, 0, g0), (w, 1, g0 + 8), (w, 2, g0 + 16), (w, 3, 85)]
    A4 = (0, 1, 2, 3)
    kc = SCHED[OPT["sch"]][0]
    SE = lambda w: [(w, 0, 1), (w, 1, 9), (w, 2, 17), (w, 3, 25)]
    if OPT["su"] == 0:
        p += G(1, [("ldn", "va", A4, 0, 30), ("cv", "k", 0, 40, 30, 95)], [K_(4, 5) + (20, 74)], extra_sm=True, nostep=True)
        p += G(2, [("cv", "k", 40, NK, 0, 54), ("ld", "vb", (0, 1), 34, 50)] + ST("kst"), [K_(6, 7) + (0, 32)])
        p += G(3, [("ld", "vb", (2, 3), 0, 12), ("ld", "ka", A4, 14, 40), ("post", "kst"), ("cv", "v", 0, 32, 0, 95)], [V_(4, 5) + (40, 74)])
        p += G(4, [("cv", "v", 32, 64, 0, 95), ("pollld", 70, 90)], [V_(6, 7) + (0, 66)])
        p += G(5, [("pollchk", 1), ("cv", "v", 64, NV, 0, 54), ("ld", "kb", (0, 1), 36, 50), ("cv", "k", 0, 10, 63, 95)] + ST("vst"), [K_(8, 9) + (7, 34)])
        p += G(6, [("ld", "kb", (2, 3), 0, 12), ("ld", "va", A4, 14, 40), ("post", "vst"), ("cv", "k", 10, 38, 0, 95)], [K_(10, 11) + (40, 74)])
        p += G(7, [("cv", "k", 38, 66, 0, 95), ("pollld", 70, 90)], [K_(12, 13) + (0, 66)])
        p += G(8, [("pollchk", 1), ("cv", "k", 66, NK, 0, 54), ("ld", "vb", (0, 1), 36, 50), ("cv", "v", 0, 10, 63, 95)] + ST("kst"), [V_(8, 9) + (7, 34)])
        p += G(9, [("ld", "vb", (2, 3), 0, 8), ("ld", "ka", A4, 76, 94), ("post", "kst"), ("cv", "v", 10, 38, 0, 95)], [V_(10, 11) + K_(14, 15) + (10, 74)])
        p += G(10, [("cv", "v", 38, 66, 0, 95), ("pollld", 70, 90)], [V_(12, 13) + (0, 66)])
        p += G(11, [("pollchk", 1), ("cv", "v", 66, NV, 0, 54), ("ld", "kb", (0, 1), 36, 50), ("cv", "k", 0, 10, 63, 95)] + ST("vst"), [K_(16, 17) + (7, 34)])
        p += G(12, [("ld", "kb", (2, 3), 0, 12), ("ld", "va", A4, 14, 40), ("post", "vst"), ("cv", "k", 10, 34, 0, 95)], [V_(14, 15) + (40, 74)])
        p += G(13, [("cv", "k", 34, kc[4], 0, 94), ("pollld", 70, 90)], [K_(18, 19) + (0, 66)], endops=["s_nop 0", "s_branch L_join"])
    else:
        SL = lambda w: [(w, 0, 65), (w, 1, 73), (w, 2, 85), (w, 3, 93)]
        pa = OPT["pa"]; pb = OPT["pb"]
        if OPT["fin"]:
            p += G(1, [("ldn", "va", A4, 50, 90), ("cv", "k", 0, 30, 50, 95)], [K_(4, 5) + (0, 46)], extra_sm=True, nostep=True)
            p += G(2, [("cv", "k", 30, NK, 0, 62), ("ld", "vb", (0, 1), 44, 58)] + SL("kst"), [V_(2, 3) + (0, 42)])
            p += G(3, [("ld", "vb", (2, 3), 4, 12), ("post", "kst"), ("cv", "v", 0, 32, 0, 95)], [K_(6, 7) + V_(4, 5) + (14, 90)])
            p += G(4, [("ld", "ka", A4, 0, 16), ("cv", "v", 32, 64, 0, 95), ("pollld", pa + 10, pa + 16)], [V_(6, 7) + (18, pa + 6)])
        else:
            p += G(1, [("ldn", "va", A4, 0, 30), ("cv", "k", 0, 40, 30, 95)], [K_(4, 5) + (20, 74)], extra_sm=True, nostep=True)
            p += G(2, [("cv", "k", 40, NK, 0, 54), ("ld", "vb", (0, 1), 34, 50)] + ST("kst"), [K_(6, 7) + (0, 32)])
            p += G(3, [("ld", "vb", (2, 3), 0, 12), ("ld", "ka", A4, 14, 40), ("post", "kst"), ("cv", "v", 0, 32, 0, 95)], [V_(4, 5) + (40, 74)])
            p += G(4, [("cv", "v", 32, 64, 0, 95), ("pollld", pa, pa + 6)], [V_(6, 7) + (0, pa - 4)])
        p += G(5, [("pollchk", pb), ("cv", "v", 64, NV, 0, 62), ("ld", "kb", (0, 1), 0, 20), ("cv", "k", 0, 8, 70, 95)] + SL("vst"), [K_(8, 9) + (pb + 6, 58)])
        p += G(6, [("ld", "kb", (2, 3), 4, 14), ("ld", "va", A4, 14, 40), ("post", "vst"), ("cv", "k", 8, 38, 0, 95)], [K_(10, 11) + (40, 74)])
        p += G(7, [("cv", "k", 38, 66, 0, 95), ("pollld", pa, pa + 6)], [K_(12, 13) + (0, pa - 4)])
        p += G(8, [("pollchk", pb), ("cv", "k", 66, NK, 0, 62), ("ld", "vb", (0, 1), 0, 20), ("cv", "v", 0, 8, 70, 95)] + SL("kst"), [V_(8, 9) + (pb + 6, 58)])
        p += G(9, [("ld", "vb", (2, 3), 4, 10), ("ld", "ka", A4, 76, 94), ("post", "kst"), ("cv", "v", 8, 38, 0, 95)], [V_(10, 11) + K_(14, 15) + (12, 74)])
        p += G(10, [("cv", "v", 38, 66, 0, 95), ("pollld", pa + 10, pa + 16)], [V_(12, 13) + (0, pa - 4)])
        p += G(11, [("pollchk", pb), ("cv", "v", 66, NV, 0, 62), ("ld", "kb", (0, 1), 0, 20), ("cv", "k", 0, 8, 70, 95)] + SL("vst"), [K_(16, 17) + (pb + 6, 58)])
        p += G(12, [("ld", "kb", (2, 3), 4, 14), ("ld", "va", A4, 14, 40), ("post", "vst"), ("cv", "k", 8, 34, 0, 95)], [V_(14, 15) + (40, 74)])
        p += G(13, [("cv", "k", 34, kc[4], 0, 94), ("pollld", pa, pa + 6)], [K_(18, 19) + (0, pa - 4)], endops=["s_nop 0", "s_branch L_join"])
    JOIN = 6
    p += [".p2align 6", "L_loop:"]
    pro_ = p
    bodyA = []
    for k in range(8):
        if k == JOIN: bodyA.append("L_join:"); jpos = len(bodyA)
        eo = [f"s_sub_u32 s{S_CNT}, s{S_CNT}, 1", f"s_cmp_lg_u32 s{S_CNT}, 0", "s_cbranch_scc1 L_loop"] if k == 7 else ()
        bodyA += kstamp(f"k{k}") + gen_iter(16 + k, steady(k), endops=eo, name=f"k{k}")
    mid = []
    for k in range(4): mid += kstamp(f"m{k}") + gen_iter(48 + k, steady(k, last=True), name=f"mid{k}")
    mid += [f"s_mov_b32 s{S_CNT}, 2", ".p2align 6", "L_loop2:"]
    bodyC = []
    for k in range(4):
        eo = [f"s_sub_u32 s{S_CNT}, s{S_CNT}, 1", f"s_cmp_lg_u32 s{S_CNT}, 0", "s_cbranch_scc1 L_loop2"] if k == 3 else ()
        t = {1: [("pollld", 84, 94) if OPT["plate"] else ("pollld", 2, 10)] + ([("pf", 60, 76)] if OPT["pf2"] else []), 2: [("pollchk0", OPT["pc"]), ("dmaw", OPT["pc"] + 7, 76)]}.get(k, [])
        bodyC += gen_iter(52 + k, t, name=f"C{k}", endops=eo)
    LE = (stamp("loop end") + ["s_memtime s[10:11]"]) if OPT["stamp"] not in (0, 7) else []
    t60 = gen_iter(60, name="T60", extra=epi_addr())
    t61 = gen_iter(61, dma=[], name="T61", extra_late=[f"v_add_u32 v{RD2[i]}, {2*STAGE}, v{V_RDV[i]}" for i in range(3)])
    for x in t61:
        if isinstance(x, W): x.n = 0; x.tags = ()
    tailc = LE + t60 + t61 + gen_tail() + ["L_fin:"]
    resolve(pro_ + bodyA[jpos:] + bodyA + bodyA + mid + bodyC + bodyC + tailc)
    P_ = Prog()
    P_.extend(fin(pro_))
    a0 = len(P_.ins); P_.extend(fin(bodyA)); a1 = len(P_.ins)
    P_.extend(fin(mid))
    c0_ = len(P_.ins); P_.extend(fin(bodyC)); c1 = len(P_.ins)
    P_.extend(fin(tailc))
    p = P_
    if OPT["stamp"] and OPT["stamp"] != 7:
        p("s_waitcnt vmcnt(0)")
        p.extend(stamp("end"))
        p("s_memtime s[22:23]")
        p("s_waitcnt lgkmcnt(0)")
        p("s_sub_u32 s22, s22, s100")
        regs = [98] + [SR(i) for i in range(len(STAMPS))]
        p("s_sub_u32 s10, s10, s8")
        regs += [10] * (14 - len(regs)) + [22]
        regs = regs[:15] + [S_LEAD]
        for i, s in enumerate(regs): p(f"v_mov_b32 v{64+i}, s{s}")
        p("s_add_u32 s8, s18, 0xfa00000"); p("s_addc_u32 s9, s19, 0"); p("s_mov_b32 s10, 1048576"); p("s_mov_b32 s11, 0x20000")
        p("s_lshl_b32 s24, s2, 2"); p(f"s_add_u32 s24, s24, s{S_WAVE}"); p("s_lshl_b32 s24, s24, 6")
        p("v_mov_b32 v32, s24")
        p(f"v_cmp_eq_u32 vcc, 0, v{GA[0]}")
        p("s_and_saveexec_b64 s[20:21], vcc")
        for i in range(4):
            p(f"buffer_store_dwordx4 v[{64+4*i}:{67+4*i}], v32, s[8:11], 0 offen offset:{16*i}")
        open(sys.argv[1] + ".stamps", "w").write("\n".join(STAMPS))
    p("L_done:")
    p("s_endpgm")
    main_end0 = len(p.ins)
    for ps in POLLSITES + ["P"]: p.extend(poll_slow(ps))
    p.extend(tag_slow())
    main_end = len(p.ins)
    p.extend(gen_slow())
    slow_end = len(p.ins)
    ji = [i for i, x in enumerate(p.ins) if x.text == "L_join:"][0]
    lin = p.ins[:a0] + p.ins[ji:a1] + p.ins[a0:c1] + p.ins[c0_:main_end0]
    sl = [i for i, x in enumerate(p.ins) if x.text == "L_slowloop:"][0]
    ei = [i for i, x in enumerate(p.ins) if x.text == "L_fin:"][0]
    bi = [i for i, x in enumerate(p.ins) if x.text == "s_cbranch_scc1 L_slowloop"][0]
    probs = check_hazards(lin, "main") + check_hazards(p.ins[main_end:bi+1] + p.ins[sl:slow_end] + p.ins[ei:ei+60], "slow") + check_hazards(p.ins[main_end0:main_end], "aux")
    for x in probs: print(x, file=sys.stderr)
    return p

def kd(name, vgpr, sgpr, accum):
    return f""".amdhsa_kernel {name}
  .amdhsa_next_free_vgpr {vgpr}
  .amdhsa_next_free_sgpr {sgpr}
  .amdhsa_accum_offset {accum}
  .amdhsa_group_segment_fixed_size 0
  .amdhsa_kernarg_size 80
  .amdhsa_user_sgpr_count 2
  .amdhsa_user_sgpr_kernarg_segment_ptr 1
  .amdhsa_system_sgpr_workgroup_id_x 1
.end_amdhsa_kernel
"""
out = HEADER
out += f"; @launch grid=(256,1,1) block=(256,1,1) lds={LDS_BYTES}\n"
out += '.amdgcn_target "amdgcn-amd-amdhsa--gfx950"\n.text\n'
out += f".globl {NAME}_kernel\n.p2align 8\n.type {NAME}_kernel,@function\n" + gen_main().text()
out += '.section .rodata,"a"\n.p2align 6\n' + kd(NAME + "_kernel", 512, 102, 256)
open(sys.argv[1], "w").write(out)
```

```python
import sys, math
from asmlib import *

NAME = "standalone__kv_cache_quant_int4_int2_kv_with_per_channel_or_per_token_scales__prompt"
OPT = dict(stamp=0, prod=1, vmgap=4, sb=6, sa=6, pl=10, ahead=4, thr=64, tden=44, ab=0, pf2=1,
           q0=0, qa=4, qb=4, qc=4, qd=4, qe=4, ord=1, kst0=57, rot=1, win=8, nv=8, sch=1, sd=8, pc=29, plate=0, su=1, pa=58, pb=29, fin=1, wins=4, qf=2)
for a in sys.argv[2:]:
    k, v = a.split("="); assert k in OPT, k; OPT[k] = int(v)
NS = 6; D = 4
STAGE = 24576
HEADBYTES = 64 * STAGE
RING = NS * STAGE
TS = 1792
TAB = RING + 128
LDS_BYTES = TAB + 8 * TS
CSCALE = (192.0 ** -0.5) * math.log2(math.e)
HEADER = open("cdna_kernels/" + NAME + ".s.ref").read().split("; Override launch geometry")[0]
MF = "v_mfma_f32_16x16x32_bf16"
NG = 96

V_FV = 55; V_RDV = [1, 21, 22]; V_RDK = [2, 3]; V_DMA = 4; V_L = [5, 6, 7, 8]
V_KLD = 9; V_KTAB = 10; V_KST = 11; V_VLD = 12; V_FLAG = 13
V_T = 16; NTP = 2
V_VST = 20; V_VTAB = 23
V_FR = 24; NFS = 6
TQ = [48, 56, 60]; V_VO = 52; BX = 224; BY = 240; BZ = 144
V_POLL = V_VO; V_KA = V_VO + 2
UNIT = [64, 80, 160, 176]; HI = [96, 112]
def Sq(t, qb, tb): return (UNIT[t % 4] if tb == 0 else HI[t % 2]) + 4 * qb
def P(t, qb): return UNIT[t % 4] + 4 * qb
def NEGM(qb): return 128 + 4 * qb
def O(qb, db): return (qb * 12 + db) * 4
def Qf(qb, s, half=None):
    i = qb * 6 + s
    base, f = (192 + 4 * i, ar) if i < 16 else (192 + 4 * (i - 16), vr)
    return f(base, 4) if half is None else f(base + 2 * half, 2)
def FR(f): return vr(V_FR + 4 * (f % NFS), 4)

S_RDELTA = 3; S_WS = 4; S_Q = 8; S_OUT = 12; S_FLG = 20
S_WAVE = 25; S_DMK = 26; S_GOFF = 27; S_RK = 28; S_TMP = 29; S_RV = 30; S_CNT = 31; S_GOFFK = 32
S_PK0 = 33; S_PK1 = 34; S_PV0 = 35; S_PV1 = 36; S_KW = 37; S_CS = 38; S_RET = 39; S_KW2 = 80; S_VW = 81; S_QL = 82; S_LEAD = 83
S_PT = 48; S_DMV = 56; S_TK = 57; S_TV = 58; S_TP = 59
S_QK = 64; S_QV = 68; S_DBG = 88
S_NEED = 92; S_HOFF = 93; S_HEAD = 94; S_QB = 95; S_BUDGET = 96; S_MASK = 97
FLAG_OFF = 64 << 20
WSHEAD = HEADBYTES + 8 * STAGE
SC1 = " sc1"; NTKV = " nt"; NTQ = " nt"; STF = " sc1"; OF = " sc0 sc1"

STAMPS = []
def SR(i): return ([40, 42, 44, 46, 0, 72, 74, 76, 78, 84, 86, 16, 98, 100] if OPT['stamp'] in (3, 6) else [16, 40, 42, 44, 84, 86, 0])[i]
def kstamp(name, mode=6):
    if OPT["stamp"] != mode: return []
    i = len(STAMPS); STAMPS.append(name)
    return [f"s_memtime s[{SR(i)}:{SR(i)+1}]"]
def vstamp(name):
    if OPT["stamp"] != 7: return []
    i = len(STAMPS); STAMPS.append(name)
    return ["s_memrealtime s[100:101]", "s_waitcnt lgkmcnt(0)", f"v_writelane_b32 v14, s100, {i}"]
def stamp(name):
    if OPT["stamp"] not in (1, 8): return []
    i = len(STAMPS); STAMPS.append(name)
    return [f"s_memrealtime s[{SR(i)}:{SR(i)+1}]"]

class W:
    def __init__(self, *tags): self.tags = tags; self.n = None
class VM:
    def __init__(self, tag, text): self.tag = tag; self.text = text
class LG:
    def __init__(self, tag, soft=False): self.tag = tag; self.n = None; self.need = False; self.soft = soft
class DS:
    def __init__(self, tag, text): self.tag = tag; self.text = text
class SIG:
    def __init__(self, name): self.name = name
class CHK:
    def __init__(self, name): self.name = name

def softmax_part(t, half):
    flat = []; prev = None
    for gp in range(8):
        qb = 2 * half + gp // 4; pi = gp % 4
        t0 = V_T + 2 * (gp % NTP); t1 = t0 + 1
        src = Sq(t, qb, pi >> 1) + 2 * (pi & 1)
        E = [f"v_exp_f32 v{t0}, v{src}", f"v_exp_f32 v{t1}, v{src+1}"]
        A = [f"v_add_f32 v{V_L[qb]}, v{V_L[qb]}, v{t0}", f"v_add_f32 v{V_L[qb]}, v{V_L[qb]}, v{t1}"]
        C = [f"v_cvt_pk_bf16_f32 v{P(t,qb)+pi}, v{t0}, v{t1}"]
        if OPT["ab"] == 1: A = []
        if OPT["ab"] == 2: A = [f"v_pk_add_f32 v[6:7], v[6:7], v[{t0}:{t1}]"]
        if OPT["ab"] == 3: A = []; C = C + [f"v_dot2_f32_bf16 v{V_L[qb]}, v{P(t,qb)+pi}, v14, v{V_L[qb]}"]
        if OPT["ab"] == 4: A = []; C = C + [f"v_dot2c_f32_bf16 v{V_L[qb]}, v{P(t,qb)+pi}, v14"]
        flat += E if prev is None else [E[0]] + prev[0] + [E[1]] + prev[1]
        prev = (A, C)
    return flat + prev[0] + prev[1]

def kfrag(g):
    return 2 * (g >> 2) + (g & 1), (g >> 1) & 1
def vfrag(db):
    return (db >> 2, (db & 3) * 768)
def frag_read(kind, f, regs=None, tag=None):
    if kind == "q":
        s, tb = kfrag(f % 12)
        return DS(tag or ("f", kind, f), f"ds_read_b128 {FR(f)}, v{V_RDK[s&1]} offset:{(f//12)*12288 + tb*6144 + (s>>1)*128}")
    a, off = vfrag(f >> 1)
    return DS(tag or ("f", kind, f), f"ds_read_b128 {FR(f)}, v{(regs or V_RDV)[a]} offset:{(f&1)*12288 + off}")

def dma_tile(part, pos, peel=False):
    dm, go, tmp = (S_DMK, S_GOFFK, S_TK) if part == "k" else (S_DMV, S_GOFF, S_TV)
    l = [f"s_mov_b32 m0, s{dm}"]
    for j in range(3):
        l.append(VM(("d" + part, (pos >> 1) % 4), f"buffer_load_dwordx4 v{V_DMA}, s[{S_WS}:{S_WS+3}], s{go} offen offset:{j*1024}{SC1} lds"))
    if peel and pos < 7:
        l += [f"s_add_u32 s{go}, s{go}, {STAGE}", f"s_sub_u32 s{tmp}, s{go}, {8*STAGE}", f"s_min_u32 s{go}, s{go}, s{tmp}"]
    elif peel and pos == 7:
        l += [f"s_mov_b32 s{go}, {8*STAGE + (0 if part == 'k' else 12288)}"]
    else:
        l += [f"s_add_u32 s{go}, s{go}, {STAGE}"]
    if pos % 2 == 0: l += [f"s_add_u32 s{dm}, s{dm}, 12288"]
    else: l += [f"s_add_u32 s{dm}, s{dm}, {2*STAGE - 12288}", f"s_sub_u32 s{tmp}, s{dm}, {RING}", f"s_min_u32 s{dm}, s{dm}, s{tmp}"]
    return l
def with_nop(l):
    out = []
    real = [i for i, x in enumerate(l) if not isinstance(x, (SIG, CHK))]
    nxt = {a: b for a, b in zip(real, real[1:])}
    for i, x in enumerate(l):
        out.append(x)
        if isinstance(x, str) and " m0," in x and i in nxt and isinstance(l[nxt[i]], VM): out.append("s_nop 0")
    return out
def rd_step(kind):
    cur, regs = (S_RK, V_RDK) if kind == "q" else (S_RV, V_RDV)
    return [f"s_add_u32 s{S_TMP}, s{cur}, {2*STAGE}", f"s_sub_u32 s{S_RDELTA}, s{S_TMP}, {RING}",
            f"s_min_u32 s{S_TMP}, s{S_TMP}, s{S_RDELTA}", f"s_sub_u32 s{S_RDELTA}, s{S_TMP}, s{cur}", f"s_mov_b32 s{cur}, s{S_TMP}"] + \
           [f"v_add_u32 v{r}, s{S_RDELTA}, v{r}" for r in regs]

def k_ld(h, buf, tag, js=range(4)):
    return [VM((tag, j >> 1), f"buffer_load_dwordx4 v[{buf+4*j}:{buf+4*j+3}], v{V_KLD}, s[{S_QK}:{S_QK+3}], s{S_PK0 if j < 2 else S_PK1} offen offset:{(j&1)*1536+384*h}{NTKV}")
            for j in js]
def v_ld(h, buf, tag, js=range(4)):
    return [VM((tag, r >> 1), f"buffer_load_dwordx4 v[{buf+4*r}:{buf+4*r+3}], v{V_VLD}, s[{S_QV}:{S_QV+3}], s{S_PV0 if h == 0 else S_PV1} offen offset:{r*768}{NTKV}")
            for r in js]
def k_unit(h, buf, out, jp, i, q):
    ab = [(buf + 4 * j + 2 * i, buf + 4 * j + 2 * i + 1) for j in (2 * jp, 2 * jp + 1)]
    return [f"v_cvt_f32_i32 v{r}, v{r}" for a, b in ab for r in (a, b)] + \
           [f"v_fma_f32 v{r}, v{r}, v{q+x}, v{q+2+x}" for a, b in ab for x, r in enumerate((a, b))] + \
           [f"v_cvt_pk_bf16_f32 v{out+4*j+2*h+i}, v{a}, v{b}" for j, (a, b) in zip((2 * jp, 2 * jp + 1), ab)]
def v_unit(buf, i, q):
    l = []
    for e0 in (0, 2):
        ab = [(buf + 8 * i + e, buf + 8 * i + 4 + e) for e in (e0, e0 + 1)]
        l += [f"v_cvt_f32_i32 v{r}, v{r}" for a, b in ab for r in (a, b)]
        l += [f"v_fma_f32 v{r}, v{r}, v{q+x}, v{q+2+x}" for a, b in ab for x, r in enumerate((a, b))]
    return l
def v_pack(h, buf, out, lst):
    return [f"v_cvt_pk_bf16_f32 v{out+4*e+2*h+i}, v{buf+8*i+e}, v{buf+8*i+4+e}" for e, i in lst]
V_INPLACE = [(0, 0), (1, 0), (0, 1), (1, 1), (2, 0), (2, 1), (3, 0), (3, 1)]
def tq_rd(name, q):
    if name[0] == "k": va, off = V_KTAB, "ab".index(name[1]) * 768 + int(name[2]) * 384
    else: va, off = V_VTAB, ("ab".index(name[1]) * 2 + int(name[2])) * 16
    return DS(("tq", name), f"ds_read_b128 v[{q}:{q+3}], v{va} offset:{off}")
def ins(l, i, x): return l[:i] + x + l[i:]
def chain_k():
    T0, T1, T2 = TQ
    c = [tq_rd("ka1", T1), W(("ka", 0)), LG(("tq", "ka0"), True)] + ins(k_unit(0, BX, BX, 0, 0, T0), 3, [tq_rd("kb0", T2)])
    c += [LG(("tq", "ka1"), True)] + k_unit(0, BX, BX, 0, 1, T1) + [W(("ka", 1))] + k_unit(0, BX, BX, 1, 0, T0) + k_unit(0, BX, BX, 1, 1, T1)
    c += [tq_rd("kb1", T0), W(("kb", 0)), LG(("tq", "kb0"), True)] + ins(k_unit(1, BY, BX, 0, 0, T2), 3, [tq_rd("va0", T1), f"v_add_u32 v{V_KTAB}, {TS}, v{V_KTAB}"])
    c += [LG(("tq", "kb1"), True)] + k_unit(1, BY, BX, 0, 1, T0) + [SIG("BY0"), W(("kb", 1))] + k_unit(1, BY, BX, 1, 0, T2) + k_unit(1, BY, BX, 1, 1, T0)
    return c + [SIG("BY1"), SIG("Kdone")]
def chain_v(last=False):
    T0, T1, T2 = TQ
    c = [tq_rd("va1", T2), W(("va", 0)), LG(("tq", "va0"), True)] + ins(v_unit(BZ, 0, T1), 3, [tq_rd("vb0", T0)])
    c += [tq_rd("vb1", T1), W(("va", 1)), LG(("tq", "va1"), True)] + ins(v_unit(BZ, 1, T2), 3, [f"v_add_u32 v{V_VTAB}, {TS}, v{V_VTAB}"]) + v_pack(0, BZ, BZ, V_INPLACE)
    c += [W(("vb", 0)), LG(("tq", "vb0"), True)] + v_unit(BY, 0, T0) + ([] if last else [tq_rd("ka0", T0)]) + v_pack(1, BY, BZ, [(e, 0) for e in range(4)]) + [SIG("BY0")]
    c += [W(("vb", 1)), LG(("tq", "vb1"), True)] + v_unit(BY, 1, T1) + v_pack(1, BY, BZ, [(e, 1) for e in range(4)])
    return c + [SIG("BY1"), SIG("Vdone")]
def cut(c, n0, n1):
    out = []; n = 0; pend = []
    for x in c:
        if isinstance(x, str) and x.startswith("v_"):
            if n0 <= n < n1: out += pend + [x]
            pend = []; n += 1
        elif isinstance(x, SIG):
            if n0 <= n - 1 < n1: out.append(x)
        else: pend.append(x)
    assert not pend
    return out
def k_st(j, out, tag="kst"):
    return [VM(tag, f"buffer_store_dwordx4 v[{out+4*j}:{out+4*j+3}], v{V_KA if j & 1 else V_KST}, s[{S_WS}:{S_WS+3}], s{S_KW if j < 2 else S_KW2} offen offset:{(j&1)*768}{STF}")]
def v_st(e, out, tag="vst"):
    return [VM(tag, f"buffer_store_dwordx4 v[{out+4*e}:{out+4*e+3}], v{V_VST}, s[{S_WS}:{S_WS+3}], s{S_VW} offen offset:{e*768}{STF}")]
def adv(r0, r1, w):
    return [f"s_add_u32 s{r0}, s{r0}, {8*STAGE}", f"s_sub_u32 s{r1}, s{r0}, {HEADBYTES}", f"s_min_u32 s{r0}, s{r0}, s{r1}", f"s_add_u32 s{r1}, s{r0}, 3072"] + \
           [f"s_add_u32 s{x}, s{x}, {8*STAGE}" for x in w]
def k_adv(): return adv(S_PK0, S_PK1, (S_KW, S_KW2))
def v_adv(): return adv(S_PV0, S_PV1, (S_VW,))
HT = {"ka": (k_ld, 0, BX), "kb": (k_ld, 1, BY), "va": (v_ld, 0, BZ), "vb": (v_ld, 1, BY)}
def flag_post():
    return [f"v_add_u32 v{V_FV}, 1, v{V_FV}",
            VM("flag", f"buffer_store_dword v{V_FV}, v{V_FLAG}, s[{S_FLG}:{S_FLG+3}], 0 offen sc1")]
def poll_addr():
    return [f"v_bfe_u32 v{V_POLL+1}, v{V_DMA}, 4, 6", f"v_lshlrev_b32 v{V_POLL+1}, 2, v{V_POLL+1}"]
def poll_load():
    return poll_addr() + [VM("poll", f"buffer_load_dword v{V_POLL}, v{V_POLL+1}, s[{S_FLG}:{S_FLG+3}], 0 offen sc1")]
def poll_test():
    return [f"v_subrev_u32 v{V_POLL}, s{S_NEED}, v{V_POLL}", f"v_cmp_lt_u32 vcc, 15, v{V_POLL}", "s_nop 0", f"s_and_b32 s{S_TP}, vcc_lo, 0xff"]
def smem_flags():
    return [f"s_buffer_load_dwordx8 s[{S_PT}:{S_PT+7}], s[{S_FLG}:{S_FLG+3}], 0 glc"]
def smem_test():
    l = smem_flags() + ["s_waitcnt lgkmcnt(0)"]
    for i in range(8): l.append(f"s_sub_u32 s{S_PT+i}, s{S_PT+i}, s{S_NEED}")
    for i in range(1, 8): l.append(f"s_max_u32 s{S_PT}, s{S_PT}, s{S_PT+i}")
    return l + [f"s_cmp_lt_u32 s{S_PT}, 16"]
def poll_slow(site):
    l = [f"L_pollslow{site}:"]
    if OPT["stamp"] and site != "P": l += [f"s_add_u32 s{S_LEAD}, s{S_LEAD}, {1 << (3 * site)}"]
    if site != "P":
        l += [f"s_mov_b32 s{S_TP}, 200", f"L_pollsm{site}:"] + smem_test() + [f"s_cbranch_scc1 L_pollok{site}",
              f"s_sub_u32 s{S_TP}, s{S_TP}, 1", f"s_cbranch_scc1 L_pollvec{site}", "s_sleep 1", f"s_branch L_pollsm{site}"]
    l += [f"L_pollvec{site}:",
            f"s_sub_u32 s{S_BUDGET}, s{S_BUDGET}, 1",
            f"s_cbranch_scc1 L_pollgiveup{site}",
            "s_sleep 2",
            f"buffer_load_dword v{V_POLL}, v{V_POLL+1}, s[{S_FLG}:{S_FLG+3}], 0 offen sc1",
            "s_waitcnt vmcnt(0)"] + poll_test() + [
            f"s_cbranch_scc1 L_pollvec{site}",
            f"s_branch L_pollok{site}",
            f"L_pollgiveup{site}:",
            f"s_mov_b32 s{S_BUDGET}, 0",
            f"s_branch L_pollok{site}"]
    return l
def tag_load():
    return [VM("tag", f"buffer_load_dword v{V_POLL}, off, s[{S_DBG}:{S_DBG+3}], s{S_HOFF} sc1")]
def tag_check():
    return [f"v_readfirstlane_b32 s{S_NEED}, v{V_POLL}", f"s_mov_b32 s{S_RET}, 100",
            "L_tagretry:", f"s_cmp_lg_u32 s{S_NEED}, 0", "s_cbranch_scc1 L_tagok",
            f"s_sub_u32 s{S_RET}, s{S_RET}, 1", "s_cbranch_scc1 L_tagslow", "s_sleep 8",
            f"s_buffer_load_dword s{S_NEED}, s[{S_DBG}:{S_DBG+3}], s{S_HOFF} glc", "s_waitcnt lgkmcnt(0)", "s_branch L_tagretry",
            "L_tagok:", f"s_add_u32 s{S_NEED}, s{S_NEED}, 1", f"v_mov_b32 v{V_FV}, s{S_NEED}"]
def first_post():
    return ["s_mov_b64 exec, 1", f"v_mov_b32 v{V_T}, 1", f"v_mov_b32 v{V_T+1}, {RING}",
            f"ds_add_rtn_u32 v{V_T}, v{V_T+1}, v{V_T}", "s_waitcnt lgkmcnt(0)",
            f"v_readfirstlane_b32 s24, v{V_T}", "s_nop 0", "s_cmp_lg_u32 s24, 3", "s_cbranch_scc1 L_nopost",
            f"s_lshl_b32 s{S_RET}, s{S_QB}, 2",
            f"buffer_store_dword v{V_FV}, off, s[{S_FLG}:{S_FLG+3}], s{S_RET} sc1",
            "L_nopost:", "s_mov_b64 exec, -1"]
def poll_smem():
    l = poll_addr() + [f"s_mov_b32 s{S_RET}, 200", "s_waitcnt lgkmcnt(0)"]
    l += [f"s_sub_u32 s{72+i}, s{72+i}, s{S_NEED}" for i in range(8)] + [f"s_max_u32 s72, s72, s{72+i}" for i in range(1, 8)]
    l += ["s_cmp_lt_u32 s72, 16", "s_cbranch_scc1 L_pollokP", "L_pollretry:"] + smem_test()
    l += ["s_cbranch_scc1 L_pollokP",
          f"s_sub_u32 s{S_RET}, s{S_RET}, 1", "s_cbranch_scc1 L_pollslowP", "s_sleep 1", "s_branch L_pollretry",
          "L_pollokP:", f"s_add_u32 s{S_NEED}, s{S_NEED}, 1"]
    return l
def tag_slow():
    return ["L_tagslow:",
            f"s_sub_u32 s{S_BUDGET}, s{S_BUDGET}, 1",
            "s_cbranch_scc1 L_taggiveup",
            "s_sleep 2",
            f"buffer_load_dword v{V_POLL}, off, s[{S_DBG}:{S_DBG+3}], s{S_HOFF} sc1",
            "s_waitcnt vmcnt(0)",
            f"v_readfirstlane_b32 s{S_NEED}, v{V_POLL}", "s_nop 0", f"s_cmp_eq_u32 s{S_NEED}, 0", "s_cbranch_scc1 L_tagslow",
            "s_branch L_tagok",
            "L_taggiveup:",
            f"s_mov_b32 s{S_BUDGET}, 0",
            "s_branch L_tagok"]

def text_of(x):
    if isinstance(x, (W, LG)): return "s_waitcnt"
    if isinstance(x, (VM, DS)): return x.text
    return x
def kind_of(x):
    if isinstance(x, (SIG, CHK)) or (isinstance(x, LG) and x.soft): return "label"
    t = text_of(x)
    if t.endswith(":"): return "label"
    if t.startswith("v_"): return "valu"
    if t.startswith("ds_"): return "ds"
    if t.startswith("buffer_store"): return "store"
    if t.startswith("buffer_"): return "load"
    return "salu"
def cost_of(x):
    k = kind_of(x)
    if k == "label": return 0
    t = text_of(x)
    if k == "store": return 20 if "x4" in t else (12 if "x2" in t else 8)
    if k == "load": return 8
    if t.startswith("ds_write_b128"): return 12
    if t.startswith("v_exp"): return 8
    if t.startswith("s_nop"): return 4 * (int(t.split()[1]) + 1)
    if t.startswith("s_cbranch") or t.startswith("s_branch"): return 12
    if t.startswith("s_barrier"): return 8
    return 4
def gap_time(ops):
    t = 4; prev = None
    for o in ops:
        k = kind_of(o)
        if k == "label": continue
        if k == "salu": t += cost_of(o)
        else: t = max(t, 8) + cost_of(o) + (8 if (k != "valu" and prev == "valu") else 0)
        prev = k
    return t

class Stream:
    def __init__(self, ops, first, last, maxper=99):
        self.ops = list(ops); self.first = first; self.last = last; self.maxper = maxper
        self.total = sum(cost_of(o) for o in self.ops); self.done = 0; self.i = 0

def pack(A, B, C, T, streams, novm=(), nosalu=(), ng=NG):
    out = []; over = 0; lastvm = -99
    pend = {o.name for st in streams for o in st.ops if isinstance(o, SIG)} | {o.name for l in B for o in l if isinstance(o, SIG)}
    placed = set()
    for g in range(ng):
        pend -= placed
        placed |= {o.name for o in B[g] if isinstance(o, SIG)}
        a, b, c, tl = list(A[g]), list(B[g]), list(C[g]), list(T[g])
        cnt = {}; inC = set(); blocked = set()
        while True:
            best = None; bl = None; bsec = None
            for st in streams:
                if st.i >= len(st.ops) or g < st.first: continue
                force = g >= st.last
                o = st.ops[st.i]; k = kind_of(o); cst = cost_of(o)
                if isinstance(o, CHK) and o.name in pend:
                    assert not force, o.name
                    continue
                if k == "label":
                    if isinstance(o, SIG): placed.add(o.name)
                    best = st; bsec = "c" if (id(st) in inC or isinstance(o, SIG)) else "b"; bl = (True, True, 1e9); break
                if (cnt.get(id(st), 0) >= st.maxper or id(st) in blocked) and not force: continue
                if k == "salu" and g in nosalu:
                    assert not force
                    continue
                if k in ("load", "store") and (g in novm or g - lastvm < OPT["vmgap"]) and not force: continue
                if k == "ds" and any(kind_of(x) in ("ds", "load", "store") for x in b) and not force: continue
                if k in ("load", "store", "ds"):
                    sec = "b" if id(st) not in inC and id(st) not in blocked else "c"
                    if sec == "c" and not force: continue
                elif k == "salu" and not a and cnt.get(id(st), 0) == 0 and not any(x is not None for x in b if isinstance(x, (LG, CHK))):
                    sec = "a"
                else: sec = "c"
                tgt = st.total * (g - st.first + 1) / (st.last - st.first + 1)
                lag = tgt - st.done
                if not force:
                    if lag < cst / 2 - OPT["ahead"] and cst: continue
                    trial = (a + [o] if sec == "a" else a) + (b + [o] if sec == "b" else b) + (c + [o] if sec == "c" else c) + tl
                    if gap_time(trial) > 16:
                        if not (lag > 24 and gap_time(trial) <= 20): continue
                        if g % 2 == 0: continue
                key = (force, k in ("load", "store"), lag / max(1, (st.last - g + 1)) ** 0.5)
                if best is None or key > bl: best = st; bl = key; bsec = sec
            if best is None: break
            o = best.ops[best.i]
            {"a": a, "b": b, "c": c}[bsec].append(o)
            if bsec == "c": inC.add(id(best))
            if kind_of(o) != "label":
                if " m0," in text_of(o): blocked.add(id(best))
                if kind_of(o) in ("load", "store"): lastvm = g
                cnt[id(best)] = cnt.get(id(best), 0) + 1
            best.i += 1; best.done += cost_of(o)
        ops = a + b + c + tl
        tt = gap_time(ops)
        if tt > 16: over += tt - 16
        out.append(ops)
    for st in streams: assert st.i == len(st.ops), [text_of(o) for o in st.ops[st.i:]]
    return out, over

NK = 81; NV = 81
SCHED = {
    0: ((0, 6, 23, 40, 57, 72, NK), (0, 12, 40, 66, NV)),
    1: ((0, 0, 19, 38, 57, 76, NK), (0, 6, 37, 69, NV)),
    2: ((0, 0, 20, 40, 60, 80, NK), (0, 6, 38, 70, NV)),
    3: ((0, 0, 20, 40, 61, NK, NK), (0, 8, 38, 70, NV)),
}
def steady(k, last=False):
    s0 = OPT["kst0"]; sd = OPT["sd"]; kc, vc = SCHED[OPT["sch"]]
    gs = [s0, s0 + sd, s0 + 2 * sd, s0 + 3 * sd]
    gs = [g + 4 if GBAR - 2 <= g <= GBAR + 2 else g for g in gs]
    st = lambda w: [(w, j, g) for j, g in enumerate(gs)] + [("dmaw", 0, s0 - OPT["sb"] - 1)]
    pc = OPT["pc"]
    if OPT["plate"]:
        pl2, pl5 = [("pollld", 92, 94)], [("pollld", 84, 94)]
    else:
        pl2, pl5 = [("pollld", 0, 8)], [("pollld", 2, 10)]
    k0s = kc[5] if OPT["sch"] == 3 else None
    t = {
        0: [("post", "kst"), ("cv", "v", vc[1], vc[2], 0, 95), ("ld", "vb", (2, 3), 0, 14), ("ld", "ka", (0, 1, 2, 3), 16, 50), ("dmaw", 20, 74)],
        1: [("cv", "v", vc[2], vc[3], 0, 95), ("ld", "kb", (0, 1), 76, 94)],
        2: [("cv", "v", vc[3], NV, 0, s0 - 3), ("cv", "k", kc[0], kc[1], s0 + 6, 95)] + pl2 + st("vst"),
        3: [("post", "vst"), ("pollchk", pc), ("ld", "kb", (2, 3), 0, 20), ("cv", "k", kc[1], kc[2], 0, 95), ("dmaw", pc + 7, 76)],
        4: [("cv", "k", kc[2], kc[3], 0, 95), ("ld", "va", (0, 1, 2, 3), 0, 44)],
        5: [("cv", "k", kc[3], kc[4], 0, 95)] + pl5 + ([("pf", 60, 76)] if OPT["pf2"] else []),
        6: [("cv", "k", kc[4], kc[5], 0, 95), ("pollchk", pc), ("ld", "vb", (0, 1), 80, 94), ("dmaw", pc + 7, 76)],
        7: [("cv", "k", kc[5], kc[6], 0, s0 - 3), ("cv", "v", vc[0], vc[1], s0 + 6 if kc[5] < NK else 0, 94)] + st("kst"),
    }[k]
    t = [x for x in t if not (x[0] == "cv" and x[2] >= x[3])]
    if last:
        t = [x for x in t if not ((x[0] == "cv" and x[1] == "k") or (x[0] == "ld" and x[1] != "vb") or (x[0] == "ld" and k > 0))]
        t = [("cv", "vl") + x[2:] if x[:2] == ("cv", "v") else x for x in t]
    return t

GBAR = 4 * (24 - D) - 1
POLLSITES = []
def qk_mfma(t0, g):
    qb = (g >> 1) & 3
    F = 2 * (g >> 3) + (g & 1)
    t = t0 + F // 12; s, tb = kfrag(F % 12)
    d = vr(Sq(t, qb, tb), 4)
    c = vr(NEGM(qb), 4) if (s < 2 and g % 2 == 0) else d
    return f"{MF} {d}, {FR(F)}, {Qf(qb,s)}, {c}"
def pv_mfma(t0, db, qb, w, first=False):
    d = ar(O(qb, db), 4)
    return f"{MF} {d}, {vr(P(t0+w,qb),4)}, {FR(2*db+w)}, {'0' if (first and w == 0) else d}"

def gen_iter(it, tasks=(), dma=None, name=None, endops=(), peel=False, extra_sm=False, nostep=False, extra=(), extra_late=()):
    kind = "q" if it % 2 else "p"
    nk = "p" if kind == "q" else "q"
    A = [[] for _ in range(NG)]; B = [[] for _ in range(NG)]; C = [[] for _ in range(NG)]; T = [[] for _ in range(NG)]
    streams = []; novm = set(range(0, NG, 2)); nosalu = set()
    for F in range(24):
        fr = F + D
        B[4 * F].append(frag_read(kind, fr) if fr < 24 else frag_read(nk, fr - 24))
    for F in range(2, 25, 2):
        A[4 * F - 1].append(LG(("f", kind, F + 1) if F < 24 else ("f", nk, 1)))
    smB = softmax_part(it, 1); smA = softmax_part(it + 1, 0)
    if extra_sm: smB = softmax_part(it, 0) + smB
    if kind == "q":
        streams.append(Stream(smB, 0, 50)); streams.append(Stream(smA, 52, 95))
    else:
        streams.append(Stream(smB + smA, 0, 95))
    if endops:
        A[92] += endops[:1]; A[94] += [A[95][0]] + list(endops[1:-1]); A[95] = []; T[95] = list(endops[-1:]); nosalu |= {94, 95}
    if extra: streams.append(Stream(extra, 0, 90))
    if extra_late: streams.append(Stream(extra_late, GBAR + 1, 94))
    if not OPT["prod"]: tasks = ()
    if dma is None:
        w = [t[1:] for t in tasks if t[0] == "dmaw"]
        w = w[0] if w else (0, GBAR - 5)
        p0 = it + 5 if kind == "q" else it + 2
        c_ = "k" if kind == "q" else "v"
        dma = [((c_, p0), (c_, p0 + 1)) + tuple(w)]
    for grp in dma:
        dl = []
        for part, pos in grp[:-2]: dl += dma_tile(part, pos, peel)
        n = max(i for i, x in enumerate(dl) if isinstance(x, VM)) + 1
        streams.append(Stream(dl[:n], grp[-2], grp[-1], maxper=2))
        streams.append(Stream(dl[n:], grp[-1] + 1, min(93 if endops else 95, grp[-1] + 12), maxper=2))
    nj = ((it + 2) // 2) if nk == "q" else (it - 1) // 2
    wtags = [("dk" if nk == "q" else "dv", nj % 4)]
    if not nostep:
        streams.append(Stream(rd_step(nk), 30, GBAR - 3, maxper=1))
    for t in tasks:
        k_ = t[0]
        if k_ == "cv":
            c = {"k": chain_k, "v": chain_v, "vl": lambda: chain_v(True)}[t[1]]()
            streams.append(Stream(cut(c, t[2], t[3]), t[4], t[5]))
        elif k_ in ("kst", "vst"):
            grp = k_st(t[1], BX) if k_ == "kst" else v_st(t[1], BZ)
            g = t[2]; assert g % 4 == 1 and not B[g], g
            if t[1] == 0: B[g].append(CHK("Kdone" if k_ == "kst" else "Vdone"))
            B[g].append(grp[-1]); novm |= set(range(g - OPT["sb"], g + OPT["sa"] + 1))
            if t[1] == 3: B[g].append(SIG("BX" if k_ == "kst" else "BZ"))
            if grp[:-1]: streams.append(Stream(grp[:-1], max(0, g - 5), g - 1))
        elif k_ in ("ld", "ldn"):
            ld, h, buf = HT[t[1]]
            adv = ({"ka": k_adv(), "va": v_adv()}.get(t[1], []) if k_ == "ld" else [])
            chk = {"ka": [CHK("BX")], "va": [CHK("BZ")]}.get(t[1], [CHK(f"BY{j>>1}") for j in t[2] if j % 2 == 0])
            streams.append(Stream(chk + adv + ld(h, buf, t[1], t[2]), t[3], t[4], maxper=1))
        elif k_ == "post":
            wtags += list(t[1:])
            streams.append(Stream(flag_post(), GBAR + 1, 93, maxper=1))
        elif k_ == "pf":
            streams.append(Stream([VM("pf", f"buffer_load_dword v15, v{V_DMA}, s[{S_DBG}:{S_DBG+3}], s{S_HOFF} offen")], t[1], t[2]))
        elif k_ == "pollld": streams.append(Stream(poll_load(), t[1], t[2], maxper=1))
        elif k_ in ("pollchk", "pollchk0"):
            ps = len(POLLSITES); POLLSITES.append(ps)
            g = t[1]; assert g % 4 == 1 and not (GBAR - 6 <= g <= GBAR)
            pt = poll_test()
            A[g] += [W("poll")]; T[g] += pt[:2]; novm |= {g, g + 4}
            A[g + 3] += [pt[3]]; A[g + 4] += [f"s_cbranch_scc1 L_pollslow{ps}", f"L_pollok{ps}:"]; nosalu |= {g + 3, g + 4}
            if k_ == "pollchk": A[g + 5] += [f"s_add_u32 s{S_NEED}, s{S_NEED}, 1"]
    A[GBAR - 1] += [W(*wtags)]; novm |= {GBAR}
    A[GBAR - 2] += A[GBAR]; A[GBAR] = ["s_barrier"]
    if endops:
        for st_ in streams: st_.last = min(st_.last, 94)
    fill, over = pack(A, B, C, T, streams, novm, nosalu)
    if over: print(f"iter {name or it}: over budget by {over} cycles", file=sys.stderr)
    out = [f"; ---- iteration {name or it}"]
    for g in range(NG):
        if kind == "q": out.append(qk_mfma(it + 1, g))
        else: out.append(pv_mfma(it - 2, g >> 3, (g >> 1) & 3, g & 1, first=(peel and it == 2)))
        out += fill[g]
    return with_nop(out)

GA = [60, 61]; BP = 62; RD2 = [9, 10, 11]
RLQ = [48, 52, 56, 128]
RT = [20, 23]
def epi_addr():
    ta = 63
    return [f"v_bfe_u32 v{ta}, v{V_DMA}, 4, 6", f"v_and_b32 v{BP}, 48, v{ta}", f"v_and_b32 v{ta}, 15, v{ta}",
            f"v_mul_u32_u24 v{GA[1]}, 96, v{BP}", f"v_lshl_add_u32 v{GA[0]}, v{ta}, 4, v{GA[1]}", f"v_lshl_add_u32 v{GA[1]}, v{ta}, 3, v{GA[1]}",
            f"s_lshl_b32 s24, s{S_QB}, 2", f"s_add_u32 s24, s24, s{S_WAVE}", f"s_mul_i32 s24, s24, {STAGE}"] + \
           [f"s_add_u32 s{S_PK0+i}, s24, {6144*i}" for i in range(4)]
def epi_l(qs):
    fl = []
    for sw in ("v_permlane16_swap_b32", "v_permlane32_swap_b32"):
        fl += [f"v_mov_b32 v{RT[i]}, v{V_L[q]}" for i, q in enumerate(qs)] + ["s_nop 0"]
        fl += [f"{sw} v{V_L[q]}, v{RT[i]}" for i, q in enumerate(qs)] + ["s_nop 0"]
        fl += [f"v_add_f32 v{V_L[q]}, v{V_L[q]}, v{RT[i]}" for i, q in enumerate(qs)]
    fl += [f"v_rcp_f32 v{RT[i]}, v{V_L[q]}" for i, q in enumerate(qs)] + ["s_nop 0"]
    return fl + [DS(("rl", q, i), f"ds_bpermute_b32 v{RLQ[q]+i}, v{BP}, v{RT[j]} offset:{4*i}") for j, q in enumerate(qs) for i in range(4)]
def epi_q(qb, temps, pk):
    p = [LG(("rl", qb, 3))]
    for i in range(4):
        ob = temps[(4 * qb + i) % len(temps)]
        rl = RLQ[qb] + i
        p += [f"v_accvgpr_read_b32 v{ob+db}, a{O(qb,db)+i}" for db in range(12)]
        if pk: p += [f"v_pk_mul_f32 v[{ob+2*j}:{ob+2*j+1}], v[{ob+2*j}:{ob+2*j+1}], v[{rl&~1}:{(rl&~1)+1}] op_sel:[0,{rl&1}] op_sel_hi:[1,{rl&1}]" for j in range(6)]
        else: p += [f"v_mul_f32 v{ob+j}, v{ob+j}, v{rl}" for j in range(12)]
        p += [f"v_cvt_pk_bf16_f32 v{ob+j}, v{ob+2*j}, v{ob+2*j+1}" for j in range(6)]
        p += [f"buffer_store_dwordx4 v[{ob}:{ob+3}], v{GA[0]}, s[{S_OUT}:{S_OUT+3}], s{S_PK0+qb} offen offset:{384*i}{OF}",
              f"buffer_store_dwordx2 v[{ob+4}:{ob+5}], v{GA[1]}, s[{S_OUT}:{S_OUT+3}], s{S_PK0+qb} offen offset:{384*i+256}{OF}"]
    return p

def gen_tail():
    passes = [(60, (0, 1)), (62, (0, 1)), (60, (2, 3)), (62, (2, 3))]
    def tg(i): return ("f", "p", i) if i < 24 else ("f", "t", i)
    def rd(i):
        ps, f = divmod(i, 24)
        return frag_read("p", f, V_RDV if passes[ps][0] == 60 else RD2, tg(i))
    def run(ps, fill, lim):
        t0, qbs = passes[ps]
        out = []; fill = list(fill)
        for db in range(12):
            for i, (qb, w) in enumerate([(q, w) for q in qbs for w in (0, 1)]):
                out.append(pv_mfma(t0, db, qb, w))
                cur = []
                gi = 24 * ps + 2 * db
                if i in (0, 2) and gi + (i >> 1) + D < 96: cur.append(rd(gi + (i >> 1) + D))
                if i == 3 and gi + 3 < 96: cur.append(LG(tg(gi + 3)))
                L_ = 16 if i % 2 == 0 else lim
                while fill and gap_time(cur + [fill[0]]) <= L_ + (12 if (text_of(fill[0]).startswith(("buffer", "ds_")) and i % 2) else 0):
                    cur.append(fill.pop(0))
                out += cur
        return out, fill
    thr = f"s_mov_b32 s{S_TMP}, 0x{f32bits(2.0**OPT['thr']):08x}"
    seq = []
    c, r = run(0, softmax_part(63, 0), 16); seq += c + r + ["s_nop 1"]
    c, r = run(1, [f"v_max_f32 v{RT[0]}, v{V_L[0]}, v{V_L[1]}", thr, f"v_cmp_lt_f32 vcc, s{S_TMP}, v{RT[0]}"] + softmax_part(62, 1), 16)
    seq += c + r + ["s_cbranch_vccnz L_slow"]
    tempsA = [BX, BX + 12, BZ, 132]
    must = softmax_part(63, 1) + [f"v_max_f32 v{RT[0]}, v{V_L[2]}, v{V_L[3]}", f"v_cmp_lt_f32 vcc, s{S_TMP}, v{RT[0]}"]
    rest = epi_l((0, 1)) + epi_q(0, tempsA, False) + epi_q(1, tempsA, False)
    c, r = run(2, must + rest, OPT["tden"])
    nm = max(0, len(r) - len(rest)); c += r[:nm]; r = r[nm:]
    seq += c + ["s_nop 1", "s_cbranch_vccnz L_slow"]
    c, r = run(3, r + epi_l((2, 3)), OPT["tden"]); seq += c + r
    tempsB = [64 + 12 * i for i in range(5)]
    seq += ["s_nop 4"] + epi_q(2, tempsB, True) + epi_q(3, tempsB, True)
    return seq
def slow_epi():
    seq = epi_l((0, 1)) + epi_l((2, 3))
    for q in range(4): seq += epi_q(q, [64 + 12 * i for i in range(5)], True)
    return seq

def xlane(op, t):
    l = []
    for sw in ("v_permlane16_swap_b32", "v_permlane32_swap_b32"):
        l += [f"v_mov_b32 v{t+1}, v{t}", "s_nop 1", f"{sw} v{t}, v{t+1}", "s_nop 1", f"{op} v{t}, v{t}, v{t+1}"]
    return l

def gen_slow():
    KF = 64; VF = 112; SS = 160; PP = 224; M = [240, 241, 242, 243]; KA = [244, 245]; LA = [246, 247, 248]; AL = 250; t = V_T
    p = ["L_slow:", "s_waitcnt vmcnt(0) lgkmcnt(0)", "s_nop 15"]
    for i in range(192): p.append(f"v_accvgpr_write_b32 a{i}, 0")
    for q in range(4): p += [f"v_mov_b32 v{V_L[q]}, 0", f"v_mov_b32 v{M[q]}, 0xff7fffff"]
    p += [f"v_subrev_u32 v{KA[i]}, s{S_RK}, v{V_RDK[i]}" for i in range(2)] + [f"v_subrev_u32 v{LA[i]}, s{S_RV}, v{V_RDV[i]}" for i in range(3)]
    p += [f"s_mov_b32 s{S_PT}, 0", "L_slowloop:"]
    p += [f"s_add_u32 s{S_PT+1}, s{S_PT}, 6144", f"s_add_u32 s{S_PT+2}, s{S_PT}, 12288"]
    for f in range(12):
        s, tb = kfrag(f)
        p.append(f"buffer_load_dwordx4 v[{KF+4*f}:{KF+4*f+3}], v{KA[s&1]}, s[{S_WS}:{S_WS+3}], s{S_PT+tb} offen offset:{(s>>1)*128} sc1")
    for db in range(12):
        a, off = vfrag(db)
        p.append(f"buffer_load_dwordx4 v[{VF+4*db}:{VF+4*db+3}], v{LA[a]}, s[{S_WS}:{S_WS+3}], s{S_PT+2} offen offset:{off} sc1")
    p.append("s_waitcnt vmcnt(12)")
    for f in range(12):
        s, tb = kfrag(f)
        for qb in range(4):
            d = vr(SS + 8 * qb + 4 * tb, 4)
            p.append(f"{MF} {d}, v[{KF+4*f}:{KF+4*f+3}], {Qf(qb,s)}, {'0' if s == 0 else d}")
    p.append("s_nop 9")
    for qb in range(4):
        sb = SS + 8 * qb
        p += [f"v_max3_f32 v{t}, v{sb}, v{sb+1}, v{sb+2}", f"v_max3_f32 v{t}, v{t}, v{sb+3}, v{sb+4}",
              f"v_max3_f32 v{t}, v{t}, v{sb+5}, v{sb+6}", f"v_max3_f32 v{t}, v{t}, v{sb+7}, v{M[qb]}"]
        p += xlane("v_max_f32", t)
        p += [f"v_sub_f32 v{t+1}, v{M[qb]}, v{t}", f"v_exp_f32 v{t+1}, v{t+1}", f"v_mov_b32 v{M[qb]}, v{t}"]
        p += [f"ds_bpermute_b32 v{AL+i}, v{BP}, v{t+1} offset:{4*i}" for i in range(4)]
        for i in range(8): p.append(f"v_sub_f32 v{sb+i}, v{sb+i}, v{t}")
        for i in range(8): p.append(f"v_exp_f32 v{sb+i}, v{sb+i}")
        p.append(f"v_mul_f32 v{V_L[qb]}, v{V_L[qb]}, v{t+1}")
        for i in range(8): p.append(f"v_add_f32 v{V_L[qb]}, v{V_L[qb]}, v{sb+i}")
        for i in range(4): p.append(f"v_cvt_pk_bf16_f32 v{PP+4*qb+i}, v{sb+2*i}, v{sb+2*i+1}")
        p.append("s_waitcnt lgkmcnt(0)")
        for i in range(48):
            a = O(qb, 0) + i; tt = t + 2 + (i % 2)
            p += [f"v_accvgpr_read_b32 v{tt}, a{a}", f"v_mul_f32 v{tt}, v{tt}, v{AL+i%4}", f"v_accvgpr_write_b32 a{a}, v{tt}"]
    p += ["s_waitcnt vmcnt(0)", "s_nop 1"]
    for db in range(12):
        for qb in range(4):
            d = ar(O(qb, db), 4)
            p.append(f"{MF} {d}, v[{PP+4*qb}:{PP+4*qb+3}], v[{VF+4*db}:{VF+4*db+3}], {d}")
    p += [f"s_add_u32 s{S_PT}, s{S_PT}, {STAGE}", f"s_cmp_lt_u32 s{S_PT}, {HEADBYTES}", "s_nop 7", "s_cbranch_scc1 L_slowloop"]
    e = slow_epi(); resolve(e)
    return p + fin(e) + ["s_branch L_fin"]

def resolve(seq, check=True):
    vm = []; ds = []; done = 0; tok = set(); where = ""; nm = 0
    for x in seq:
        if isinstance(x, str) and x.startswith("; ----"): where = x; nm = 0
        if isinstance(x, str) and x.startswith("v_mfma"): nm += 1
        if isinstance(x, VM): vm.append(x.tag)
        elif isinstance(x, DS): ds.append(x.tag)
        elif isinstance(x, W):
            for tag in x.tags:
                idx = [i for i, t in enumerate(vm) if t == tag]
                if idx:
                    n = len(vm) - 1 - idx[-1]
                    x.n = n if x.n is None else min(x.n, n)
        elif isinstance(x, LG):
            idx = [i for i, t in enumerate(ds) if t == x.tag]
            assert idx, x.tag
            n = len(ds) - 1 - idx[-1]
            x.n = n if x.n is None else min(x.n, n)
            if idx[-1] >= done:
                x.need = True
                if x.soft: print(f"soft LDS wait needed: {x.tag} n={n} {where} gap {nm}", file=sys.stderr)
            done = max(done, idx[-1] + 1)
        elif isinstance(x, SIG): tok.add(x.name)
        elif isinstance(x, CHK):
            assert x.name in tok or not OPT["prod"], f"token {x.name} missing {where} gap {nm}"
            tok.discard(x.name)
        else:
            assert not x.startswith("ds_") or "lgkmcnt(0)" in " ".join(y for y in seq[seq.index(x):seq.index(x)+3] if isinstance(y, str)), x
            if "lgkmcnt(0)" in x: done = len(ds)
def fin(seq):
    out = []
    for x in seq:
        if isinstance(x, W):
            if not OPT["prod"] and x.n is None: continue
            assert x.n is not None, x.tags
            out.append(f"s_waitcnt vmcnt({min(x.n, 63)})")
        elif isinstance(x, LG):
            if x.need:
                out.append(f"s_waitcnt lgkmcnt({min(x.n, 15)})")
            elif not x.soft: out.append("s_nop 0")
        elif isinstance(x, (VM, DS)): out.append(x.text)
        elif isinstance(x, (SIG, CHK)): pass
        else: out.append(x)
    return out
def srd(s, lo, off_s, size):
    return [f"s_add_u32 s{s}, s{lo}, s{off_s}", f"s_addc_u32 s{s+1}, s{lo+1}, 0", f"s_mov_b32 s{s+2}, {size}", f"s_mov_b32 s{s+3}, 0x20000"]
def sprinkle(code, extra):
    out = []; n = len(code); m = len(extra); j = 0
    for i, x in enumerate(code):
        while j < m and (i + 1) * m > j * n:
            out += extra[j]; j += 1
        if isinstance(x, list): out += x
        else: out.append(x)
    for g in extra[j:]: out += g
    return out

def gen_prologue():
    p = []
    K = f"{NAME}_kernel"
    p += [f"{K}:", "s_load_dwordx16 s[40:55], s[0:1], 0", "s_getpc_b64 s[60:61]", "L_pc:",
          "s_movk_i32 s62, 0x4000", "s_lshl_b32 s63, 1, 17", "v_lshlrev_b32 v31, 6, v0",
          VM("pf", "buffer_load_dword v15, v31, s[60:63], 0 offen"),
          "s_lshr_b32 s24, s2, 8", "s_cbranch_scc1 L_done", "s_load_dwordx4 s[16:19], s[0:1], 64", "v_lshlrev_b32 v30, 4, v0"]
    if OPT["stamp"]:
        p += ["s_mov_b64 s[100:101], s[0:1]" if OPT["stamp"] == 8 else "s_memtime s[100:101]", "s_memrealtime s[98:99]"]
    p += ["v_and_b32 v25, 63, v0", "v_lshrrev_b32 v24, 6, v0", "s_movk_i32 s24, 5120",
          "v_mul_u32_u24 v26, 43, v25", f"v_mad_u32_u24 v{V_VLD}, v24, s24, v30", "s_movk_i32 s24, 384", "v_lshrrev_b32 v26, 10, v26",
          "s_and_b32 s22, s2, 7", f"s_mul_i32 s{S_TMP}, s22, {264 if OPT['rot'] else 256}", f"v_mad_u32_u24 v{V_KLD}, v26, s24, v{V_VLD}",
          "s_andn2_b32 s23, s2, 63", f"s_bfe_u32 s{S_QB}, s2, 0x30003", f"s_add_u32 s{S_TMP}, s{S_TMP}, s23", f"s_add_u32 s{S_TMP}, s{S_TMP}, s{S_QB}",
          f"s_lshr_b32 s23, s{S_TMP}, 1", "s_mulk_i32 s23, 384", f"s_mul_i32 s24, s{S_TMP}, {STAGE}", "v_lshl_add_u32 v27, v25, 3, s23",
          "s_addk_i32 s24, 2048", "s_mov_b32 exec_hi, 0xffff"]
    p += ["s_waitcnt lgkmcnt(0)"] + vstamp("kernarg")
    p += [VM("ksc", "global_load_dwordx2 v[32:33], v27, s[46:47]"), VM("ksc", "global_load_dwordx2 v[34:35], v27, s[48:49]"),
          "s_add_u32 s56, s42, s24", "s_addc_u32 s57, s43, 0"]
    for h in range(2):
        p += [VM(("k0" + "ab"[h], j >> 1), f"global_load_dwordx4 v[{64+16*h+4*j}:{67+16*h+4*j}], v{V_KLD}, s[56:57] offset:{1536*j+384*h-2048}{NTKV}") for j in range(4)]
    p += vstamp("iss k") + ["s_add_u32 s58, s44, s24", "s_addc_u32 s59, s45, 0"]
    vl = [VM(("v0" + "ab"[r >> 2], (r >> 1) & 1), f"global_load_dwordx4 v[{96+4*r}:{99+4*r}], v{V_VLD}, s[58:59] offset:{768*r-2048}{NTKV}") for r in range(8)]
    nv = OPT["nv"]
    p += vl[:nv]
    p += [f"v_readfirstlane_b32 s{S_WAVE}, v24", f"s_lshl_b32 s23, s{S_TMP}, 6", f"s_lshr_b32 s{S_HEAD}, s{S_TMP}, 6",
          f"s_lshl4_add_u32 s23, s{S_WAVE}, s23",
          "s_load_dwordx4 s[64:67], s[50:51], s23", "s_load_dwordx4 s[68:71], s[52:53], s23"]
    p += [f"s_lshl_b32 s22, s{S_HEAD}, 10", f"s_add_u32 s22, s22, {FLAG_OFF}", f"s_or_b32 s{S_LEAD}, s{S_QB}, s{S_WAVE}", "s_cbranch_scc1 L_notleader0",
          "s_load_dwordx8 s[72:79], s[18:19], s22 glc", "L_notleader0:"]
    p += ["s_mov_b32 exec_hi, -1"]
    pv = len(p)
    VQD = 232
    p += [f"s_mul_i32 s24, s{S_HEAD}, 786432"] + srd(S_Q, 40, 24, 786432) + srd(S_OUT, 54, 24, 786432)
    p += [f"s_lshl2_add_u32 s24, s{S_QB}, s{S_WAVE}", f"s_mul_i32 s24, s24, {STAGE}",
          f"s_mul_i32 s{S_QL}, s{S_WAVE}, 18432", f"s_add_u32 s{S_QL}, s{S_QL}, {3*STAGE}"]
    p += [f"v_add_u32 v{VQD+b}, {64*b}, v25" for b in range(6)]
    p += [f"v_mul_u32_u24 v{VQD+8+b}, 2731, v{VQD+b}" for b in range(6)]
    p += [f"v_bfe_u32 v{VQD+8+b}, v{VQD+8+b}, 17, 3" for b in range(6)]
    p += [f"v_xor_b32 v{VQD+b}, v{VQD+b}, v{VQD+8+b}" for b in range(6)]
    p += [f"v_lshl_add_u32 v{VQD+b}, v{VQD+b}, 4, s24" for b in range(6)]
    def q_dma(lst):
        l = []
        for i in lst:
            a, b = divmod(i, 6)
            l.append(([f"s_waitcnt vmcnt({OPT['win'] + (OPT['wins'] if i < n3 + OPT['qd'] else 0)})"] if (OPT["win"] and i >= n2) else []) + [f"s_add_u32 m0, s{S_QL}, {(a%3)*6144 + b*1024}", f"s_movk_i32 s24, {a*6144}",
                      VM(("q", a), f"buffer_load_dwordx4 v{VQD+b}, s[{S_Q}:{S_Q+3}], s24 offen{NTQ} lds")])
        return l
    flat = lambda gs: [x for g in gs for x in g]
    n0 = OPT["q0"]; n1 = n0 + OPT["qa"]; n2 = n1 + OPT["qb"]; n3 = n2 + OPT["qc"]
    assert n3 <= 18
    QD = 128
    def kprep(q, s_, z_):
        return [f"v_lshlrev_b32 v{q}, 16, v{s_}", f"v_and_b32 v{q+1}, s{S_MASK}, v{s_}", f"v_lshlrev_b32 v{q+2}, 16, v{z_}", f"v_and_b32 v{q+3}, s{S_MASK}, v{z_}"]
    t0 = [f"s_mov_b32 s{S_MASK}, 0xffff0000", f"s_mov_b32 s{S_CS}, 0x{f32bits(CSCALE):08x}",
          "v_mul_u32_u24 v27, 24, v26", "v_sub_u32 v27, v25, v27",
          f"v_lshlrev_b32 v{V_KTAB}, 4, v27", f"v_add_u32 v{V_KTAB}, {TAB}, v{V_KTAB}",
          "v_mul_u32_u24 v36, 768, v26", f"v_add_u32 v36, v36, v{V_KTAB}",
          W("ksc")] + kprep(QD, 32, 34) + kprep(QD + 4, 33, 35)
    t0 += [f"v_mul_f32 v{QD+4*u+x}, s{S_CS}, v{QD+4*u+x}" for u in range(2) for x in range(2)]
    t0 += [f"v_mul_f32_e64 v{QD+4*u+2+x}, -v{QD+4*u+2+x}, v{QD+4*u+x}" for u in range(2) for x in range(2)]
    t0 += [["s_mov_b32 exec_hi, 0xffff"] + [DS("t0w", f"ds_write_b128 v36, v[{QD+4*i}:{QD+4*i+3}] offset:{384*i}") for i in range(2)] + ["s_mov_b32 exec_hi, -1"]]
    t0 += [DS("t0r", f"ds_read_b128 v[{QD+4*u}:{QD+4*u+3}], v{V_KTAB} offset:{384*u}") for u in range(4)]
    setup0 = [f"v_mov_b32 v{V_T}, 0", f"v_mov_b32 v{V_T+1}, {RING}", DS("cnt", f"ds_write_b32 v{V_T+1}, v{V_T}")]
    setup = ["v_lshrrev_b32 v48, 1, v26", "v_lshlrev_b32 v48, 30, v48",
          "v_lshlrev_b32 v31, 4, v25", "v_mul_u32_u24 v30, 3072, v24", f"v_add_u32 v{V_DMA}, v30, v31",
          "v_lshl_add_u32 v49, v24, 2, v26", "v_mul_u32_u24 v49, 384, v49", "v_lshlrev_b32 v50, 1, v24", "v_xor_b32 v50, v27, v50",
          "v_lshl_add_u32 v49, v50, 4, v49", f"v_or_b32 v{V_KST}, v49, v48", f"v_xor_b32 v{V_KA}, 16, v{V_KST}",
          "v_lshrrev_b32 v49, 5, v25", "v_sub_u32 v49, 1, v49", "v_and_b32 v49, v49, v24", "v_lshlrev_b32 v49, 4, v49",
          f"v_xor_b32 v49, v49, v{V_DMA}", "v_add_u32 v49, 12288, v49", f"v_or_b32 v{V_VST}, v49, v48",
          f"s_mul_i32 s{S_KW}, s{S_QB}, {STAGE}", f"s_add_u32 s{S_KW2}, s{S_KW}, 6144", f"s_mov_b32 s{S_VW}, s{S_KW}",
          f"s_mul_i32 s{S_RET}, s{S_HEAD}, {WSHEAD}"]
    kv_or = [f"v_or_b32 v{V_KLD}, v{V_KLD}, v48", f"v_or_b32 v{V_VLD}, v{V_VLD}, v48"]
    p += setup0 + t0 + setup
    p[pv:] = sprinkle(p[pv:], [["s_mov_b32 exec_hi, 0xffff", x, "s_mov_b32 exec_hi, -1"] for x in vl[nv:]])
    p += vstamp("iss v") + kv_or + flat(q_dma(range(0, n0))) + vstamp("iss q0") + ["s_waitcnt lgkmcnt(0)"]
    p += srd(S_WS, 18, S_RET, HEADBYTES)
    p += srd(S_FLG, 18, 22, 32)
    p += [f"s_mov_b32 s{S_DBG}, s16", f"s_mov_b32 s{S_DBG+1}, s17", f"s_movk_i32 s{S_DBG+2}, 256", f"s_mov_b32 s{S_DBG+3}, s63", f"s_lshl_b32 s{S_HOFF}, s{S_HEAD}, 3"]
    p += [f"s_cmp_lg_u32 s{S_LEAD}, 0", "s_cbranch_scc1 L_notleader", "s_mov_b32 s24, 1"]
    for i in range(8):
        p += [f"s_lshr_b32 s{72+i}, s{72+i}, 8", f"s_min_u32 s{72+i}, s{72+i}, 31", f"s_bitset1_b32 s24, s{72+i}"]
    p += ["s_ff0_i32_b32 s24, s24", "s_lshl_b32 s24, s24, 8", f"v_mov_b32 v{V_POLL}, s24",
          "s_mov_b64 exec, 1", f"buffer_store_dword v{V_POLL}, off, s[{S_DBG}:{S_DBG+3}], s{S_HOFF} sc1", "s_mov_b64 exec, -1",
          "L_notleader:"]
    kc = []
    for h, buf in ((0, 64), (1, 80)):
        for jp in range(2):
            kc += [W(("k0a" if h == 0 else "k0b", jp))] + k_unit(h, buf, 64, jp, 0, QD + 8 * h) + k_unit(h, buf, 64, jp, 1, QD + 8 * h + 4)
    p += sprinkle(kc, q_dma(range(n0, n1))) + vstamp("kcv")
    p += [k_st(j, 64, "st0")[-1] for j in range(4)]
    p += ["s_mov_b32 exec_hi, 0xffff"] + [DS("own", f"ds_write_b128 v{V_KA if j & 1 else V_KST}, v[{64+4*j}:{64+4*j+3}] offset:{(j&1)*768+(j>>1)*6144}") for j in range(4)] + ["s_mov_b32 exec_hi, -1"]
    p += vstamp("kst")
    vc = []
    for u in range(4):
        q = QD + 4 * u
        vc += [f"s_lshl_b32 s57, s{64+u}, 16", f"s_and_b32 s58, s{64+u}, s{S_MASK}", f"v_mov_b32 v{q}, s57", f"v_mov_b32 v{q+1}, s58",
               f"s_lshl_b32 s57, s{68+u}, 16", f"s_and_b32 s58, s{68+u}, s{S_MASK}", f"v_mul_f32_e64 v{q+2}, -s57, v{q}", f"v_mul_f32_e64 v{q+3}, -s58, v{q+1}"]
    vc += [W(("v0a", 0))] + v_unit(96, 0, QD) + [W(("v0a", 1))] + v_unit(96, 1, QD + 4) + v_pack(0, 96, 96, V_INPLACE)
    vc += [W(("v0b", 0))] + v_unit(112, 0, QD + 8) + [W(("v0b", 1))] + v_unit(112, 1, QD + 12) + v_pack(1, 112, 96, V_INPLACE)
    p += sprinkle(vc, q_dma(range(n1, n2))) + vstamp("vcv")
    p += [x for e in range(4) for x in v_st(e, 96, "st0")]
    p += ["s_mov_b32 exec_hi, 0xffff"] + [DS("own", f"ds_write_b128 v{V_VST}, v[{96+4*e}:{96+4*e+3}] offset:{STAGE - 12288 + e*768}") for e in range(4)] + ["s_mov_b32 exec_hi, -1"]
    p += vstamp("vst")
    s2 = [f"s_lshl_b32 s{S_RET}, s{S_QB}, 2", f"v_lshl_add_u32 v{V_FLAG}, v0, 2, s{S_RET}", "v_cmp_lt_u32 vcc, 0, v0", "v_mov_b32 v30, 0x40000000",
          f"s_mov_b32 s{S_BUDGET}, 100000", f"v_cndmask_b32 v{V_FLAG}, v{V_FLAG}, v30, vcc"]
    s2 += [f"s_mul_i32 s{S_RET}, s{S_HEAD}, {HEADBYTES}"] + [srd(S_QK, 42, S_RET, HEADBYTES), srd(S_QV, 44, S_RET, HEADBYTES)]
    s2 += [f"s_and_b32 s{S_PK0}, s{S_TMP}, 63", f"s_mul_i32 s{S_PK0}, s{S_PK0}, {STAGE}", f"s_mov_b32 s{S_PV0}, s{S_PK0}"]
    s2 += [f"s_mul_i32 s{S_DMK}, s{S_WAVE}, 3072", f"s_add_u32 s{S_DMK}, s{S_DMK}, 12288", f"s_add_u32 s{S_DMV}, s{S_DMK}, {STAGE}",
          f"s_add_u32 s{S_RET}, s{S_QB}, 1", f"s_and_b32 s{S_RET}, s{S_RET}, 7", f"s_mul_i32 s{S_GOFFK}, s{S_RET}, {STAGE}", f"s_add_u32 s{S_GOFF}, s{S_GOFFK}, 12288",
          f"s_mov_b32 s{S_RK}, 0", f"s_mov_b32 s{S_RV}, {STAGE}"]
    s2 += ["v_and_b32 v26, 15, v25", "v_lshrrev_b32 v49, 4, v25", "v_bfe_u32 v28, v25, 1, 3",
           "v_xor_b32 v29, v49, v28", "v_mul_u32_u24 v30, 384, v26", f"v_lshl_add_u32 v{V_RDK[0]}, v29, 4, v30",
           f"v_xor_b32 v{V_RDK[1]}, 64, v{V_RDK[0]}"]
    s2 += [f"v_mul_u32_u24 v50, 3072, v49", f"v_add_u32 v50, {STAGE}, v50", "v_and_b32 v51, 1, v49", "v_lshl_add_u32 v51, v26, 1, v51",
           f"v_lshl_add_u32 v{V_RDV[0]}, v51, 4, v50", f"v_xor_b32 v{V_RDV[1]}, 16, v{V_RDV[0]}",
           f"v_lshl_add_u32 v{V_RDV[2]}, v26, 4, v50", f"v_add_u32 v{V_RDV[2]}, 512, v{V_RDV[2]}"]
    s2 += ["v_lshrrev_b32 v29, 1, v49", "v_xor_b32 v29, v29, v28", "v_lshl_add_u32 v31, v29, 4, v30",
           "v_and_b32 v29, 1, v49", "v_lshl_add_u32 v31, v29, 3, v31"]
    s2 += [f"v_xor_b32 v{32+kk}, {32*kk}, v31" for kk in range(4)] + [f"v_add_u32 v{32+kk}, s{S_QL}, v{32+kk}" for kk in range(4)]
    s2 += [f"v_mov_b32 v{V_L[q]}, 0" for q in range(4)]
    qd = [[f"v_mov_b32 v{V_POLL}, 0"] + tag_load()] + q_dma(range(n2, n3))
    p += sprinkle(s2, qd) + vstamp("iss s2")
    pf2 = ["s_mov_b32 s62, L_slow-L_pc", "s_bfe_u32 s24, s2, 0x20003", "s_add_u32 s24, s24, 1", "s_lshl_b32 s24, s24, 14", "v_lshlrev_b32 v15, 6, v0",
           VM("pf", "buffer_load_dword v15, v15, s[60:63], s24 offen")]
    TR = 80
    tl = [f"s_lshl_b32 s24, s{S_WAVE}, 4", f"s_add_u32 s24, s24, s{S_TMP}",
          f"s_and_b32 s58, s24, 63", f"s_add_u32 s24, s24, 8", "s_and_b32 s57, s24, 63", f"s_andn2_b32 s24, s{S_TMP}, 63",
          "s_or_b32 s58, s58, s24", "s_or_b32 s57, s57, s24",
          "v_mov_b32 v37, s58", "v_mov_b32 v38, s57", "v_cmp_lt_u32 vcc, 15, v25",
          "s_lshr_b32 s58, s58, 1", "s_lshr_b32 s57, s57, 1", "s_mulk_i32 s58, 384", "s_mulk_i32 s57, 384",
          "v_cndmask_b32 v37, v37, v38, vcc", "v_lshl_add_u32 v38, v25, 3, s58", "v_lshl_add_u32 v39, v25, 3, s57",
          "v_lshlrev_b32 v37, 6, v37", "v_lshl_add_u32 v37, v26, 2, v37", "s_mov_b32 exec_hi, 0xffff"]
    for x in range(2):
        tl += [VM("tab", f"global_load_dwordx2 v[{TR+4*x+2*i}:{TR+4*x+2*i+1}], v{38+x}, s[{46+2*i}:{47+2*i}]") for i in range(2)]
    tl += ["s_mov_b32 exec_hi, 0"] + [VM("tab", f"global_load_dword v{TR+8+i}, v37, s[{50+2*i}:{51+2*i}]") for i in range(2)] + ["s_mov_b32 exec_hi, -1"]
    tc = [W("tab")]
    for x in range(2):
        for i in range(2): tc += kprep(112 + 8 * x + 4 * i, TR + 4 * x + i, TR + 4 * x + 2 + i)
    tc += kprep(92, TR + 8, TR + 9)
    tc += [f"v_mul_f32 v{112+4*u+x}, s{S_CS}, v{112+4*u+x}" for u in range(4) for x in range(2)]
    tc += [f"v_mul_f32_e64 v{q+2+x}, -v{q+2+x}, v{q+x}" for q in (112, 116, 120, 124, 92) for x in range(2)]
    tc += [f"s_mul_i32 s57, s{S_WAVE}, {2*TS}", "v_add_u32 v36, s57, v36", f"s_add_u32 s57, s57, {TAB}", "v_lshrrev_b32 v37, 4, v25",
           f"v_mul_u32_u24 v37, {TS}, v37", "v_lshl_add_u32 v37, v26, 4, v37", "v_add_u32 v37, s57, v37",
           ]
    tc += [["s_mov_b32 exec_hi, 0xffff"] + [DS("tabw", f"ds_write_b128 v36, v[{112+8*x+4*i}:{115+8*x+4*i}] offset:{TS*x+384*i}") for x in range(2) for i in range(2)] +
           ["s_mov_b32 exec_hi, 0", DS("tabw", "ds_write_b128 v37, v[92:95] offset:1536"), "s_mov_b32 exec_hi, -1"],
           f"v_add_u32 v{V_KTAB}, {TS}, v{V_KTAB}",
           f"s_lshl_b32 s57, s{S_WAVE}, 6", f"s_add_u32 s57, s57, {TAB+TS+1536}", f"v_mov_b32 v{V_VTAB}, s57"]
    KF = 144
    tq = 48
    def q_read(qb):
        l = [W(("q", qb))] + vstamp(f"q{qb}")
        for s in range(6):
            for h in range(2):
                sp = s + 6 * h
                l.append(DS("qr", f"ds_read_b64 {Qf(qb,s,h)}, v{32+(sp&3)} offset:{(qb%3)*6144 + (sp>>2)*128}"))
        return l
    def qk0(qb):
        l = ["s_waitcnt lgkmcnt(0)"]
        for f in sorted(range(12), key=lambda f: kfrag(f)[::-1]):
            s, tb = kfrag(f)
            d = vr(Sq(0, qb, tb), 4)
            l.append(f"{MF} {d}, v[{KF+4*f}:{KF+4*f+3}], {Qf(qb,s)}, {'0' if s == 0 else d}")
        return l
    def sm0(qb):
        a, b = Sq(0, qb, 0), Sq(0, qb, 1)
        l = [f"v_max3_f32 v{tq}, v{a}, v{a+1}, v{a+2}", f"v_max3_f32 v{tq}, v{tq}, v{a+3}, v{b}",
             f"v_max3_f32 v{tq}, v{tq}, v{b+1}, v{b+2}", f"v_max_f32 v{tq}, v{tq}, v{b+3}"] + xlane("v_max_f32", tq)
        l += [f"v_sub_f32 v{NEGM(qb)+i}, 0, v{tq}" for i in range(4)]
        rest = [f"v_sub_f32 v{r+i}, v{r+i}, v{tq}" for r in (a, b) for i in range(4)]
        rest += [f"v_exp_f32 v{r+i}, v{r+i}" for r in (a, b) for i in range(4)]
        rest += [f"v_add_f32 v{V_L[qb]}, v{V_L[qb]}, v{r+i}" for r in (a, b) for i in range(4)]
        rest += [f"v_cvt_pk_bf16_f32 v{a}, v{a}, v{a+1}", f"v_cvt_pk_bf16_f32 v{a+1}, v{a+2}, v{a+3}",
                 f"v_cvt_pk_bf16_f32 v{a+2}, v{b}, v{b+1}", f"v_cvt_pk_bf16_f32 v{a+3}, v{b+2}, v{b+3}"]
        return l, rest
    def step(qb, extra=()):
        l, rest = sm0(qb)
        return qk0(qb) + ["s_nop 7"] + sprinkle(l + rest, extra)
    post = vstamp("pre tag") + [W("tag", "st0")] + vstamp("tag") + tag_check() + first_post() + stamp("posted") + vstamp("posted")
    bar = q_read(0) + ["s_waitcnt lgkmcnt(0)", "s_barrier"] + stamp("barA") + vstamp("barA")
    kf = []
    for f in range(12):
        s, tb = kfrag(f)
        kf.append(DS("k0f", f"ds_read_b128 v[{KF+4*f}:{KF+4*f+3}], v{V_RDK[s&1]} offset:{tb*6144 + (s>>1)*128}"))
    n4 = n3 + OPT["qd"]; n5 = min(24, n4 + OPT["qe"])
    if OPT["ord"] == 0:
        p += bar + kf + step(0, q_dma(range(n3, n4))) + vstamp("qk0") + post
    else:
        p += bar + post + kf + step(0, q_dma(range(n3, n4))) + vstamp("qk0")
    p += tl
    p += q_read(1) + step(1, q_dma(range(n4, n5))) + vstamp("qk1")
    misc = [k_adv(), v_adv()]
    if OPT["pf2"]:
        misc += [f"s_mov_b32 s{S_DBG}, s60", f"s_mov_b32 s{S_DBG+1}, s61", f"s_mov_b32 s{S_DBG+2}, L_slow-L_pc",
              f"s_lshr_b32 s{S_TP}, s2, 3", f"s_mul_i32 s{S_HOFF}, s{S_TP}, 43", f"s_lshr_b32 s{S_HOFF}, s{S_HOFF}, 7",
              f"s_mul_i32 s{S_RET}, s{S_HOFF}, 3", f"s_sub_u32 s{S_TP}, s{S_TP}, s{S_RET}", f"s_lshl_b32 s{S_TP}, s{S_TP}, 10",
              f"s_mul_i32 s{S_HOFF}, s{S_HOFF}, 12288", f"s_add_u32 s{S_HOFF}, s{S_HOFF}, s{S_TP}"]
    n6 = min(24, n5 + OPT["qf"])
    p += stamp("at poll") + vstamp("at poll") + [x.replace(f"s[{S_PT}:{S_PT+7}]", "s[72:79]") for x in smem_flags()]
    p += sprinkle(misc + tc, q_dma(range(n5, n6))) + vstamp("tc")
    p += poll_smem() + stamp("poll ok") + vstamp("poll ok")
    dm = [with_nop(dma_tile(a, b, True)) for a, b in (("k", 1), ("k", 2), ("k", 3), ("v", 1))]
    kraw = k_ld(0, BX, "ka") + k_ld(1, BY, "kb")
    p += dm[0] + flat(q_dma(range(n6, 24))) + vstamp("iss q")
    p += q_read(2) + step(2, dm[1:3]) + vstamp("qk2") + dm[3]
    l, fl = sm0(3)
    p += q_read(3) + qk0(3) + kraw[:4] + ["s_nop 3"] + l + vstamp("qk3")
    p += [W(("dk", 0))] + vstamp("dk0") + ["s_waitcnt lgkmcnt(0)", "s_barrier"] + [frag_read("q", 12 + f) for f in range(NFS)]
    p += fl[:12]; fl = fl[12:]
    if OPT["stamp"] == 7:
        p += vstamp("loop start") + ["v_writelane_b32 v14, s98, 31", "s_add_u32 s40, s18, 0xfa00000", "s_addc_u32 s41, s19, 0", "s_mov_b32 s42, 1048576", "s_mov_b32 s43, 0x20000",
              "s_lshl_b32 s24, s2, 2", f"s_add_u32 s24, s24, s{S_WAVE}", "s_lshl_b32 s24, s24, 7", f"v_bfe_u32 v15, v{V_DMA}, 4, 6", "v_lshlrev_b32 v15, 2, v15", "s_mov_b64 exec, 0xffffffff",
              VM("stamp", "buffer_store_dword v14, v15, s[40:43], s24 offen"), "s_mov_b64 exec, -1"]
        open(sys.argv[1] + ".stamps", "w").write("\n".join(STAMPS))
    elif OPT["stamp"]:
        p += stamp("loop start") + ["s_memtime s[8:9]"]
    l = dma_tile("v", 2, True) + dma_tile("v", 3, True)
    dl = [l[0:1], l[1:2], l[2:3], l[3:4], l[4:8], l[8:9], l[9:10], l[10:11], l[11:12], l[12:15], l[15:]]
    dl = [[x] for x in kraw[4:]] + [pf2[:5], pf2[5:]]
    p.append("s_nop 0")
    for g in range(48, 96):
        F = 2 * (g >> 3)
        if g % 8 == 0: p.append(LG(("f", "q", F + 1)))
        p.append(qk_mfma(0, g))
        cur = []
        if g % 8 == 7 and F + NFS < 24: cur = [frag_read("q", F + NFS), frag_read("q", F + NFS + 1)]
        elif g % 4 == 1 and dl: cur = dl.pop(0)
        while fl and gap_time(cur + [fl[0]]) <= 16: cur.append(fl.pop(0))
        p += cur
    assert not dl and not fl, (dl, fl)
    p += rd_step("q") + [W(("dk", 1)), "s_barrier"] + [frag_read("q", f) for f in range(D)] + [tq_rd("ka0", TQ[0])]
    if OPT["stamp"]: p += [f"s_mov_b32 s{S_LEAD}, 0"]
    p += [f"s_mov_b32 s{S_CNT}, 5", LG(("f", "q", 1)), SIG("BZ")]
    return p

def gen_main():
    p = gen_prologue()
    K_ = lambda *j: tuple(("k", x) for x in j)
    V_ = lambda *j: tuple(("v", x) for x in j)
    G = lambda it, t, d, **kw: kstamp(f"p{it}", 3) + gen_iter(it, t, dma=d, name=f"p{it}", peel=True, **kw)
    ST = lambda w, g0=57: [(w, 0, g0), (w, 1, g0 + 8), (w, 2, g0 + 16), (w, 3, 85)]
    A4 = (0, 1, 2, 3)
    kc = SCHED[OPT["sch"]][0]
    SE = lambda w: [(w, 0, 1), (w, 1, 9), (w, 2, 17), (w, 3, 25)]
    if OPT["su"] == 0:
        p += G(1, [("ldn", "va", A4, 0, 30), ("cv", "k", 0, 40, 30, 95)], [K_(4, 5) + (20, 74)], extra_sm=True, nostep=True)
        p += G(2, [("cv", "k", 40, NK, 0, 54), ("ld", "vb", (0, 1), 34, 50)] + ST("kst"), [K_(6, 7) + (0, 32)])
        p += G(3, [("ld", "vb", (2, 3), 0, 12), ("ld", "ka", A4, 14, 40), ("post", "kst"), ("cv", "v", 0, 32, 0, 95)], [V_(4, 5) + (40, 74)])
        p += G(4, [("cv", "v", 32, 64, 0, 95), ("pollld", 70, 90)], [V_(6, 7) + (0, 66)])
        p += G(5, [("pollchk", 1), ("cv", "v", 64, NV, 0, 54), ("ld", "kb", (0, 1), 36, 50), ("cv", "k", 0, 10, 63, 95)] + ST("vst"), [K_(8, 9) + (7, 34)])
        p += G(6, [("ld", "kb", (2, 3), 0, 12), ("ld", "va", A4, 14, 40), ("post", "vst"), ("cv", "k", 10, 38, 0, 95)], [K_(10, 11) + (40, 74)])
        p += G(7, [("cv", "k", 38, 66, 0, 95), ("pollld", 70, 90)], [K_(12, 13) + (0, 66)])
        p += G(8, [("pollchk", 1), ("cv", "k", 66, NK, 0, 54), ("ld", "vb", (0, 1), 36, 50), ("cv", "v", 0, 10, 63, 95)] + ST("kst"), [V_(8, 9) + (7, 34)])
        p += G(9, [("ld", "vb", (2, 3), 0, 8), ("ld", "ka", A4, 76, 94), ("post", "kst"), ("cv", "v", 10, 38, 0, 95)], [V_(10, 11) + K_(14, 15) + (10, 74)])
        p += G(10, [("cv", "v", 38, 66, 0, 95), ("pollld", 70, 90)], [V_(12, 13) + (0, 66)])
        p += G(11, [("pollchk", 1), ("cv", "v", 66, NV, 0, 54), ("ld", "kb", (0, 1), 36, 50), ("cv", "k", 0, 10, 63, 95)] + ST("vst"), [K_(16, 17) + (7, 34)])
        p += G(12, [("ld", "kb", (2, 3), 0, 12), ("ld", "va", A4, 14, 40), ("post", "vst"), ("cv", "k", 10, 34, 0, 95)], [V_(14, 15) + (40, 74)])
        p += G(13, [("cv", "k", 34, kc[4], 0, 94), ("pollld", 70, 90)], [K_(18, 19) + (0, 66)], endops=["s_nop 0", "s_branch L_join"])
    else:
        SL = lambda w: [(w, 0, 65), (w, 1, 73), (w, 2, 85), (w, 3, 93)]
        pa = OPT["pa"]; pb = OPT["pb"]
        if OPT["fin"]:
            p += G(1, [("ldn", "va", A4, 50, 90), ("cv", "k", 0, 30, 50, 95)], [K_(4, 5) + (0, 46)], extra_sm=True, nostep=True)
            p += G(2, [("cv", "k", 30, NK, 0, 62), ("ld", "vb", (0, 1), 44, 58)] + SL("kst"), [V_(2, 3) + (0, 42)])
            p += G(3, [("ld", "vb", (2, 3), 4, 12), ("post", "kst"), ("cv", "v", 0, 32, 0, 95)], [K_(6, 7) + V_(4, 5) + (14, 90)])
            p += G(4, [("ld", "ka", A4, 0, 16), ("cv", "v", 32, 64, 0, 95), ("pollld", pa + 10, pa + 16)], [V_(6, 7) + (18, pa + 6)])
        else:
            p += G(1, [("ldn", "va", A4, 0, 30), ("cv", "k", 0, 40, 30, 95)], [K_(4, 5) + (20, 74)], extra_sm=True, nostep=True)
            p += G(2, [("cv", "k", 40, NK, 0, 54), ("ld", "vb", (0, 1), 34, 50)] + ST("kst"), [K_(6, 7) + (0, 32)])
            p += G(3, [("ld", "vb", (2, 3), 0, 12), ("ld", "ka", A4, 14, 40), ("post", "kst"), ("cv", "v", 0, 32, 0, 95)], [V_(4, 5) + (40, 74)])
            p += G(4, [("cv", "v", 32, 64, 0, 95), ("pollld", pa, pa + 6)], [V_(6, 7) + (0, pa - 4)])
        p += G(5, [("pollchk", pb), ("cv", "v", 64, NV, 0, 62), ("ld", "kb", (0, 1), 0, 20), ("cv", "k", 0, 8, 70, 95)] + SL("vst"), [K_(8, 9) + (pb + 6, 58)])
        p += G(6, [("ld", "kb", (2, 3), 4, 14), ("ld", "va", A4, 14, 40), ("post", "vst"), ("cv", "k", 8, 38, 0, 95)], [K_(10, 11) + (40, 74)])
        p += G(7, [("cv", "k", 38, 66, 0, 95), ("pollld", pa, pa + 6)], [K_(12, 13) + (0, pa - 4)])
        p += G(8, [("pollchk", pb), ("cv", "k", 66, NK, 0, 62), ("ld", "vb", (0, 1), 0, 20), ("cv", "v", 0, 8, 70, 95)] + SL("kst"), [V_(8, 9) + (pb + 6, 58)])
        p += G(9, [("ld", "vb", (2, 3), 4, 10), ("ld", "ka", A4, 76, 94), ("post", "kst"), ("cv", "v", 8, 38, 0, 95)], [V_(10, 11) + K_(14, 15) + (12, 74)])
        p += G(10, [("cv", "v", 38, 66, 0, 95), ("pollld", pa + 10, pa + 16)], [V_(12, 13) + (0, pa - 4)])
        p += G(11, [("pollchk", pb), ("cv", "v", 66, NV, 0, 62), ("ld", "kb", (0, 1), 0, 20), ("cv", "k", 0, 8, 70, 95)] + SL("vst"), [K_(16, 17) + (pb + 6, 58)])
        p += G(12, [("ld", "kb", (2, 3), 4, 14), ("ld", "va", A4, 14, 40), ("post", "vst"), ("cv", "k", 8, 34, 0, 95)], [V_(14, 15) + (40, 74)])
        p += G(13, [("cv", "k", 34, kc[4], 0, 94), ("pollld", pa, pa + 6)], [K_(18, 19) + (0, pa - 4)], endops=["s_nop 0", "s_branch L_join"])
    JOIN = 6
    p += [".p2align 6", "L_loop:"]
    pro_ = p
    bodyA = []
    for k in range(8):
        if k == JOIN: bodyA.append("L_join:"); jpos = len(bodyA)
        eo = [f"s_sub_u32 s{S_CNT}, s{S_CNT}, 1", f"s_cmp_lg_u32 s{S_CNT}, 0", "s_cbranch_scc1 L_loop"] if k == 7 else ()
        bodyA += kstamp(f"k{k}") + gen_iter(16 + k, steady(k), endops=eo, name=f"k{k}")
    mid = []
    for k in range(4): mid += kstamp(f"m{k}") + gen_iter(48 + k, steady(k, last=True), name=f"mid{k}")
    mid += [f"s_mov_b32 s{S_CNT}, 2", ".p2align 6", "L_loop2:"]
    bodyC = []
    for k in range(4):
        eo = [f"s_sub_u32 s{S_CNT}, s{S_CNT}, 1", f"s_cmp_lg_u32 s{S_CNT}, 0", "s_cbranch_scc1 L_loop2"] if k == 3 else ()
        t = {1: [("pollld", 84, 94) if OPT["plate"] else ("pollld", 2, 10)] + ([("pf", 60, 76)] if OPT["pf2"] else []), 2: [("pollchk0", OPT["pc"]), ("dmaw", OPT["pc"] + 7, 76)]}.get(k, [])
        bodyC += gen_iter(52 + k, t, name=f"C{k}", endops=eo)
    LE = (stamp("loop end") + ["s_memtime s[10:11]"]) if OPT["stamp"] not in (0, 7) else []
    t60 = gen_iter(60, name="T60", extra=epi_addr())
    t61 = gen_iter(61, dma=[], name="T61", extra_late=[f"v_add_u32 v{RD2[i]}, {2*STAGE}, v{V_RDV[i]}" for i in range(3)])
    for x in t61:
        if isinstance(x, W): x.n = 0; x.tags = ()
    tailc = LE + t60 + t61 + gen_tail() + ["L_fin:"]
    resolve(pro_ + bodyA[jpos:] + bodyA + bodyA + mid + bodyC + bodyC + tailc)
    P_ = Prog()
    P_.extend(fin(pro_))
    a0 = len(P_.ins); P_.extend(fin(bodyA)); a1 = len(P_.ins)
    P_.extend(fin(mid))
    c0_ = len(P_.ins); P_.extend(fin(bodyC)); c1 = len(P_.ins)
    P_.extend(fin(tailc))
    p = P_
    if OPT["stamp"] == 8:
        p("s_waitcnt vmcnt(0)")
        p.extend(stamp("end"))
        p("s_load_dwordx2 s[8:9], s[100:101], 64")
        p("s_waitcnt lgkmcnt(0)")
        p("s_mov_b32 s10, 256"); p("s_mov_b32 s11, 0x20000")
        p("s_mov_b64 exec, 1")
        nm = {n: SR(i) for i, n in enumerate(STAMPS)}
        vals = [("not", 98), ("", 98), ("", nm["loop start"]), ("", nm["loop end"]), ("", nm["end"]), ("not", nm["end"]), ("not", nm["loop start"]), ("", nm["posted"])]
        for i, (op, r) in enumerate(vals):
            if op: p(f"s_not_b32 s24, s{r}"); p(f"v_mov_b32 v{64+i}, s24")
            else: p(f"v_mov_b32 v{64+i}, s{r}")
            p(f"buffer_atomic_umax v{64+i}, off, s[8:11], 0 offset:{8*i+4}")
    elif OPT["stamp"] and OPT["stamp"] != 7:
        p("s_waitcnt vmcnt(0)")
        p.extend(stamp("end"))
        p("s_memtime s[22:23]")
        p("s_waitcnt lgkmcnt(0)")
        p("s_sub_u32 s22, s22, s100")
        regs = [98] + [SR(i) for i in range(len(STAMPS))]
        p("s_sub_u32 s10, s10, s8")
        regs += [10] * (14 - len(regs)) + [22]
        regs = regs[:15] + [S_LEAD]
        for i, s in enumerate(regs): p(f"v_mov_b32 v{64+i}, s{s}")
        p("s_add_u32 s8, s18, 0xfa00000"); p("s_addc_u32 s9, s19, 0"); p("s_mov_b32 s10, 1048576"); p("s_mov_b32 s11, 0x20000")
        p("s_lshl_b32 s24, s2, 2"); p(f"s_add_u32 s24, s24, s{S_WAVE}"); p("s_lshl_b32 s24, s24, 6")
        p("v_mov_b32 v32, s24")
        p(f"v_cmp_eq_u32 vcc, 0, v{GA[0]}")
        p("s_and_saveexec_b64 s[20:21], vcc")
        for i in range(4):
            p(f"buffer_store_dwordx4 v[{64+4*i}:{67+4*i}], v32, s[8:11], 0 offen offset:{16*i}")
        open(sys.argv[1] + ".stamps", "w").write("\n".join(STAMPS))
    p("L_done:")
    p("s_endpgm")
    main_end0 = len(p.ins)
    for ps in POLLSITES + ["P"]: p.extend(poll_slow(ps))
    p.extend(tag_slow())
    main_end = len(p.ins)
    p.extend(gen_slow())
    slow_end = len(p.ins)
    ji = [i for i, x in enumerate(p.ins) if x.text == "L_join:"][0]
    lin = p.ins[:a0] + p.ins[ji:a1] + p.ins[a0:c1] + p.ins[c0_:main_end0]
    sl = [i for i, x in enumerate(p.ins) if x.text == "L_slowloop:"][0]
    ei = [i for i, x in enumerate(p.ins) if x.text == "L_fin:"][0]
    bi = [i for i, x in enumerate(p.ins) if x.text == "s_cbranch_scc1 L_slowloop"][0]
    probs = check_hazards(lin, "main") + check_hazards(p.ins[main_end:bi+1] + p.ins[sl:slow_end] + p.ins[ei:ei+60], "slow") + check_hazards(p.ins[main_end0:main_end], "aux")
    for x in probs: print(x, file=sys.stderr)
    return p

def kd(name, vgpr, sgpr, accum):
    return f""".amdhsa_kernel {name}
  .amdhsa_next_free_vgpr {vgpr}
  .amdhsa_next_free_sgpr {sgpr}
  .amdhsa_accum_offset {accum}
  .amdhsa_group_segment_fixed_size 0
  .amdhsa_kernarg_size 80
  .amdhsa_user_sgpr_count 2
  .amdhsa_user_sgpr_kernarg_segment_ptr 1
  .amdhsa_system_sgpr_workgroup_id_x 1
.end_amdhsa_kernel
"""
out = HEADER
out += f"; @launch grid=(256,1,1) block=(256,1,1) lds={LDS_BYTES}\n"
out += '.amdgcn_target "amdgcn-amd-amdhsa--gfx950"\n.text\n'
out += f".globl {NAME}_kernel\n.p2align 8\n.type {NAME}_kernel,@function\n" + gen_main().text()
out += '.section .rodata,"a"\n.p2align 6\n' + kd(NAME + "_kernel", 512, 102, 256)
open(sys.argv[1], "w").write(out)
```

```python
import sys, math
from asmlib import *

NAME = "standalone__kv_cache_quant_int4_int2_kv_with_per_channel_or_per_token_scales__prompt"
OPT = dict(stamp=0, prod=1, vmgap=4, sb=6, sa=6, pl=10, ahead=4, thr=64, tden=32, ab=0, pf2=1,
           q0=0, qa=4, qb=4, qc=4, qd=4, qe=4, ord=1, kst0=57, rot=1, win=8, nv=4, sch=1, sd=8, pc=29, plate=0, su=1, pa=58, pb=29, fin=1, wins=4, qf=2, tail=3, td=16, tq=1, tw=1)
for a in sys.argv[2:]:
    k, v = a.split("="); assert k in OPT, k; OPT[k] = int(v)
NS = 6; D = 4
STAGE = 24576
HEADBYTES = 64 * STAGE
RING = NS * STAGE
TS = 1792
TAB = RING + 128
LDS_BYTES = TAB + 8 * TS
CSCALE = (192.0 ** -0.5) * math.log2(math.e)
HEADER = open("cdna_kernels/" + NAME + ".s.ref").read().split("; Override launch geometry")[0]
MF = "v_mfma_f32_16x16x32_bf16"
NG = 96

V_FV = 55; V_RDV = [1, 21, 22]; V_RDK = [2, 3]; V_DMA = 4; V_L = [5, 6, 7, 8]
V_KLD = 9; V_KTAB = 10; V_KST = 11; V_VLD = 12; V_FLAG = 13
V_T = 16; NTP = 2
V_VST = 20; V_VTAB = 23
V_FR = 24; NFS = 6
TQ = [48, 56, 60]; V_VO = 52; BX = 224; BY = 240; BZ = 144
V_POLL = V_VO; V_KA = V_VO + 2
UNIT = [64, 80, 160, 176]; HI = [96, 112]
def Sq(t, qb, tb): return (UNIT[t % 4] if tb == 0 else HI[t % 2]) + 4 * qb
def P(t, qb): return UNIT[t % 4] + 4 * qb
def NEGM(qb): return 128 + 4 * qb
def O(qb, db): return (qb * 12 + db) * 4
def Qf(qb, s, half=None):
    i = qb * 6 + s
    base, f = (192 + 4 * i, ar) if i < 16 else (192 + 4 * (i - 16), vr)
    return f(base, 4) if half is None else f(base + 2 * half, 2)
def FR(f): return vr(V_FR + 4 * (f % NFS), 4)

S_RDELTA = 3; S_WS = 4; S_Q = 8; S_OUT = 12; S_FLG = 20
S_WAVE = 25; S_DMK = 26; S_GOFF = 27; S_RK = 28; S_TMP = 29; S_RV = 30; S_CNT = 31; S_GOFFK = 32
S_PK0 = 33; S_PK1 = 34; S_PV0 = 35; S_PV1 = 36; S_KW = 37; S_CS = 38; S_RET = 39; S_KW2 = 80; S_VW = 81; S_QL = 82; S_LEAD = 83
S_PT = 48; S_DMV = 56; S_TK = 57; S_TV = 58; S_TP = 59
S_QK = 64; S_QV = 68; S_DBG = 88
S_NEED = 92; S_HOFF = 93; S_HEAD = 94; S_QB = 95; S_BUDGET = 96; S_MASK = 97
FLAG_OFF = 64 << 20
WSHEAD = HEADBYTES + 8 * STAGE
SC1 = " sc1"; NTKV = " nt"; NTQ = " nt"; STF = " sc1"; OF = " sc0 sc1"

STAMPS = []
def SR(i): return ([40, 42, 44, 46, 0, 72, 74, 76, 78, 84, 86, 16, 98, 100] if OPT['stamp'] in (3, 6, 9) else [16, 40, 42, 44, 84, 86, 0])[i]
def kstamp(name, mode=6):
    if OPT["stamp"] != mode: return []
    i = len(STAMPS); STAMPS.append(name)
    return [f"s_memtime s[{SR(i)}:{SR(i)+1}]"]
def vstamp(name):
    if OPT["stamp"] != 7: return []
    i = len(STAMPS); STAMPS.append(name)
    return ["s_memrealtime s[100:101]", "s_waitcnt lgkmcnt(0)", f"v_writelane_b32 v14, s100, {i}"]
def stamp(name):
    if OPT["stamp"] not in (1, 8): return []
    i = len(STAMPS); STAMPS.append(name)
    return [f"s_memrealtime s[{SR(i)}:{SR(i)+1}]"]

class W:
    def __init__(self, *tags): self.tags = tags; self.n = None
class VM:
    def __init__(self, tag, text): self.tag = tag; self.text = text
class LG:
    def __init__(self, tag, soft=False): self.tag = tag; self.n = None; self.need = False; self.soft = soft
class DS:
    def __init__(self, tag, text): self.tag = tag; self.text = text
class SIG:
    def __init__(self, name): self.name = name
class CHK:
    def __init__(self, name): self.name = name

def softmax_part(t, half, qbs=None):
    flat = []; prev = None
    qbs = qbs or (2 * half, 2 * half + 1)
    for gp in range(4 * len(qbs)):
        qb = qbs[gp // 4]; pi = gp % 4
        t0 = V_T + 2 * (gp % NTP); t1 = t0 + 1
        src = Sq(t, qb, pi >> 1) + 2 * (pi & 1)
        E = [f"v_exp_f32 v{t0}, v{src}", f"v_exp_f32 v{t1}, v{src+1}"]
        A = [f"v_add_f32 v{V_L[qb]}, v{V_L[qb]}, v{t0}", f"v_add_f32 v{V_L[qb]}, v{V_L[qb]}, v{t1}"]
        C = [f"v_cvt_pk_bf16_f32 v{P(t,qb)+pi}, v{t0}, v{t1}"]
        if OPT["ab"] == 1: A = []
        if OPT["ab"] == 2: A = [f"v_pk_add_f32 v[6:7], v[6:7], v[{t0}:{t1}]"]
        if OPT["ab"] == 3: A = []; C = C + [f"v_dot2_f32_bf16 v{V_L[qb]}, v{P(t,qb)+pi}, v14, v{V_L[qb]}"]
        if OPT["ab"] == 4: A = []; C = C + [f"v_dot2c_f32_bf16 v{V_L[qb]}, v{P(t,qb)+pi}, v14"]
        flat += E if prev is None else [E[0]] + prev[0] + [E[1]] + prev[1]
        prev = (A, C)
    return flat + prev[0] + prev[1]

def kfrag(g):
    return 2 * (g >> 2) + (g & 1), (g >> 1) & 1
def vfrag(db):
    return (db >> 2, (db & 3) * 768)
def frag_read(kind, f, regs=None, tag=None):
    if kind == "q":
        s, tb = kfrag(f % 12)
        return DS(tag or ("f", kind, f), f"ds_read_b128 {FR(f)}, v{V_RDK[s&1]} offset:{(f//12)*12288 + tb*6144 + (s>>1)*128}")
    a, off = vfrag(f >> 1)
    return DS(tag or ("f", kind, f), f"ds_read_b128 {FR(f)}, v{(regs or V_RDV)[a]} offset:{(f&1)*12288 + off}")

def dma_tile(part, pos, peel=False):
    dm, go, tmp = (S_DMK, S_GOFFK, S_TK) if part == "k" else (S_DMV, S_GOFF, S_TV)
    l = [f"s_mov_b32 m0, s{dm}"]
    for j in range(3):
        l.append(VM(("d" + part, (pos >> 1) % 4), f"buffer_load_dwordx4 v{V_DMA}, s[{S_WS}:{S_WS+3}], s{go} offen offset:{j*1024}{SC1} lds"))
    if peel and pos < 7:
        l += [f"s_add_u32 s{go}, s{go}, {STAGE}", f"s_sub_u32 s{tmp}, s{go}, {8*STAGE}", f"s_min_u32 s{go}, s{go}, s{tmp}"]
    elif peel and pos == 7:
        l += [f"s_mov_b32 s{go}, {8*STAGE + (0 if part == 'k' else 12288)}"]
    else:
        l += [f"s_add_u32 s{go}, s{go}, {STAGE}"]
    if pos % 2 == 0: l += [f"s_add_u32 s{dm}, s{dm}, 12288"]
    else: l += [f"s_add_u32 s{dm}, s{dm}, {2*STAGE - 12288}", f"s_sub_u32 s{tmp}, s{dm}, {RING}", f"s_min_u32 s{dm}, s{dm}, s{tmp}"]
    return l
def with_nop(l):
    out = []
    real = [i for i, x in enumerate(l) if not isinstance(x, (SIG, CHK))]
    nxt = {a: b for a, b in zip(real, real[1:])}
    for i, x in enumerate(l):
        out.append(x)
        if isinstance(x, str) and " m0," in x and i in nxt and isinstance(l[nxt[i]], VM): out.append("s_nop 0")
    return out
def rd_step(kind):
    cur, regs = (S_RK, V_RDK) if kind == "q" else (S_RV, V_RDV)
    return [f"s_add_u32 s{S_TMP}, s{cur}, {2*STAGE}", f"s_sub_u32 s{S_RDELTA}, s{S_TMP}, {RING}",
            f"s_min_u32 s{S_TMP}, s{S_TMP}, s{S_RDELTA}", f"s_sub_u32 s{S_RDELTA}, s{S_TMP}, s{cur}", f"s_mov_b32 s{cur}, s{S_TMP}"] + \
           [f"v_add_u32 v{r}, s{S_RDELTA}, v{r}" for r in regs]

def k_ld(h, buf, tag, js=range(4)):
    return [VM((tag, j >> 1), f"buffer_load_dwordx4 v[{buf+4*j}:{buf+4*j+3}], v{V_KLD}, s[{S_QK}:{S_QK+3}], s{S_PK0 if j < 2 else S_PK1} offen offset:{(j&1)*1536+384*h}{NTKV}")
            for j in js]
def v_ld(h, buf, tag, js=range(4)):
    return [VM((tag, r >> 1), f"buffer_load_dwordx4 v[{buf+4*r}:{buf+4*r+3}], v{V_VLD}, s[{S_QV}:{S_QV+3}], s{S_PV0 if h == 0 else S_PV1} offen offset:{r*768}{NTKV}")
            for r in js]
def k_unit(h, buf, out, jp, i, q):
    ab = [(buf + 4 * j + 2 * i, buf + 4 * j + 2 * i + 1) for j in (2 * jp, 2 * jp + 1)]
    return [f"v_cvt_f32_i32 v{r}, v{r}" for a, b in ab for r in (a, b)] + \
           [f"v_fma_f32 v{r}, v{r}, v{q+x}, v{q+2+x}" for a, b in ab for x, r in enumerate((a, b))] + \
           [f"v_cvt_pk_bf16_f32 v{out+4*j+2*h+i}, v{a}, v{b}" for j, (a, b) in zip((2 * jp, 2 * jp + 1), ab)]
def v_unit(buf, i, q):
    l = []
    for e0 in (0, 2):
        ab = [(buf + 8 * i + e, buf + 8 * i + 4 + e) for e in (e0, e0 + 1)]
        l += [f"v_cvt_f32_i32 v{r}, v{r}" for a, b in ab for r in (a, b)]
        l += [f"v_fma_f32 v{r}, v{r}, v{q+x}, v{q+2+x}" for a, b in ab for x, r in enumerate((a, b))]
    return l
def v_pack(h, buf, out, lst):
    return [f"v_cvt_pk_bf16_f32 v{out+4*e+2*h+i}, v{buf+8*i+e}, v{buf+8*i+4+e}" for e, i in lst]
V_INPLACE = [(0, 0), (1, 0), (0, 1), (1, 1), (2, 0), (2, 1), (3, 0), (3, 1)]
def tq_rd(name, q):
    if name[0] == "k": va, off = V_KTAB, "ab".index(name[1]) * 768 + int(name[2]) * 384
    else: va, off = V_VTAB, ("ab".index(name[1]) * 2 + int(name[2])) * 16
    return DS(("tq", name), f"ds_read_b128 v[{q}:{q+3}], v{va} offset:{off}")
def ins(l, i, x): return l[:i] + x + l[i:]
def chain_k():
    T0, T1, T2 = TQ
    c = [tq_rd("ka1", T1), W(("ka", 0)), LG(("tq", "ka0"), True)] + ins(k_unit(0, BX, BX, 0, 0, T0), 3, [tq_rd("kb0", T2)])
    c += [LG(("tq", "ka1"), True)] + k_unit(0, BX, BX, 0, 1, T1) + [W(("ka", 1))] + k_unit(0, BX, BX, 1, 0, T0) + k_unit(0, BX, BX, 1, 1, T1)
    c += [tq_rd("kb1", T0), W(("kb", 0)), LG(("tq", "kb0"), True)] + ins(k_unit(1, BY, BX, 0, 0, T2), 3, [tq_rd("va0", T1), f"v_add_u32 v{V_KTAB}, {TS}, v{V_KTAB}"])
    c += [LG(("tq", "kb1"), True)] + k_unit(1, BY, BX, 0, 1, T0) + [SIG("BY0"), W(("kb", 1))] + k_unit(1, BY, BX, 1, 0, T2) + k_unit(1, BY, BX, 1, 1, T0)
    return c + [SIG("BY1"), SIG("Kdone")]
def chain_v(last=False):
    T0, T1, T2 = TQ
    c = [tq_rd("va1", T2), W(("va", 0)), LG(("tq", "va0"), True)] + ins(v_unit(BZ, 0, T1), 3, [tq_rd("vb0", T0)])
    c += [tq_rd("vb1", T1), W(("va", 1)), LG(("tq", "va1"), True)] + ins(v_unit(BZ, 1, T2), 3, [f"v_add_u32 v{V_VTAB}, {TS}, v{V_VTAB}"]) + v_pack(0, BZ, BZ, V_INPLACE)
    c += [W(("vb", 0)), LG(("tq", "vb0"), True)] + v_unit(BY, 0, T0) + ([] if last else [tq_rd("ka0", T0)]) + v_pack(1, BY, BZ, [(e, 0) for e in range(4)]) + [SIG("BY0")]
    c += [W(("vb", 1)), LG(("tq", "vb1"), True)] + v_unit(BY, 1, T1) + v_pack(1, BY, BZ, [(e, 1) for e in range(4)])
    return c + [SIG("BY1"), SIG("Vdone")]
def cut(c, n0, n1):
    out = []; n = 0; pend = []
    for x in c:
        if isinstance(x, str) and x.startswith("v_"):
            if n0 <= n < n1: out += pend + [x]
            pend = []; n += 1
        elif isinstance(x, SIG):
            if n0 <= n - 1 < n1: out.append(x)
        else: pend.append(x)
    assert not pend
    return out
def k_st(j, out, tag="kst"):
    return [VM(tag, f"buffer_store_dwordx4 v[{out+4*j}:{out+4*j+3}], v{V_KA if j & 1 else V_KST}, s[{S_WS}:{S_WS+3}], s{S_KW if j < 2 else S_KW2} offen offset:{(j&1)*768}{STF}")]
def v_st(e, out, tag="vst"):
    return [VM(tag, f"buffer_store_dwordx4 v[{out+4*e}:{out+4*e+3}], v{V_VST}, s[{S_WS}:{S_WS+3}], s{S_VW} offen offset:{e*768}{STF}")]
def adv(r0, r1, w):
    return [f"s_add_u32 s{r0}, s{r0}, {8*STAGE}", f"s_sub_u32 s{r1}, s{r0}, {HEADBYTES}", f"s_min_u32 s{r0}, s{r0}, s{r1}", f"s_add_u32 s{r1}, s{r0}, 3072"] + \
           [f"s_add_u32 s{x}, s{x}, {8*STAGE}" for x in w]
def k_adv(): return adv(S_PK0, S_PK1, (S_KW, S_KW2))
def v_adv(): return adv(S_PV0, S_PV1, (S_VW,))
HT = {"ka": (k_ld, 0, BX), "kb": (k_ld, 1, BY), "va": (v_ld, 0, BZ), "vb": (v_ld, 1, BY)}
def flag_post():
    return [f"v_add_u32 v{V_FV}, 1, v{V_FV}",
            VM("flag", f"buffer_store_dword v{V_FV}, v{V_FLAG}, s[{S_FLG}:{S_FLG+3}], 0 offen sc1")]
def poll_addr():
    return [f"v_bfe_u32 v{V_POLL+1}, v{V_DMA}, 4, 6", f"v_lshlrev_b32 v{V_POLL+1}, 2, v{V_POLL+1}"]
def poll_load():
    return poll_addr() + [VM("poll", f"buffer_load_dword v{V_POLL}, v{V_POLL+1}, s[{S_FLG}:{S_FLG+3}], 0 offen sc1")]
def poll_test():
    return [f"v_subrev_u32 v{V_POLL}, s{S_NEED}, v{V_POLL}", f"v_cmp_lt_u32 vcc, 15, v{V_POLL}", "s_nop 0", f"s_and_b32 s{S_TP}, vcc_lo, 0xff"]
def smem_flags():
    return [f"s_buffer_load_dwordx8 s[{S_PT}:{S_PT+7}], s[{S_FLG}:{S_FLG+3}], 0 glc"]
def smem_test():
    l = smem_flags() + ["s_waitcnt lgkmcnt(0)"]
    for i in range(8): l.append(f"s_sub_u32 s{S_PT+i}, s{S_PT+i}, s{S_NEED}")
    for i in range(1, 8): l.append(f"s_max_u32 s{S_PT}, s{S_PT}, s{S_PT+i}")
    return l + [f"s_cmp_lt_u32 s{S_PT}, 16"]
def poll_slow(site):
    l = [f"L_pollslow{site}:"]
    if OPT["stamp"] and site != "P": l += [f"s_add_u32 s{S_LEAD}, s{S_LEAD}, {1 << (3 * site)}"]
    if site != "P":
        l += [f"s_mov_b32 s{S_TP}, 200", f"L_pollsm{site}:"] + smem_test() + [f"s_cbranch_scc1 L_pollok{site}",
              f"s_sub_u32 s{S_TP}, s{S_TP}, 1", f"s_cbranch_scc1 L_pollvec{site}", "s_sleep 1", f"s_branch L_pollsm{site}"]
    l += [f"L_pollvec{site}:",
            f"s_sub_u32 s{S_BUDGET}, s{S_BUDGET}, 1",
            f"s_cbranch_scc1 L_pollgiveup{site}",
            "s_sleep 2",
            f"buffer_load_dword v{V_POLL}, v{V_POLL+1}, s[{S_FLG}:{S_FLG+3}], 0 offen sc1",
            "s_waitcnt vmcnt(0)"] + poll_test() + [
            f"s_cbranch_scc1 L_pollvec{site}",
            f"s_branch L_pollok{site}",
            f"L_pollgiveup{site}:",
            f"s_mov_b32 s{S_BUDGET}, 0",
            f"s_branch L_pollok{site}"]
    return l
def tag_load():
    return [VM("tag", f"buffer_load_dword v{V_POLL}, off, s[{S_DBG}:{S_DBG+3}], s{S_HOFF} sc1")]
def tag_check():
    return [f"v_readfirstlane_b32 s{S_NEED}, v{V_POLL}", f"s_mov_b32 s{S_RET}, 100",
            "L_tagretry:", f"s_cmp_lg_u32 s{S_NEED}, 0", "s_cbranch_scc1 L_tagok",
            f"s_sub_u32 s{S_RET}, s{S_RET}, 1", "s_cbranch_scc1 L_tagslow", "s_sleep 8",
            f"s_buffer_load_dword s{S_NEED}, s[{S_DBG}:{S_DBG+3}], s{S_HOFF} glc", "s_waitcnt lgkmcnt(0)", "s_branch L_tagretry",
            "L_tagok:", f"s_add_u32 s{S_NEED}, s{S_NEED}, 1", f"v_mov_b32 v{V_FV}, s{S_NEED}"]
def first_post():
    return ["s_mov_b64 exec, 1", f"v_mov_b32 v{V_T}, 1", f"v_mov_b32 v{V_T+1}, {RING}",
            f"ds_add_rtn_u32 v{V_T}, v{V_T+1}, v{V_T}", "s_waitcnt lgkmcnt(0)",
            f"v_readfirstlane_b32 s24, v{V_T}", "s_nop 0", "s_cmp_lg_u32 s24, 3", "s_cbranch_scc1 L_nopost",
            f"s_lshl_b32 s{S_RET}, s{S_QB}, 2",
            f"buffer_store_dword v{V_FV}, off, s[{S_FLG}:{S_FLG+3}], s{S_RET} sc1",
            "L_nopost:", "s_mov_b64 exec, -1"]
def poll_smem():
    l = poll_addr() + [f"s_mov_b32 s{S_RET}, 200", "s_waitcnt lgkmcnt(0)"]
    l += [f"s_sub_u32 s{72+i}, s{72+i}, s{S_NEED}" for i in range(8)] + [f"s_max_u32 s72, s72, s{72+i}" for i in range(1, 8)]
    l += ["s_cmp_lt_u32 s72, 16", "s_cbranch_scc1 L_pollokP", "L_pollretry:"] + smem_test()
    l += ["s_cbranch_scc1 L_pollokP",
          f"s_sub_u32 s{S_RET}, s{S_RET}, 1", "s_cbranch_scc1 L_pollslowP", "s_sleep 1", "s_branch L_pollretry",
          "L_pollokP:", f"s_add_u32 s{S_NEED}, s{S_NEED}, 1"]
    return l
def tag_slow():
    return ["L_tagslow:",
            f"s_sub_u32 s{S_BUDGET}, s{S_BUDGET}, 1",
            "s_cbranch_scc1 L_taggiveup",
            "s_sleep 2",
            f"buffer_load_dword v{V_POLL}, off, s[{S_DBG}:{S_DBG+3}], s{S_HOFF} sc1",
            "s_waitcnt vmcnt(0)",
            f"v_readfirstlane_b32 s{S_NEED}, v{V_POLL}", "s_nop 0", f"s_cmp_eq_u32 s{S_NEED}, 0", "s_cbranch_scc1 L_tagslow",
            "s_branch L_tagok",
            "L_taggiveup:",
            f"s_mov_b32 s{S_BUDGET}, 0",
            "s_branch L_tagok"]

def text_of(x):
    if isinstance(x, (W, LG)): return "s_waitcnt"
    if isinstance(x, (VM, DS)): return x.text
    return x
def kind_of(x):
    if isinstance(x, (SIG, CHK)) or (isinstance(x, LG) and x.soft): return "label"
    t = text_of(x)
    if t.endswith(":"): return "label"
    if t.startswith("v_"): return "valu"
    if t.startswith("ds_"): return "ds"
    if t.startswith("buffer_store"): return "store"
    if t.startswith("buffer_"): return "load"
    return "salu"
def cost_of(x):
    k = kind_of(x)
    if k == "label": return 0
    t = text_of(x)
    if k == "store": return 20 if "x4" in t else (12 if "x2" in t else 8)
    if k == "load": return 8
    if t.startswith("ds_write_b128"): return 12
    if t.startswith("v_exp"): return 8
    if t.startswith("s_nop"): return 4 * (int(t.split()[1]) + 1)
    if t.startswith("s_cbranch") or t.startswith("s_branch"): return 12
    if t.startswith("s_barrier"): return 8
    return 4
def gap_time(ops):
    t = 4; prev = None
    for o in ops:
        k = kind_of(o)
        if k == "label": continue
        if k == "salu": t += cost_of(o)
        else: t = max(t, 8) + cost_of(o) + (8 if (k != "valu" and prev == "valu") else 0)
        prev = k
    return t

class Stream:
    def __init__(self, ops, first, last, maxper=99):
        self.ops = list(ops); self.first = first; self.last = last; self.maxper = maxper
        self.total = sum(cost_of(o) for o in self.ops); self.done = 0; self.i = 0

def pack(A, B, C, T, streams, novm=(), nosalu=(), ng=NG):
    out = []; over = 0; lastvm = -99
    pend = {o.name for st in streams for o in st.ops if isinstance(o, SIG)} | {o.name for l in B for o in l if isinstance(o, SIG)}
    placed = set()
    for g in range(ng):
        pend -= placed
        placed |= {o.name for o in B[g] if isinstance(o, SIG)}
        a, b, c, tl = list(A[g]), list(B[g]), list(C[g]), list(T[g])
        cnt = {}; inC = set(); blocked = set()
        while True:
            best = None; bl = None; bsec = None
            for st in streams:
                if st.i >= len(st.ops) or g < st.first: continue
                force = g >= st.last
                o = st.ops[st.i]; k = kind_of(o); cst = cost_of(o)
                if isinstance(o, CHK) and o.name in pend:
                    assert not force, o.name
                    continue
                if k == "label":
                    if isinstance(o, SIG): placed.add(o.name)
                    best = st; bsec = "c" if (id(st) in inC or isinstance(o, SIG)) else "b"; bl = (True, True, 1e9); break
                if (cnt.get(id(st), 0) >= st.maxper or id(st) in blocked) and not force: continue
                if k == "salu" and g in nosalu:
                    assert not force
                    continue
                if k in ("load", "store") and (g in novm or g - lastvm < OPT["vmgap"]) and not force: continue
                if k == "ds" and any(kind_of(x) in ("ds", "load", "store") for x in b) and not force: continue
                if k in ("load", "store", "ds"):
                    sec = "b" if id(st) not in inC and id(st) not in blocked else "c"
                    if sec == "c" and not force: continue
                elif k == "salu" and not a and cnt.get(id(st), 0) == 0 and not any(x is not None for x in b if isinstance(x, (LG, CHK))):
                    sec = "a"
                else: sec = "c"
                tgt = st.total * (g - st.first + 1) / (st.last - st.first + 1)
                lag = tgt - st.done
                if not force:
                    if lag < cst / 2 - OPT["ahead"] and cst: continue
                    trial = (a + [o] if sec == "a" else a) + (b + [o] if sec == "b" else b) + (c + [o] if sec == "c" else c) + tl
                    if gap_time(trial) > 16:
                        if not (lag > 24 and gap_time(trial) <= 20): continue
                        if g % 2 == 0: continue
                key = (force, k in ("load", "store"), lag / max(1, (st.last - g + 1)) ** 0.5)
                if best is None or key > bl: best = st; bl = key; bsec = sec
            if best is None: break
            o = best.ops[best.i]
            {"a": a, "b": b, "c": c}[bsec].append(o)
            if bsec == "c": inC.add(id(best))
            if kind_of(o) != "label":
                if " m0," in text_of(o): blocked.add(id(best))
                if kind_of(o) in ("load", "store"): lastvm = g
                cnt[id(best)] = cnt.get(id(best), 0) + 1
            best.i += 1; best.done += cost_of(o)
        ops = a + b + c + tl
        tt = gap_time(ops)
        if tt > 16: over += tt - 16
        out.append(ops)
    for st in streams: assert st.i == len(st.ops), [text_of(o) for o in st.ops[st.i:]]
    return out, over

NK = 81; NV = 81
SCHED = {
    0: ((0, 6, 23, 40, 57, 72, NK), (0, 12, 40, 66, NV)),
    1: ((0, 0, 19, 38, 57, 76, NK), (0, 6, 37, 69, NV)),
    2: ((0, 0, 20, 40, 60, 80, NK), (0, 6, 38, 70, NV)),
    3: ((0, 0, 20, 40, 61, NK, NK), (0, 8, 38, 70, NV)),
}
def steady(k, last=False):
    s0 = OPT["kst0"]; sd = OPT["sd"]; kc, vc = SCHED[OPT["sch"]]
    gs = [s0, s0 + sd, s0 + 2 * sd, s0 + 3 * sd]
    gs = [g + 4 if GBAR - 2 <= g <= GBAR + 2 else g for g in gs]
    st = lambda w: [(w, j, g) for j, g in enumerate(gs)] + [("dmaw", 0, s0 - OPT["sb"] - 1)]
    pc = OPT["pc"]
    if OPT["plate"]:
        pl2, pl5 = [("pollld", 92, 94)], [("pollld", 84, 94)]
    else:
        pl2, pl5 = [("pollld", 0, 8)], [("pollld", 2, 10)]
    k0s = kc[5] if OPT["sch"] == 3 else None
    t = {
        0: [("post", "kst"), ("cv", "v", vc[1], vc[2], 0, 95), ("ld", "vb", (2, 3), 0, 14), ("ld", "ka", (0, 1, 2, 3), 16, 50), ("dmaw", 20, 74)],
        1: [("cv", "v", vc[2], vc[3], 0, 95), ("ld", "kb", (0, 1), 76, 94)],
        2: [("cv", "v", vc[3], NV, 0, s0 - 3), ("cv", "k", kc[0], kc[1], s0 + 6, 95)] + pl2 + st("vst"),
        3: [("post", "vst"), ("pollchk", pc), ("ld", "kb", (2, 3), 0, 20), ("cv", "k", kc[1], kc[2], 0, 95), ("dmaw", pc + 7, 76)],
        4: [("cv", "k", kc[2], kc[3], 0, 95), ("ld", "va", (0, 1, 2, 3), 0, 44)],
        5: [("cv", "k", kc[3], kc[4], 0, 95)] + pl5 + ([("pf", 60, 76)] if OPT["pf2"] else []),
        6: [("cv", "k", kc[4], kc[5], 0, 95), ("pollchk", pc), ("ld", "vb", (0, 1), 80, 94), ("dmaw", pc + 7, 76)],
        7: [("cv", "k", kc[5], kc[6], 0, s0 - 3), ("cv", "v", vc[0], vc[1], s0 + 6 if kc[5] < NK else 0, 94)] + st("kst"),
    }[k]
    t = [x for x in t if not (x[0] == "cv" and x[2] >= x[3])]
    if last:
        t = [x for x in t if not ((x[0] == "cv" and x[1] == "k") or (x[0] == "ld" and x[1] != "vb") or (x[0] == "ld" and k > 0))]
        t = [("cv", "vl") + x[2:] if x[:2] == ("cv", "v") else x for x in t]
    return t

GBAR = 4 * (24 - D) - 1
POLLSITES = []
def qk_mfma(t0, g):
    qb = (g >> 1) & 3
    F = 2 * (g >> 3) + (g & 1)
    t = t0 + F // 12; s, tb = kfrag(F % 12)
    d = vr(Sq(t, qb, tb), 4)
    c = vr(NEGM(qb), 4) if (s < 2 and g % 2 == 0) else d
    return f"{MF} {d}, {FR(F)}, {Qf(qb,s)}, {c}"
def pv_mfma(t0, db, qb, w, first=False):
    d = ar(O(qb, db), 4)
    return f"{MF} {d}, {vr(P(t0+w,qb),4)}, {FR(2*db+w)}, {'0' if (first and w == 0) else d}"

def gen_iter(it, tasks=(), dma=None, name=None, endops=(), peel=False, extra_sm=False, nostep=False, extra=(), extra_late=()):
    kind = "q" if it % 2 else "p"
    nk = "p" if kind == "q" else "q"
    A = [[] for _ in range(NG)]; B = [[] for _ in range(NG)]; C = [[] for _ in range(NG)]; T = [[] for _ in range(NG)]
    streams = []; novm = set(range(0, NG, 2)); nosalu = set()
    for F in range(24):
        fr = F + D
        B[4 * F].append(frag_read(kind, fr) if fr < 24 else frag_read(nk, fr - 24))
    for F in range(2, 25, 2):
        A[4 * F - 1].append(LG(("f", kind, F + 1) if F < 24 else ("f", nk, 1)))
    smB = softmax_part(it, 1); smA = softmax_part(it + 1, 0)
    if extra_sm: smB = softmax_part(it, 0) + smB
    if kind == "q":
        streams.append(Stream(smB, 0, 50)); streams.append(Stream(smA, 52, 95))
    else:
        streams.append(Stream(smB + smA, 0, 95))
    if endops:
        A[92] += endops[:1]; A[94] += [A[95][0]] + list(endops[1:-1]); A[95] = []; T[95] = list(endops[-1:]); nosalu |= {94, 95}
    if extra: streams.append(Stream(extra, 0, 90))
    if extra_late: streams.append(Stream(extra_late, GBAR + 1, 94))
    if not OPT["prod"]: tasks = ()
    if dma is None:
        w = [t[1:] for t in tasks if t[0] == "dmaw"]
        w = w[0] if w else (0, GBAR - 5)
        p0 = it + 5 if kind == "q" else it + 2
        c_ = "k" if kind == "q" else "v"
        dma = [((c_, p0), (c_, p0 + 1)) + tuple(w)]
    for grp in dma:
        dl = []
        for part, pos in grp[:-2]: dl += dma_tile(part, pos, peel)
        n = max(i for i, x in enumerate(dl) if isinstance(x, VM)) + 1
        streams.append(Stream(dl[:n], grp[-2], grp[-1], maxper=2))
        streams.append(Stream(dl[n:], grp[-1] + 1, min(93 if endops else 95, grp[-1] + 12), maxper=2))
    nj = ((it + 2) // 2) if nk == "q" else (it - 1) // 2
    wtags = [("dk" if nk == "q" else "dv", nj % 4)]
    if not nostep:
        streams.append(Stream(rd_step(nk), 30, GBAR - 3, maxper=1))
    for t in tasks:
        k_ = t[0]
        if k_ == "cv":
            c = {"k": chain_k, "v": chain_v, "vl": lambda: chain_v(True)}[t[1]]()
            streams.append(Stream(cut(c, t[2], t[3]), t[4], t[5]))
        elif k_ in ("kst", "vst"):
            grp = k_st(t[1], BX) if k_ == "kst" else v_st(t[1], BZ)
            g = t[2]; assert g % 4 == 1 and not B[g], g
            if t[1] == 0: B[g].append(CHK("Kdone" if k_ == "kst" else "Vdone"))
            B[g].append(grp[-1]); novm |= set(range(g - OPT["sb"], g + OPT["sa"] + 1))
            if t[1] == 3: B[g].append(SIG("BX" if k_ == "kst" else "BZ"))
            if grp[:-1]: streams.append(Stream(grp[:-1], max(0, g - 5), g - 1))
        elif k_ in ("ld", "ldn"):
            ld, h, buf = HT[t[1]]
            adv = ({"ka": k_adv(), "va": v_adv()}.get(t[1], []) if k_ == "ld" else [])
            chk = {"ka": [CHK("BX")], "va": [CHK("BZ")]}.get(t[1], [CHK(f"BY{j>>1}") for j in t[2] if j % 2 == 0])
            streams.append(Stream(chk + adv + ld(h, buf, t[1], t[2]), t[3], t[4], maxper=1))
        elif k_ == "post":
            wtags += list(t[1:])
            streams.append(Stream(flag_post(), GBAR + 1, 93, maxper=1))
        elif k_ == "pf":
            streams.append(Stream([VM("pf", f"buffer_load_dword v15, v{V_DMA}, s[{S_DBG}:{S_DBG+3}], s{S_HOFF} offen")], t[1], t[2]))
        elif k_ == "pollld": streams.append(Stream(poll_load(), t[1], t[2], maxper=1))
        elif k_ in ("pollchk", "pollchk0"):
            ps = len(POLLSITES); POLLSITES.append(ps)
            g = t[1]; assert g % 4 == 1 and not (GBAR - 6 <= g <= GBAR)
            pt = poll_test()
            A[g] += [W("poll")]; T[g] += pt[:2]; novm |= {g, g + 4}
            A[g + 3] += [pt[3]]; A[g + 4] += [f"s_cbranch_scc1 L_pollslow{ps}", f"L_pollok{ps}:"]; nosalu |= {g + 3, g + 4}
            if k_ == "pollchk": A[g + 5] += [f"s_add_u32 s{S_NEED}, s{S_NEED}, 1"]
    A[GBAR - 1] += [W(*wtags)]; novm |= {GBAR}
    A[GBAR - 2] += A[GBAR]; A[GBAR] = ["s_barrier"]
    if endops:
        for st_ in streams: st_.last = min(st_.last, 94)
    fill, over = pack(A, B, C, T, streams, novm, nosalu)
    if over: print(f"iter {name or it}: over budget by {over} cycles", file=sys.stderr)
    out = [f"; ---- iteration {name or it}"]
    for g in range(NG):
        if kind == "q": out.append(qk_mfma(it + 1, g))
        else: out.append(pv_mfma(it - 2, g >> 3, (g >> 1) & 3, g & 1, first=(peel and it == 2)))
        out += fill[g]
    return with_nop(out)

GA = [60, 61]; BP = 62; ONE = 15; RD2 = [9, 10, 11]
RLQ = [48, 52, 56, 128]
RT = [20, 23]
def epi_addr():
    ta = 63
    return [f"v_bfe_u32 v{ta}, v{V_DMA}, 4, 6", f"v_and_b32 v{BP}, 48, v{ta}", f"v_and_b32 v{ta}, 15, v{ta}",
            f"v_mul_u32_u24 v{GA[1]}, 96, v{BP}", f"v_lshl_add_u32 v{GA[0]}, v{ta}, 4, v{GA[1]}", f"v_lshl_add_u32 v{GA[1]}, v{ta}, 3, v{GA[1]}",
            f"s_lshl_b32 s24, s{S_QB}, 2", f"s_add_u32 s24, s24, s{S_WAVE}", f"s_mul_i32 s24, s24, {STAGE}", f"v_mov_b32 v{ONE}, 1.0"] + \
           [f"s_add_u32 s{S_PK0+i}, s24, {6144*i}" for i in range(4)]
def epi_l(qs):
    fl = [f"v_mfma_f32_16x16x4_f32 v[{RLQ[q]}:{RLQ[q]+3}], v{V_L[q]}, v{ONE}, 0" for q in qs]
    return fl, [f"v_rcp_f32 v{RLQ[q]+i}, v{RLQ[q]+i}" for q in qs for i in range(4)]
def epi_q(qb, temps, pk):
    p = []
    for i in range(4):
        ob = temps[(4 * qb + i) % len(temps)]
        rl = RLQ[qb] + i
        p += [f"v_accvgpr_read_b32 v{ob+db}, a{O(qb,db)+i}" for db in range(12)]
        if pk: p += [f"v_pk_mul_f32 v[{ob+2*j}:{ob+2*j+1}], v[{ob+2*j}:{ob+2*j+1}], v[{rl&~1}:{(rl&~1)+1}] op_sel:[0,{rl&1}] op_sel_hi:[1,{rl&1}]" for j in range(6)]
        else: p += [f"v_mul_f32 v{ob+j}, v{ob+j}, v{rl}" for j in range(12)]
        p += [f"v_cvt_pk_bf16_f32 v{ob+j}, v{ob+2*j}, v{ob+2*j+1}" for j in range(6)]
        p += [f"buffer_store_dwordx4 v[{ob}:{ob+3}], v{GA[0]}, s[{S_OUT}:{S_OUT+3}], s{S_PK0+qb} offen offset:{384*i}{OF}",
              f"buffer_store_dwordx2 v[{ob+4}:{ob+5}], v{GA[1]}, s[{S_OUT}:{S_OUT+3}], s{S_PK0+qb} offen offset:{384*i+256}{OF}"]
    return p

def gen_tail():
    passes = [(60, (0, 1)), (62, (0, 1)), (60, (2, 3)), (62, (2, 3))]
    def tg(i): return ("f", "p", i) if i < 24 else ("f", "t", i)
    def rd(i):
        ps, f = divmod(i, 24)
        return frag_read("p", f, V_RDV if passes[ps][0] == 60 else RD2, tg(i))
    def run(ps, fill, lim):
        t0, qbs = passes[ps]
        out = []; fill = list(fill)
        for db in range(12):
            for i, (qb, w) in enumerate([(q, w) for q in qbs for w in (0, 1)]):
                out.append(pv_mfma(t0, db, qb, w))
                cur = []
                gi = 24 * ps + 2 * db
                if i in (0, 2) and gi + (i >> 1) + D < 96: cur.append(rd(gi + (i >> 1) + D))
                if i == 3 and gi + 3 < 96: cur.append(LG(tg(gi + 3)))
                L_ = 16 if i % 2 == 0 else lim
                while fill and gap_time(cur + [fill[0]]) <= L_ + (12 if (text_of(fill[0]).startswith(("buffer", "ds_")) and i % 2) else 0):
                    cur.append(fill.pop(0))
                out += cur
        return out, fill
    thr = f"s_mov_b32 s{S_TMP}, 0x{f32bits(2.0**OPT['thr']):08x}"
    seq = []
    seq += kstamp("ps0", 9)
    c, r = run(0, softmax_part(63, 0), 16); seq += c + r + ["s_nop 1"] + kstamp("ps1", 9)
    c, r = run(1, [f"v_max_f32 v{RT[0]}, v{V_L[0]}, v{V_L[1]}", thr, f"v_cmp_lt_f32 vcc, s{S_TMP}, v{RT[0]}"] + softmax_part(62, 1), 16)
    seq += c + r + ["s_cbranch_vccnz L_slow"] + kstamp("ps2", 9)
    tempsA = [BX, BX + 12, BZ, 132]
    must = softmax_part(63, 1) + [f"v_max_f32 v{RT[0]}, v{V_L[2]}, v{V_L[3]}", f"v_cmp_lt_f32 vcc, s{S_TMP}, v{RT[0]}"]
    m01, r01 = epi_l((0, 1)); m23, r23 = epi_l((2, 3))
    seq += m01
    rest = r01 + epi_q(0, tempsA, False) + epi_q(1, tempsA, False)
    c, r = run(2, must + rest, OPT["tden"])
    nm = max(0, len(r) - len(rest)); c += r[:nm]; r = r[nm:]
    seq += c + ["s_nop 1", "s_cbranch_vccnz L_slow"] + kstamp("ps3", 9)
    seq += m23
    c, r = run(3, r + r23, OPT["tden"]); seq += c + kstamp("rest", 9) + r
    print("tail: left after pass 3:", len(r), file=sys.stderr)
    tempsB = [64 + 12 * i for i in range(5)]
    seq += ["s_nop 4"] + kstamp("e2", 9) + epi_q(2, tempsB, True) + kstamp("e3", 9) + epi_q(3, tempsB, True) + kstamp("fin", 9)
    return seq
def gen_tail3():
    tw = OPT["tw"]
    passes = [("p", 58, (0, 1) if tw else (0, 1, 2, 3)), ("q", 62, (0, 1)), ("p", 60, (0, 1)), ("p", 62, (0, 1))] + ([("p", 58, (2, 3))] if tw else []) + \
             [("q", 62, (2, 3)), ("p", 60, (2, 3))] + ([("p", 62, (2,)), ("p", 62, (3,))] if OPT["tq"] else [("p", 62, (2, 3))])
    RINGR = [V_FR + 4 * i for i in range(NFS)] + [240 + 4 * i for i in range(4)]
    NR = len(RINGR); LA = NR - 2
    RD3 = [12, 13, 14]
    VA = {58: V_RDV, 60: RD2, 62: RD3}
    nf = 24 * len(passes)
    def reg(i): return vr(RINGR[i % NR], 4)
    def tg(i): return ("f", "p", i) if i < D else ("f", "t", i)
    def rd(i):
        ps, f = divmod(i, 24); kind, t0, _ = passes[ps]
        x = frag_read(kind, f, None if kind == "q" else VA[t0], tg(i))
        x.text = x.text.replace(FR(f), reg(i), 1)
        return x
    state = {"next": D}
    def run(ps, fill, lim, bar=None, sec=(), vm=()):
        kind, t0, qbs = passes[ps]
        out = []; fill = list(fill); sec = list(sec); vm = list(vm); n = 2 * len(qbs)
        for F in range(0, 24, 2):
            gi = 24 * ps + F
            if F == 12 and "HOLD" in fill: assert fill[0] == "HOLD", (ps, fill[:3])
            for i, (qb, w) in enumerate([(q, w) for q in qbs for w in (0, 1)]):
                a = reg(gi + w)
                if kind == "q":
                    t = t0 + F // 12; s_, tb = kfrag((F + w) % 12); d = vr(Sq(t, qb, tb), 4)
                    out.append(f"{MF} {d}, {a}, {Qf(qb,s_)}, {vr(NEGM(qb), 4) if (s_ < 2 and w == 0) else d}")
                else:
                    d = ar(O(qb, F >> 1), 4)
                    out.append(f"{MF} {d}, {vr(P(t0+w,qb),4)}, {a}, {d}")
                cur = []
                k = (2 if (n == 2 or state["next"] < gi + LA - 2) else 1) if i % 2 == 0 else 0
                while k and state["next"] < min(nf, gi + LA):
                    cur.append(rd(state["next"])); state["next"] += 1; k -= 1
                if i == n - 1 and gi + 3 < nf: cur.append(LG(tg(gi + 3)))
                if bar and F == 14 and i == 1: cur += [W(bar), "s_barrier"]
                elif vm and i == 1: cur += vm.pop(0)
                L_ = 16 if i % 2 == 0 else lim
                for l in (fill, sec):
                    while l and l[0] != "HOLD" and gap_time(cur + [l[0]]) <= L_ + (12 if (text_of(l[0]).startswith(("buffer", "ds_")) and i % 2) else 0):
                        cur.append(l.pop(0))
                if fill and fill[0] == "HOLD" and F >= 12 and i >= 1 and (F > 12 or i == n - 1): fill.pop(0)
                out += cur
        assert not vm
        return out, [x for x in fill if x != "HOLD"], sec
    den = OPT["tden"]; d0 = OPT["td"]
    thr = f"s_mov_b32 s{S_TMP}, 0x{f32bits(2.0**OPT['thr']):08x}"
    seq = []
    l = dma_tile("v", 62) + dma_tile("v", 63)
    vm = [l[0:1], l[1:2], l[2:3], l[3:4], l[4:7], l[7:8], l[8:9], l[9:10]]
    assert " m0," in l[6]
    rd23 = [f"v_subrev_u32 v{RD2[i]}, {4*STAGE}, v{V_RDV[i]}" for i in range(3)] + [f"v_subrev_u32 v{RD3[i]}, {2*STAGE}, v{V_RDV[i]}" for i in range(3)]
    m01, r01 = epi_l((0, 1)); m23, r23 = epi_l((2, 3))
    c, r, _ = run(0, rd_step("q") + ([] if tw else softmax_part(60, 1)) + softmax_part(61, 0), d0, ("dk", 3), vm=vm); seq += c + r + kstamp("a1", 9)
    c, r, _ = run(1, rd23 + epi_addr() + ["HOLD"] + softmax_part(62, 0), d0, ("dv", 2)); seq += c + kstamp("a2", 9)
    chk01 = [f"v_max_f32 v{RT[0]}, v{V_L[0]}, v{V_L[1]}", thr, f"v_cmp_lt_f32 vcc, s{S_TMP}, v{RT[0]}"]
    c, r, _ = run(2, r + softmax_part(63, 0) + chk01, d0, ("dv", 3)); seq += c + r + m01 + ["s_cbranch_vccnz L_slow"] + kstamp("a3", 9)
    tempsA = [BX, BZ]
    c, r, _ = run(3, softmax_part(60 if tw else 61, 1) + r01, d0); seq += c + r + kstamp("b0", 9)
    e = epi_q(0, tempsA, False) + epi_q(1, tempsA, False)
    ps = 4
    if tw:
        c, r, e = run(4, ["s_nop 3", "HOLD"] + softmax_part(61, 1, (2,)), den, sec=e); seq += c + r + kstamp("b1", 9); ps = 5
    c, r, e = run(ps, (softmax_part(61, 1, (3,)) if tw else ["s_nop 3"]) + ["HOLD"] + softmax_part(62, 1), den, sec=e); seq += c + kstamp("b2", 9)
    chk23 = [f"v_max_f32 v{RT[0]}, v{V_L[2]}, v{V_L[3]}", f"v_cmp_lt_f32 vcc, s{S_TMP}, v{RT[0]}"]
    c, r, e = run(ps + 1, r + softmax_part(63, 1) + chk23, den, sec=e)
    seq += c + r + ["s_nop 0"] + m23 + ["s_cbranch_vccnz L_slow"] + kstamp("b3", 9)
    c, r, e = run(ps + 2, [], den, sec=e + ["s_nop 3"] + r23); seq += c + r + kstamp("b4", 9)
    tempsB = [64 + 12 * i for i in range(5)]
    if OPT["tq"]:
        c, r, e = run(ps + 3, ["s_nop 3"], den, sec=e + epi_q(2, tempsA, False)); seq += c + kstamp("rest", 9) + e
    else:
        seq += e + ["s_nop 4"] + epi_q(2, tempsB, True)
    print("tail3: left after last pass:", len(e), file=sys.stderr)
    seq += ["s_nop 4"] + kstamp("e3", 9) + epi_q(3, tempsB, True) + kstamp("fin", 9)
    return seq
def slow_epi():
    m, r = epi_l((0, 1, 2, 3))
    seq = ["s_nop 1"] + m + ["s_nop 10"] + r + ["s_nop 0"]
    for q in range(4): seq += epi_q(q, [64 + 12 * i for i in range(5)], True)
    return seq

def xlane(op, t):
    l = []
    for sw in ("v_permlane16_swap_b32", "v_permlane32_swap_b32"):
        l += [f"v_mov_b32 v{t+1}, v{t}", "s_nop 1", f"{sw} v{t}, v{t+1}", "s_nop 1", f"{op} v{t}, v{t}, v{t+1}"]
    return l

def gen_slow():
    KF = 64; VF = 112; SS = 160; PP = 224; M = [240, 241, 242, 243]; KA = [244, 245]; LA = [246, 247, 248]; AL = 250; t = V_T
    p = ["L_slow:", "s_waitcnt vmcnt(0) lgkmcnt(0)", "s_nop 15"]
    for i in range(192): p.append(f"v_accvgpr_write_b32 a{i}, 0")
    for q in range(4): p += [f"v_mov_b32 v{V_L[q]}, 0", f"v_mov_b32 v{M[q]}, 0xff7fffff"]
    p += [f"v_subrev_u32 v{KA[i]}, s{S_RK}, v{V_RDK[i]}" for i in range(2)] + [f"v_subrev_u32 v{LA[i]}, s{S_RV}, v{V_RDV[i]}" for i in range(3)]
    p += [f"s_mov_b32 s{S_PT}, 0", "L_slowloop:"]
    p += [f"s_add_u32 s{S_PT+1}, s{S_PT}, 6144", f"s_add_u32 s{S_PT+2}, s{S_PT}, 12288"]
    for f in range(12):
        s, tb = kfrag(f)
        p.append(f"buffer_load_dwordx4 v[{KF+4*f}:{KF+4*f+3}], v{KA[s&1]}, s[{S_WS}:{S_WS+3}], s{S_PT+tb} offen offset:{(s>>1)*128} sc1")
    for db in range(12):
        a, off = vfrag(db)
        p.append(f"buffer_load_dwordx4 v[{VF+4*db}:{VF+4*db+3}], v{LA[a]}, s[{S_WS}:{S_WS+3}], s{S_PT+2} offen offset:{off} sc1")
    p.append("s_waitcnt vmcnt(12)")
    for f in range(12):
        s, tb = kfrag(f)
        for qb in range(4):
            d = vr(SS + 8 * qb + 4 * tb, 4)
            p.append(f"{MF} {d}, v[{KF+4*f}:{KF+4*f+3}], {Qf(qb,s)}, {'0' if s == 0 else d}")
    p.append("s_nop 9")
    for qb in range(4):
        sb = SS + 8 * qb
        p += [f"v_max3_f32 v{t}, v{sb}, v{sb+1}, v{sb+2}", f"v_max3_f32 v{t}, v{t}, v{sb+3}, v{sb+4}",
              f"v_max3_f32 v{t}, v{t}, v{sb+5}, v{sb+6}", f"v_max3_f32 v{t}, v{t}, v{sb+7}, v{M[qb]}"]
        p += xlane("v_max_f32", t)
        p += [f"v_sub_f32 v{t+1}, v{M[qb]}, v{t}", f"v_exp_f32 v{t+1}, v{t+1}", f"v_mov_b32 v{M[qb]}, v{t}"]
        p += [f"ds_bpermute_b32 v{AL+i}, v{BP}, v{t+1} offset:{4*i}" for i in range(4)]
        for i in range(8): p.append(f"v_sub_f32 v{sb+i}, v{sb+i}, v{t}")
        for i in range(8): p.append(f"v_exp_f32 v{sb+i}, v{sb+i}")
        p.append(f"v_mul_f32 v{V_L[qb]}, v{V_L[qb]}, v{t+1}")
        for i in range(8): p.append(f"v_add_f32 v{V_L[qb]}, v{V_L[qb]}, v{sb+i}")
        for i in range(4): p.append(f"v_cvt_pk_bf16_f32 v{PP+4*qb+i}, v{sb+2*i}, v{sb+2*i+1}")
        p.append("s_waitcnt lgkmcnt(0)")
        for i in range(48):
            a = O(qb, 0) + i; tt = t + 2 + (i % 2)
            p += [f"v_accvgpr_read_b32 v{tt}, a{a}", f"v_mul_f32 v{tt}, v{tt}, v{AL+i%4}", f"v_accvgpr_write_b32 a{a}, v{tt}"]
    p += ["s_waitcnt vmcnt(0)", "s_nop 1"]
    for db in range(12):
        for qb in range(4):
            d = ar(O(qb, db), 4)
            p.append(f"{MF} {d}, v[{PP+4*qb}:{PP+4*qb+3}], v[{VF+4*db}:{VF+4*db+3}], {d}")
    p += [f"s_add_u32 s{S_PT}, s{S_PT}, {STAGE}", f"s_cmp_lt_u32 s{S_PT}, {HEADBYTES}", "s_nop 7", "s_cbranch_scc1 L_slowloop"]
    e = slow_epi(); resolve(e)
    return p + fin(e) + ["s_branch L_fin"]

def resolve(seq, check=True):
    vm = []; ds = []; done = 0; tok = set(); where = ""; nm = 0
    for x in seq:
        if isinstance(x, str) and x.startswith("; ----"): where = x; nm = 0
        if isinstance(x, str) and x.startswith("v_mfma"): nm += 1
        if isinstance(x, VM): vm.append(x.tag)
        elif isinstance(x, DS): ds.append(x.tag)
        elif isinstance(x, W):
            for tag in x.tags:
                idx = [i for i, t in enumerate(vm) if t == tag]
                if idx:
                    n = len(vm) - 1 - idx[-1]
                    x.n = n if x.n is None else min(x.n, n)
        elif isinstance(x, LG):
            idx = [i for i, t in enumerate(ds) if t == x.tag]
            assert idx, x.tag
            n = len(ds) - 1 - idx[-1]
            x.n = n if x.n is None else min(x.n, n)
            if idx[-1] >= done:
                x.need = True
                if x.soft: print(f"soft LDS wait needed: {x.tag} n={n} {where} gap {nm}", file=sys.stderr)
            done = max(done, idx[-1] + 1)
        elif isinstance(x, SIG): tok.add(x.name)
        elif isinstance(x, CHK):
            assert x.name in tok or not OPT["prod"], f"token {x.name} missing {where} gap {nm}"
            tok.discard(x.name)
        else:
            assert not x.startswith("ds_") or "lgkmcnt(0)" in " ".join(y for y in seq[seq.index(x):seq.index(x)+3] if isinstance(y, str)), x
            if "lgkmcnt(0)" in x: done = len(ds)
def fin(seq):
    out = []
    for x in seq:
        if isinstance(x, W):
            if not OPT["prod"] and x.n is None: continue
            assert x.n is not None, x.tags
            out.append(f"s_waitcnt vmcnt({min(x.n, 63)})")
        elif isinstance(x, LG):
            if x.need:
                out.append(f"s_waitcnt lgkmcnt({min(x.n, 15)})")
            elif not x.soft: out.append("s_nop 0")
        elif isinstance(x, (VM, DS)): out.append(x.text)
        elif isinstance(x, (SIG, CHK)): pass
        else: out.append(x)
    return out
def srd(s, lo, off_s, size):
    return [f"s_add_u32 s{s}, s{lo}, s{off_s}", f"s_addc_u32 s{s+1}, s{lo+1}, 0", f"s_mov_b32 s{s+2}, {size}", f"s_mov_b32 s{s+3}, 0x20000"]
def sprinkle(code, extra):
    out = []; n = len(code); m = len(extra); j = 0
    for i, x in enumerate(code):
        while j < m and (i + 1) * m > j * n:
            out += extra[j]; j += 1
        if isinstance(x, list): out += x
        else: out.append(x)
    for g in extra[j:]: out += g
    return out

def gen_prologue():
    p = []
    K = f"{NAME}_kernel"
    p += [f"{K}:", "s_load_dwordx16 s[40:55], s[0:1], 0", "s_getpc_b64 s[60:61]", "L_pc:",
          "s_movk_i32 s62, 0x4000", "s_lshl_b32 s63, 1, 17", "v_lshlrev_b32 v31, 6, v0",
          VM("pf", "buffer_load_dword v15, v31, s[60:63], 0 offen"),
          "s_lshr_b32 s24, s2, 8", "s_cbranch_scc1 L_done", "s_load_dwordx4 s[16:19], s[0:1], 64", "v_lshlrev_b32 v30, 4, v0"]
    if OPT["stamp"]:
        p += ["s_mov_b64 s[100:101], s[0:1]" if OPT["stamp"] == 8 else "s_memtime s[100:101]", "s_memrealtime s[98:99]"]
    p += ["v_and_b32 v25, 63, v0", "v_lshrrev_b32 v24, 6, v0", "s_movk_i32 s24, 5120",
          "v_mul_u32_u24 v26, 43, v25", f"v_mad_u32_u24 v{V_VLD}, v24, s24, v30", "s_movk_i32 s24, 384", "v_lshrrev_b32 v26, 10, v26",
          "s_and_b32 s22, s2, 7", f"s_mul_i32 s{S_TMP}, s22, {264 if OPT['rot'] else 256}", f"v_mad_u32_u24 v{V_KLD}, v26, s24, v{V_VLD}",
          "s_andn2_b32 s23, s2, 63", f"s_bfe_u32 s{S_QB}, s2, 0x30003", f"s_add_u32 s{S_TMP}, s{S_TMP}, s23", f"s_add_u32 s{S_TMP}, s{S_TMP}, s{S_QB}",
          f"s_lshr_b32 s23, s{S_TMP}, 1", "s_mulk_i32 s23, 384", f"s_mul_i32 s24, s{S_TMP}, {STAGE}", "v_lshl_add_u32 v27, v25, 3, s23",
          "s_addk_i32 s24, 2048", "s_mov_b32 exec_hi, 0xffff"]
    p += ["s_waitcnt lgkmcnt(0)"] + vstamp("kernarg")
    p += [VM("ksc", "global_load_dwordx2 v[32:33], v27, s[46:47]"), VM("ksc", "global_load_dwordx2 v[34:35], v27, s[48:49]"),
          "s_add_u32 s56, s42, s24", "s_addc_u32 s57, s43, 0"]
    for h in range(2):
        p += [VM(("k0" + "ab"[h], j >> 1), f"global_load_dwordx4 v[{64+16*h+4*j}:{67+16*h+4*j}], v{V_KLD}, s[56:57] offset:{1536*j+384*h-2048}{NTKV}") for j in range(4)]
    p += vstamp("iss k") + ["s_add_u32 s58, s44, s24", "s_addc_u32 s59, s45, 0"]
    vl = [VM(("v0" + "ab"[r >> 2], (r >> 1) & 1), f"global_load_dwordx4 v[{96+4*r}:{99+4*r}], v{V_VLD}, s[58:59] offset:{768*r-2048}{NTKV}") for r in range(8)]
    nv = OPT["nv"]
    p += vl[:nv]
    p += [f"v_readfirstlane_b32 s{S_WAVE}, v24", f"s_lshl_b32 s23, s{S_TMP}, 6", f"s_lshr_b32 s{S_HEAD}, s{S_TMP}, 6",
          f"s_lshl4_add_u32 s23, s{S_WAVE}, s23",
          "s_load_dwordx4 s[64:67], s[50:51], s23", "s_load_dwordx4 s[68:71], s[52:53], s23"]
    p += [f"s_lshl_b32 s22, s{S_HEAD}, 10", f"s_add_u32 s22, s22, {FLAG_OFF}", f"s_or_b32 s{S_LEAD}, s{S_QB}, s{S_WAVE}", "s_cbranch_scc1 L_notleader0",
          "s_load_dwordx8 s[72:79], s[18:19], s22 glc", "L_notleader0:"]
    p += ["s_mov_b32 exec_hi, -1"]
    pv = len(p)
    VQD = 232
    p += [f"s_mul_i32 s24, s{S_HEAD}, 786432"] + srd(S_Q, 40, 24, 786432) + srd(S_OUT, 54, 24, 786432)
    p += [f"s_lshl2_add_u32 s24, s{S_QB}, s{S_WAVE}", f"s_mul_i32 s24, s24, {STAGE}",
          f"s_mul_i32 s{S_QL}, s{S_WAVE}, 18432", f"s_add_u32 s{S_QL}, s{S_QL}, {3*STAGE}"]
    p += [f"v_add_u32 v{VQD+b}, {64*b}, v25" for b in range(6)]
    p += [f"v_mul_u32_u24 v{VQD+8+b}, 2731, v{VQD+b}" for b in range(6)]
    p += [f"v_bfe_u32 v{VQD+8+b}, v{VQD+8+b}, 17, 3" for b in range(6)]
    p += [f"v_xor_b32 v{VQD+b}, v{VQD+b}, v{VQD+8+b}" for b in range(6)]
    p += [f"v_lshl_add_u32 v{VQD+b}, v{VQD+b}, 4, s24" for b in range(6)]
    def q_dma(lst):
        l = []
        for i in lst:
            a, b = divmod(i, 6)
            l.append(([f"s_waitcnt vmcnt({OPT['win'] + (OPT['wins'] if i < n3 + OPT['qd'] else 0)})"] if (OPT["win"] and i >= n2) else []) + [f"s_add_u32 m0, s{S_QL}, {(a%3)*6144 + b*1024}", f"s_movk_i32 s24, {a*6144}",
                      VM(("q", a), f"buffer_load_dwordx4 v{VQD+b}, s[{S_Q}:{S_Q+3}], s24 offen{NTQ} lds")])
        return l
    flat = lambda gs: [x for g in gs for x in g]
    n0 = OPT["q0"]; n1 = n0 + OPT["qa"]; n2 = n1 + OPT["qb"]; n3 = n2 + OPT["qc"]
    assert n3 <= 18
    QD = 128
    def kprep(q, s_, z_):
        return [f"v_lshlrev_b32 v{q}, 16, v{s_}", f"v_and_b32 v{q+1}, s{S_MASK}, v{s_}", f"v_lshlrev_b32 v{q+2}, 16, v{z_}", f"v_and_b32 v{q+3}, s{S_MASK}, v{z_}"]
    t0 = [f"s_mov_b32 s{S_MASK}, 0xffff0000", f"s_mov_b32 s{S_CS}, 0x{f32bits(CSCALE):08x}",
          "v_mul_u32_u24 v27, 24, v26", "v_sub_u32 v27, v25, v27",
          f"v_lshlrev_b32 v{V_KTAB}, 4, v27", f"v_add_u32 v{V_KTAB}, {TAB}, v{V_KTAB}",
          "v_mul_u32_u24 v36, 768, v26", f"v_add_u32 v36, v36, v{V_KTAB}",
          W("ksc")] + kprep(QD, 32, 34) + kprep(QD + 4, 33, 35)
    t0 += [f"v_mul_f32 v{QD+4*u+x}, s{S_CS}, v{QD+4*u+x}" for u in range(2) for x in range(2)]
    t0 += [f"v_mul_f32_e64 v{QD+4*u+2+x}, -v{QD+4*u+2+x}, v{QD+4*u+x}" for u in range(2) for x in range(2)]
    t0 += [["s_mov_b32 exec_hi, 0xffff"] + [DS("t0w", f"ds_write_b128 v36, v[{QD+4*i}:{QD+4*i+3}] offset:{384*i}") for i in range(2)] + ["s_mov_b32 exec_hi, -1"]]
    t0 += [DS("t0r", f"ds_read_b128 v[{QD+4*u}:{QD+4*u+3}], v{V_KTAB} offset:{384*u}") for u in range(4)]
    setup0 = [f"v_mov_b32 v{V_T}, 0", f"v_mov_b32 v{V_T+1}, {RING}", DS("cnt", f"ds_write_b32 v{V_T+1}, v{V_T}")]
    setup = ["v_lshrrev_b32 v48, 1, v26", "v_lshlrev_b32 v48, 30, v48",
          "v_lshlrev_b32 v31, 4, v25", "v_mul_u32_u24 v30, 3072, v24", f"v_add_u32 v{V_DMA}, v30, v31",
          "v_lshl_add_u32 v49, v24, 2, v26", "v_mul_u32_u24 v49, 384, v49", "v_lshlrev_b32 v50, 1, v24", "v_xor_b32 v50, v27, v50",
          "v_lshl_add_u32 v49, v50, 4, v49", f"v_or_b32 v{V_KST}, v49, v48", f"v_xor_b32 v{V_KA}, 16, v{V_KST}",
          "v_lshrrev_b32 v49, 5, v25", "v_sub_u32 v49, 1, v49", "v_and_b32 v49, v49, v24", "v_lshlrev_b32 v49, 4, v49",
          f"v_xor_b32 v49, v49, v{V_DMA}", "v_add_u32 v49, 12288, v49", f"v_or_b32 v{V_VST}, v49, v48",
          f"s_mul_i32 s{S_KW}, s{S_QB}, {STAGE}", f"s_add_u32 s{S_KW2}, s{S_KW}, 6144", f"s_mov_b32 s{S_VW}, s{S_KW}",
          f"s_mul_i32 s{S_RET}, s{S_HEAD}, {WSHEAD}"]
    kv_or = [f"v_or_b32 v{V_KLD}, v{V_KLD}, v48", f"v_or_b32 v{V_VLD}, v{V_VLD}, v48"]
    p += setup0 + t0 + setup
    p[pv:] = sprinkle(p[pv:], [["s_mov_b32 exec_hi, 0xffff", x, "s_mov_b32 exec_hi, -1"] for x in vl[nv:]])
    p += vstamp("iss v") + kv_or + flat(q_dma(range(0, n0))) + vstamp("iss q0") + ["s_waitcnt lgkmcnt(0)"]
    p += srd(S_WS, 18, S_RET, HEADBYTES)
    p += srd(S_FLG, 18, 22, 32)
    p += [f"s_mov_b32 s{S_DBG}, s16", f"s_mov_b32 s{S_DBG+1}, s17", f"s_movk_i32 s{S_DBG+2}, 256", f"s_mov_b32 s{S_DBG+3}, s63", f"s_lshl_b32 s{S_HOFF}, s{S_HEAD}, 3"]
    p += [f"s_cmp_lg_u32 s{S_LEAD}, 0", "s_cbranch_scc1 L_notleader", "s_mov_b32 s24, 1"]
    for i in range(8):
        p += [f"s_lshr_b32 s{72+i}, s{72+i}, 8", f"s_min_u32 s{72+i}, s{72+i}, 31", f"s_bitset1_b32 s24, s{72+i}"]
    p += ["s_ff0_i32_b32 s24, s24", "s_lshl_b32 s24, s24, 8", f"v_mov_b32 v{V_POLL}, s24",
          "s_mov_b64 exec, 1", f"buffer_store_dword v{V_POLL}, off, s[{S_DBG}:{S_DBG+3}], s{S_HOFF} sc1", "s_mov_b64 exec, -1",
          "L_notleader:"]
    kc = []
    for h, buf in ((0, 64), (1, 80)):
        for jp in range(2):
            kc += [W(("k0a" if h == 0 else "k0b", jp))] + k_unit(h, buf, 64, jp, 0, QD + 8 * h) + k_unit(h, buf, 64, jp, 1, QD + 8 * h + 4)
    p += sprinkle(kc, q_dma(range(n0, n1))) + vstamp("kcv")
    p += [k_st(j, 64, "st0")[-1] for j in range(4)]
    p += ["s_mov_b32 exec_hi, 0xffff"] + [DS("own", f"ds_write_b128 v{V_KA if j & 1 else V_KST}, v[{64+4*j}:{64+4*j+3}] offset:{(j&1)*768+(j>>1)*6144}") for j in range(4)] + ["s_mov_b32 exec_hi, -1"]
    p += vstamp("kst")
    vc = []
    for u in range(4):
        q = QD + 4 * u
        vc += [f"s_lshl_b32 s57, s{64+u}, 16", f"s_and_b32 s58, s{64+u}, s{S_MASK}", f"v_mov_b32 v{q}, s57", f"v_mov_b32 v{q+1}, s58",
               f"s_lshl_b32 s57, s{68+u}, 16", f"s_and_b32 s58, s{68+u}, s{S_MASK}", f"v_mul_f32_e64 v{q+2}, -s57, v{q}", f"v_mul_f32_e64 v{q+3}, -s58, v{q+1}"]
    vc += [W(("v0a", 0))] + v_unit(96, 0, QD) + [W(("v0a", 1))] + v_unit(96, 1, QD + 4) + v_pack(0, 96, 96, V_INPLACE)
    vc += [W(("v0b", 0))] + v_unit(112, 0, QD + 8) + [W(("v0b", 1))] + v_unit(112, 1, QD + 12) + v_pack(1, 112, 96, V_INPLACE)
    p += sprinkle(vc, q_dma(range(n1, n2))) + vstamp("vcv")
    p += [x for e in range(4) for x in v_st(e, 96, "st0")]
    p += ["s_mov_b32 exec_hi, 0xffff"] + [DS("own", f"ds_write_b128 v{V_VST}, v[{96+4*e}:{96+4*e+3}] offset:{STAGE - 12288 + e*768}") for e in range(4)] + ["s_mov_b32 exec_hi, -1"]
    p += vstamp("vst")
    s2 = [f"s_lshl_b32 s{S_RET}, s{S_QB}, 2", f"v_lshl_add_u32 v{V_FLAG}, v0, 2, s{S_RET}", "v_cmp_lt_u32 vcc, 0, v0", "v_mov_b32 v30, 0x40000000",
          f"s_mov_b32 s{S_BUDGET}, 100000", f"v_cndmask_b32 v{V_FLAG}, v{V_FLAG}, v30, vcc"]
    s2 += [f"s_mul_i32 s{S_RET}, s{S_HEAD}, {HEADBYTES}"] + [srd(S_QK, 42, S_RET, HEADBYTES), srd(S_QV, 44, S_RET, HEADBYTES)]
    s2 += [f"s_and_b32 s{S_PK0}, s{S_TMP}, 63", f"s_mul_i32 s{S_PK0}, s{S_PK0}, {STAGE}", f"s_mov_b32 s{S_PV0}, s{S_PK0}"]
    s2 += [f"s_mul_i32 s{S_DMK}, s{S_WAVE}, 3072", f"s_add_u32 s{S_DMK}, s{S_DMK}, 12288", f"s_add_u32 s{S_DMV}, s{S_DMK}, {STAGE}",
          f"s_add_u32 s{S_RET}, s{S_QB}, 1", f"s_and_b32 s{S_RET}, s{S_RET}, 7", f"s_mul_i32 s{S_GOFFK}, s{S_RET}, {STAGE}", f"s_add_u32 s{S_GOFF}, s{S_GOFFK}, 12288",
          f"s_mov_b32 s{S_RK}, 0", f"s_mov_b32 s{S_RV}, {STAGE}"]
    s2 += ["v_and_b32 v26, 15, v25", "v_lshrrev_b32 v49, 4, v25", "v_bfe_u32 v28, v25, 1, 3",
           "v_xor_b32 v29, v49, v28", "v_mul_u32_u24 v30, 384, v26", f"v_lshl_add_u32 v{V_RDK[0]}, v29, 4, v30",
           f"v_xor_b32 v{V_RDK[1]}, 64, v{V_RDK[0]}"]
    s2 += [f"v_mul_u32_u24 v50, 3072, v49", f"v_add_u32 v50, {STAGE}, v50", "v_and_b32 v51, 1, v49", "v_lshl_add_u32 v51, v26, 1, v51",
           f"v_lshl_add_u32 v{V_RDV[0]}, v51, 4, v50", f"v_xor_b32 v{V_RDV[1]}, 16, v{V_RDV[0]}",
           f"v_lshl_add_u32 v{V_RDV[2]}, v26, 4, v50", f"v_add_u32 v{V_RDV[2]}, 512, v{V_RDV[2]}"]
    s2 += ["v_lshrrev_b32 v29, 1, v49", "v_xor_b32 v29, v29, v28", "v_lshl_add_u32 v31, v29, 4, v30",
           "v_and_b32 v29, 1, v49", "v_lshl_add_u32 v31, v29, 3, v31"]
    s2 += [f"v_xor_b32 v{32+kk}, {32*kk}, v31" for kk in range(4)] + [f"v_add_u32 v{32+kk}, s{S_QL}, v{32+kk}" for kk in range(4)]
    s2 += [f"v_mov_b32 v{V_L[q]}, 0" for q in range(4)]
    qd = [[f"v_mov_b32 v{V_POLL}, 0"] + tag_load()] + q_dma(range(n2, n3))
    p += sprinkle(s2, qd) + vstamp("iss s2")
    pf2 = ["s_mov_b32 s62, L_slow-L_pc", "s_bfe_u32 s24, s2, 0x20003", "s_add_u32 s24, s24, 1", "s_lshl_b32 s24, s24, 14", "v_lshlrev_b32 v15, 6, v0",
           VM("pf", "buffer_load_dword v15, v15, s[60:63], s24 offen")]
    TR = 80
    tl = [f"s_lshl_b32 s24, s{S_WAVE}, 4", f"s_add_u32 s24, s24, s{S_TMP}",
          f"s_and_b32 s58, s24, 63", f"s_add_u32 s24, s24, 8", "s_and_b32 s57, s24, 63", f"s_andn2_b32 s24, s{S_TMP}, 63",
          "s_or_b32 s58, s58, s24", "s_or_b32 s57, s57, s24",
          "v_mov_b32 v37, s58", "v_mov_b32 v38, s57", "v_cmp_lt_u32 vcc, 15, v25",
          "s_lshr_b32 s58, s58, 1", "s_lshr_b32 s57, s57, 1", "s_mulk_i32 s58, 384", "s_mulk_i32 s57, 384",
          "v_cndmask_b32 v37, v37, v38, vcc", "v_lshl_add_u32 v38, v25, 3, s58", "v_lshl_add_u32 v39, v25, 3, s57",
          "v_lshlrev_b32 v37, 6, v37", "v_lshl_add_u32 v37, v26, 2, v37", "s_mov_b32 exec_hi, 0xffff"]
    for x in range(2):
        tl += [VM("tab", f"global_load_dwordx2 v[{TR+4*x+2*i}:{TR+4*x+2*i+1}], v{38+x}, s[{46+2*i}:{47+2*i}]") for i in range(2)]
    tl += ["s_mov_b32 exec_hi, 0"] + [VM("tab", f"global_load_dword v{TR+8+i}, v37, s[{50+2*i}:{51+2*i}]") for i in range(2)] + ["s_mov_b32 exec_hi, -1"]
    tc = [W("tab")]
    for x in range(2):
        for i in range(2): tc += kprep(112 + 8 * x + 4 * i, TR + 4 * x + i, TR + 4 * x + 2 + i)
    tc += kprep(92, TR + 8, TR + 9)
    tc += [f"v_mul_f32 v{112+4*u+x}, s{S_CS}, v{112+4*u+x}" for u in range(4) for x in range(2)]
    tc += [f"v_mul_f32_e64 v{q+2+x}, -v{q+2+x}, v{q+x}" for q in (112, 116, 120, 124, 92) for x in range(2)]
    tc += [f"s_mul_i32 s57, s{S_WAVE}, {2*TS}", "v_add_u32 v36, s57, v36", f"s_add_u32 s57, s57, {TAB}", "v_lshrrev_b32 v37, 4, v25",
           f"v_mul_u32_u24 v37, {TS}, v37", "v_lshl_add_u32 v37, v26, 4, v37", "v_add_u32 v37, s57, v37",
           ]
    tc += [["s_mov_b32 exec_hi, 0xffff"] + [DS("tabw", f"ds_write_b128 v36, v[{112+8*x+4*i}:{115+8*x+4*i}] offset:{TS*x+384*i}") for x in range(2) for i in range(2)] +
           ["s_mov_b32 exec_hi, 0", DS("tabw", "ds_write_b128 v37, v[92:95] offset:1536"), "s_mov_b32 exec_hi, -1"],
           f"v_add_u32 v{V_KTAB}, {TS}, v{V_KTAB}",
           f"s_lshl_b32 s57, s{S_WAVE}, 6", f"s_add_u32 s57, s57, {TAB+TS+1536}", f"v_mov_b32 v{V_VTAB}, s57"]
    KF = 144
    tq = 48
    def q_read(qb):
        l = [W(("q", qb))] + vstamp(f"q{qb}")
        for s in range(6):
            for h in range(2):
                sp = s + 6 * h
                l.append(DS("qr", f"ds_read_b64 {Qf(qb,s,h)}, v{32+(sp&3)} offset:{(qb%3)*6144 + (sp>>2)*128}"))
        return l
    def qk0(qb):
        l = ["s_waitcnt lgkmcnt(0)"]
        for f in sorted(range(12), key=lambda f: kfrag(f)[::-1]):
            s, tb = kfrag(f)
            d = vr(Sq(0, qb, tb), 4)
            l.append(f"{MF} {d}, v[{KF+4*f}:{KF+4*f+3}], {Qf(qb,s)}, {'0' if s == 0 else d}")
        return l
    def sm0(qb):
        a, b = Sq(0, qb, 0), Sq(0, qb, 1)
        l = [f"v_max3_f32 v{tq}, v{a}, v{a+1}, v{a+2}", f"v_max3_f32 v{tq}, v{tq}, v{a+3}, v{b}",
             f"v_max3_f32 v{tq}, v{tq}, v{b+1}, v{b+2}", f"v_max_f32 v{tq}, v{tq}, v{b+3}"] + xlane("v_max_f32", tq)
        l += [f"v_sub_f32 v{NEGM(qb)+i}, 0, v{tq}" for i in range(4)]
        rest = [f"v_sub_f32 v{r+i}, v{r+i}, v{tq}" for r in (a, b) for i in range(4)]
        rest += [f"v_exp_f32 v{r+i}, v{r+i}" for r in (a, b) for i in range(4)]
        rest += [f"v_add_f32 v{V_L[qb]}, v{V_L[qb]}, v{r+i}" for r in (a, b) for i in range(4)]
        rest += [f"v_cvt_pk_bf16_f32 v{a}, v{a}, v{a+1}", f"v_cvt_pk_bf16_f32 v{a+1}, v{a+2}, v{a+3}",
                 f"v_cvt_pk_bf16_f32 v{a+2}, v{b}, v{b+1}", f"v_cvt_pk_bf16_f32 v{a+3}, v{b+2}, v{b+3}"]
        return l, rest
    def step(qb, extra=()):
        l, rest = sm0(qb)
        return qk0(qb) + ["s_nop 7"] + sprinkle(l + rest, extra)
    post = vstamp("pre tag") + [W("tag", "st0")] + vstamp("tag") + tag_check() + first_post() + stamp("posted") + vstamp("posted")
    bar = q_read(0) + ["s_waitcnt lgkmcnt(0)", "s_barrier"] + stamp("barA") + vstamp("barA")
    kf = []
    for f in range(12):
        s, tb = kfrag(f)
        kf.append(DS("k0f", f"ds_read_b128 v[{KF+4*f}:{KF+4*f+3}], v{V_RDK[s&1]} offset:{tb*6144 + (s>>1)*128}"))
    n4 = n3 + OPT["qd"]; n5 = min(24, n4 + OPT["qe"])
    if OPT["ord"] == 0:
        p += bar + kf + step(0, q_dma(range(n3, n4))) + vstamp("qk0") + post
    else:
        p += bar + post + kf + step(0, q_dma(range(n3, n4))) + vstamp("qk0")
    p += tl
    p += q_read(1) + step(1, q_dma(range(n4, n5))) + vstamp("qk1")
    misc = [k_adv(), v_adv()]
    if OPT["pf2"]:
        misc += [f"s_mov_b32 s{S_DBG}, s60", f"s_mov_b32 s{S_DBG+1}, s61", f"s_mov_b32 s{S_DBG+2}, L_slow-L_pc",
              f"s_lshr_b32 s{S_TP}, s2, 3", f"s_mul_i32 s{S_HOFF}, s{S_TP}, 43", f"s_lshr_b32 s{S_HOFF}, s{S_HOFF}, 7",
              f"s_mul_i32 s{S_RET}, s{S_HOFF}, 3", f"s_sub_u32 s{S_TP}, s{S_TP}, s{S_RET}", f"s_lshl_b32 s{S_TP}, s{S_TP}, 10",
              f"s_mul_i32 s{S_HOFF}, s{S_HOFF}, 12288", f"s_add_u32 s{S_HOFF}, s{S_HOFF}, s{S_TP}"]
    n6 = min(24, n5 + OPT["qf"])
    p += stamp("at poll") + vstamp("at poll") + [x.replace(f"s[{S_PT}:{S_PT+7}]", "s[72:79]") for x in smem_flags()]
    p += sprinkle(misc + tc, q_dma(range(n5, n6))) + vstamp("tc")
    p += poll_smem() + stamp("poll ok") + vstamp("poll ok")
    dm = [with_nop(dma_tile(a, b, True)) for a, b in (("k", 1), ("k", 2), ("k", 3), ("v", 1))]
    kraw = k_ld(0, BX, "ka") + k_ld(1, BY, "kb")
    p += dm[0] + flat(q_dma(range(n6, 24))) + vstamp("iss q")
    p += q_read(2) + step(2, dm[1:3]) + vstamp("qk2") + dm[3]
    l, fl = sm0(3)
    p += q_read(3) + qk0(3) + kraw[:4] + ["s_nop 3"] + l + vstamp("qk3")
    p += [W(("dk", 0))] + vstamp("dk0") + ["s_waitcnt lgkmcnt(0)", "s_barrier"] + [frag_read("q", 12 + f) for f in range(NFS)]
    p += fl[:12]; fl = fl[12:]
    if OPT["stamp"] == 7:
        p += vstamp("loop start") + ["v_writelane_b32 v14, s98, 31", "s_add_u32 s40, s18, 0xfa00000", "s_addc_u32 s41, s19, 0", "s_mov_b32 s42, 1048576", "s_mov_b32 s43, 0x20000",
              "s_lshl_b32 s24, s2, 2", f"s_add_u32 s24, s24, s{S_WAVE}", "s_lshl_b32 s24, s24, 7", f"v_bfe_u32 v15, v{V_DMA}, 4, 6", "v_lshlrev_b32 v15, 2, v15", "s_mov_b64 exec, 0xffffffff",
              VM("stamp", "buffer_store_dword v14, v15, s[40:43], s24 offen"), "s_mov_b64 exec, -1"]
        open(sys.argv[1] + ".stamps", "w").write("\n".join(STAMPS))
    elif OPT["stamp"]:
        p += stamp("loop start") + ["s_memtime s[8:9]"]
    l = dma_tile("v", 2, True) + dma_tile("v", 3, True)
    dl = [l[0:1], l[1:2], l[2:3], l[3:4], l[4:8], l[8:9], l[9:10], l[10:11], l[11:12], l[12:15], l[15:]]
    dl = [[x] for x in kraw[4:]] + [pf2[:5], pf2[5:]]
    p.append("s_nop 0")
    for g in range(48, 96):
        F = 2 * (g >> 3)
        if g % 8 == 0: p.append(LG(("f", "q", F + 1)))
        p.append(qk_mfma(0, g))
        cur = []
        if g % 8 == 7 and F + NFS < 24: cur = [frag_read("q", F + NFS), frag_read("q", F + NFS + 1)]
        elif g % 4 == 1 and dl: cur = dl.pop(0)
        while fl and gap_time(cur + [fl[0]]) <= 16: cur.append(fl.pop(0))
        p += cur
    assert not dl and not fl, (dl, fl)
    p += rd_step("q") + [W(("dk", 1)), "s_barrier"] + [frag_read("q", f) for f in range(D)] + [tq_rd("ka0", TQ[0])]
    if OPT["stamp"]: p += [f"s_mov_b32 s{S_LEAD}, 0"]
    p += [f"s_mov_b32 s{S_CNT}, 5", LG(("f", "q", 1)), SIG("BZ")]
    return p

def gen_main():
    p = gen_prologue()
    K_ = lambda *j: tuple(("k", x) for x in j)
    V_ = lambda *j: tuple(("v", x) for x in j)
    G = lambda it, t, d, **kw: kstamp(f"p{it}", 3) + gen_iter(it, t, dma=d, name=f"p{it}", peel=True, **kw)
    ST = lambda w, g0=57: [(w, 0, g0), (w, 1, g0 + 8), (w, 2, g0 + 16), (w, 3, 85)]
    A4 = (0, 1, 2, 3)
    kc = SCHED[OPT["sch"]][0]
    SE = lambda w: [(w, 0, 1), (w, 1, 9), (w, 2, 17), (w, 3, 25)]
    if OPT["su"] == 0:
        p += G(1, [("ldn", "va", A4, 0, 30), ("cv", "k", 0, 40, 30, 95)], [K_(4, 5) + (20, 74)], extra_sm=True, nostep=True)
        p += G(2, [("cv", "k", 40, NK, 0, 54), ("ld", "vb", (0, 1), 34, 50)] + ST("kst"), [K_(6, 7) + (0, 32)])
        p += G(3, [("ld", "vb", (2, 3), 0, 12), ("ld", "ka", A4, 14, 40), ("post", "kst"), ("cv", "v", 0, 32, 0, 95)], [V_(4, 5) + (40, 74)])
        p += G(4, [("cv", "v", 32, 64, 0, 95), ("pollld", 70, 90)], [V_(6, 7) + (0, 66)])
        p += G(5, [("pollchk", 1), ("cv", "v", 64, NV, 0, 54), ("ld", "kb", (0, 1), 36, 50), ("cv", "k", 0, 10, 63, 95)] + ST("vst"), [K_(8, 9) + (7, 34)])
        p += G(6, [("ld", "kb", (2, 3), 0, 12), ("ld", "va", A4, 14, 40), ("post", "vst"), ("cv", "k", 10, 38, 0, 95)], [K_(10, 11) + (40, 74)])
        p += G(7, [("cv", "k", 38, 66, 0, 95), ("pollld", 70, 90)], [K_(12, 13) + (0, 66)])
        p += G(8, [("pollchk", 1), ("cv", "k", 66, NK, 0, 54), ("ld", "vb", (0, 1), 36, 50), ("cv", "v", 0, 10, 63, 95)] + ST("kst"), [V_(8, 9) + (7, 34)])
        p += G(9, [("ld", "vb", (2, 3), 0, 8), ("ld", "ka", A4, 76, 94), ("post", "kst"), ("cv", "v", 10, 38, 0, 95)], [V_(10, 11) + K_(14, 15) + (10, 74)])
        p += G(10, [("cv", "v", 38, 66, 0, 95), ("pollld", 70, 90)], [V_(12, 13) + (0, 66)])
        p += G(11, [("pollchk", 1), ("cv", "v", 66, NV, 0, 54), ("ld", "kb", (0, 1), 36, 50), ("cv", "k", 0, 10, 63, 95)] + ST("vst"), [K_(16, 17) + (7, 34)])
        p += G(12, [("ld", "kb", (2, 3), 0, 12), ("ld", "va", A4, 14, 40), ("post", "vst"), ("cv", "k", 10, 34, 0, 95)], [V_(14, 15) + (40, 74)])
        p += G(13, [("cv", "k", 34, kc[4], 0, 94), ("pollld", 70, 90)], [K_(18, 19) + (0, 66)], endops=["s_nop 0", "s_branch L_join"])
    else:
        SL = lambda w: [(w, 0, 65), (w, 1, 73), (w, 2, 85), (w, 3, 93)]
        pa = OPT["pa"]; pb = OPT["pb"]
        if OPT["fin"]:
            p += G(1, [("ldn", "va", A4, 50, 90), ("cv", "k", 0, 30, 50, 95)], [K_(4, 5) + (0, 46)], extra_sm=True, nostep=True)
            p += G(2, [("cv", "k", 30, NK, 0, 62), ("ld", "vb", (0, 1), 44, 58)] + SL("kst"), [V_(2, 3) + (0, 42)])
            p += G(3, [("ld", "vb", (2, 3), 4, 12), ("post", "kst"), ("cv", "v", 0, 32, 0, 95)], [K_(6, 7) + V_(4, 5) + (14, 90)])
            p += G(4, [("ld", "ka", A4, 0, 16), ("cv", "v", 32, 64, 0, 95), ("pollld", pa + 10, pa + 16)], [V_(6, 7) + (18, pa + 6)])
        else:
            p += G(1, [("ldn", "va", A4, 0, 30), ("cv", "k", 0, 40, 30, 95)], [K_(4, 5) + (20, 74)], extra_sm=True, nostep=True)
            p += G(2, [("cv", "k", 40, NK, 0, 54), ("ld", "vb", (0, 1), 34, 50)] + ST("kst"), [K_(6, 7) + (0, 32)])
            p += G(3, [("ld", "vb", (2, 3), 0, 12), ("ld", "ka", A4, 14, 40), ("post", "kst"), ("cv", "v", 0, 32, 0, 95)], [V_(4, 5) + (40, 74)])
            p += G(4, [("cv", "v", 32, 64, 0, 95), ("pollld", pa, pa + 6)], [V_(6, 7) + (0, pa - 4)])
        p += G(5, [("pollchk", pb), ("cv", "v", 64, NV, 0, 62), ("ld", "kb", (0, 1), 0, 20), ("cv", "k", 0, 8, 70, 95)] + SL("vst"), [K_(8, 9) + (pb + 6, 58)])
        p += G(6, [("ld", "kb", (2, 3), 4, 14), ("ld", "va", A4, 14, 40), ("post", "vst"), ("cv", "k", 8, 38, 0, 95)], [K_(10, 11) + (40, 74)])
        p += G(7, [("cv", "k", 38, 66, 0, 95), ("pollld", pa, pa + 6)], [K_(12, 13) + (0, pa - 4)])
        p += G(8, [("pollchk", pb), ("cv", "k", 66, NK, 0, 62), ("ld", "vb", (0, 1), 0, 20), ("cv", "v", 0, 8, 70, 95)] + SL("kst"), [V_(8, 9) + (pb + 6, 58)])
        p += G(9, [("ld", "vb", (2, 3), 4, 10), ("ld", "ka", A4, 76, 94), ("post", "kst"), ("cv", "v", 8, 38, 0, 95)], [V_(10, 11) + K_(14, 15) + (12, 74)])
        p += G(10, [("cv", "v", 38, 66, 0, 95), ("pollld", pa + 10, pa + 16)], [V_(12, 13) + (0, pa - 4)])
        p += G(11, [("pollchk", pb), ("cv", "v", 66, NV, 0, 62), ("ld", "kb", (0, 1), 0, 20), ("cv", "k", 0, 8, 70, 95)] + SL("vst"), [K_(16, 17) + (pb + 6, 58)])
        p += G(12, [("ld", "kb", (2, 3), 4, 14), ("ld", "va", A4, 14, 40), ("post", "vst"), ("cv", "k", 8, 34, 0, 95)], [V_(14, 15) + (40, 74)])
        p += G(13, [("cv", "k", 34, kc[4], 0, 94), ("pollld", pa, pa + 6)], [K_(18, 19) + (0, pa - 4)], endops=["s_nop 0", "s_branch L_join"])
    JOIN = 6
    p += [".p2align 6", "L_loop:"]
    pro_ = p
    bodyA = []
    for k in range(8):
        if k == JOIN: bodyA.append("L_join:"); jpos = len(bodyA)
        eo = [f"s_sub_u32 s{S_CNT}, s{S_CNT}, 1", f"s_cmp_lg_u32 s{S_CNT}, 0", "s_cbranch_scc1 L_loop"] if k == 7 else ()
        bodyA += kstamp(f"k{k}") + gen_iter(16 + k, steady(k), endops=eo, name=f"k{k}")
    mid = []
    for k in range(4): mid += kstamp(f"m{k}") + gen_iter(48 + k, steady(k, last=True), name=f"mid{k}")
    mid += [f"s_mov_b32 s{S_CNT}, 2", ".p2align 6", "L_loop2:"]
    bodyC = []
    for k in range(4):
        eo = [f"s_sub_u32 s{S_CNT}, s{S_CNT}, 1", f"s_cmp_lg_u32 s{S_CNT}, 0", "s_cbranch_scc1 L_loop2"] if k == 3 else ()
        t = {1: [("pollld", 84, 94) if OPT["plate"] else ("pollld", 2, 10)] + ([("pf", 60, 76)] if OPT["pf2"] else []), 2: [("pollchk0", OPT["pc"]), ("dmaw", OPT["pc"] + 7, 76)]}.get(k, [])
        bodyC += gen_iter(52 + k, t, name=f"C{k}", endops=eo)
    LE = (stamp("loop end") + ["s_memtime s[10:11]"]) if OPT["stamp"] not in (0, 7) else []
    if OPT["tail"] == 3:
        tailc = LE + kstamp("a0", 9) + gen_tail3() + ["L_fin:"]
    else:
        t60 = gen_iter(60, name="T60", extra=epi_addr())
        t61 = gen_iter(61, dma=[], name="T61", extra_late=[f"v_add_u32 v{RD2[i]}, {2*STAGE}, v{V_RDV[i]}" for i in range(3)])
        for x in t61:
            if isinstance(x, W): x.n = 0; x.tags = ()
        tailc = LE + kstamp("t60", 9) + t60 + kstamp("t61", 9)
        tailc += t61 + gen_tail() + ["L_fin:"]
    resolve(pro_ + bodyA[jpos:] + bodyA + bodyA + mid + bodyC + bodyC + tailc)
    P_ = Prog()
    P_.extend(fin(pro_))
    a0 = len(P_.ins); P_.extend(fin(bodyA)); a1 = len(P_.ins)
    P_.extend(fin(mid))
    c0_ = len(P_.ins); P_.extend(fin(bodyC)); c1 = len(P_.ins)
    P_.extend(fin(tailc))
    p = P_
    if OPT["stamp"] == 8:
        p("s_waitcnt vmcnt(0)")
        p.extend(stamp("end"))
        p("s_load_dwordx2 s[8:9], s[100:101], 64")
        p("s_waitcnt lgkmcnt(0)")
        p("s_mov_b32 s10, 256"); p("s_mov_b32 s11, 0x20000")
        p("s_mov_b64 exec, 1")
        nm = {n: SR(i) for i, n in enumerate(STAMPS)}
        vals = [("not", 98), ("", 98), ("", nm["loop start"]), ("", nm["loop end"]), ("", nm["end"]), ("not", nm["end"]), ("not", nm["loop start"]), ("", nm["posted"])]
        for i, (op, r) in enumerate(vals):
            if op: p(f"s_not_b32 s24, s{r}"); p(f"v_mov_b32 v{64+i}, s24")
            else: p(f"v_mov_b32 v{64+i}, s{r}")
            p(f"buffer_atomic_umax v{64+i}, off, s[8:11], 0 offset:{8*i+4}")
    elif OPT["stamp"] and OPT["stamp"] != 7:
        p("s_waitcnt vmcnt(0)")
        p.extend(stamp("end") + kstamp("drain", 9))
        p("s_memtime s[22:23]")
        p("s_waitcnt lgkmcnt(0)")
        p("s_sub_u32 s22, s22, s100")
        regs = [98] + [SR(i) for i in range(len(STAMPS))]
        p("s_sub_u32 s10, s10, s8")
        regs += [10] * (14 - len(regs)) + [22]
        regs = regs[:15] + [S_LEAD]
        for i, s in enumerate(regs): p(f"v_mov_b32 v{64+i}, s{s}")
        p("s_add_u32 s8, s18, 0xfa00000"); p("s_addc_u32 s9, s19, 0"); p("s_mov_b32 s10, 1048576"); p("s_mov_b32 s11, 0x20000")
        p("s_lshl_b32 s24, s2, 2"); p(f"s_add_u32 s24, s24, s{S_WAVE}"); p("s_lshl_b32 s24, s24, 6")
        p("v_mov_b32 v32, s24")
        p(f"v_cmp_eq_u32 vcc, 0, v{GA[0]}")
        p("s_and_saveexec_b64 s[20:21], vcc")
        for i in range(4):
            p(f"buffer_store_dwordx4 v[{64+4*i}:{67+4*i}], v32, s[8:11], 0 offen offset:{16*i}")
        open(sys.argv[1] + ".stamps", "w").write("\n".join(STAMPS))
    p("L_done:")
    p("s_endpgm")
    main_end0 = len(p.ins)
    for ps in POLLSITES + ["P"]: p.extend(poll_slow(ps))
    p.extend(tag_slow())
    main_end = len(p.ins)
    p.extend(gen_slow())
    slow_end = len(p.ins)
    ji = [i for i, x in enumerate(p.ins) if x.text == "L_join:"][0]
    lin = p.ins[:a0] + p.ins[ji:a1] + p.ins[a0:c1] + p.ins[c0_:main_end0]
    sl = [i for i, x in enumerate(p.ins) if x.text == "L_slowloop:"][0]
    ei = [i for i, x in enumerate(p.ins) if x.text == "L_fin:"][0]
    bi = [i for i, x in enumerate(p.ins) if x.text == "s_cbranch_scc1 L_slowloop"][0]
    probs = check_hazards(lin, "main") + check_hazards(p.ins[main_end:bi+1] + p.ins[sl:slow_end] + p.ins[ei:ei+60], "slow") + check_hazards(p.ins[main_end0:main_end], "aux")
    for x in probs: print(x, file=sys.stderr)
    return p

def kd(name, vgpr, sgpr, accum):
    return f""".amdhsa_kernel {name}
  .amdhsa_next_free_vgpr {vgpr}
  .amdhsa_next_free_sgpr {sgpr}
  .amdhsa_accum_offset {accum}
  .amdhsa_group_segment_fixed_size 0
  .amdhsa_kernarg_size 80
  .amdhsa_user_sgpr_count 2
  .amdhsa_user_sgpr_kernarg_segment_ptr 1
  .amdhsa_system_sgpr_workgroup_id_x 1
.end_amdhsa_kernel
"""
out = HEADER
out += f"; @launch grid=(256,1,1) block=(256,1,1) lds={LDS_BYTES}\n"
out += '.amdgcn_target "amdgcn-amd-amdhsa--gfx950"\n.text\n'
out += f".globl {NAME}_kernel\n.p2align 8\n.type {NAME}_kernel,@function\n" + gen_main().text()
out += '.section .rodata,"a"\n.p2align 6\n' + kd(NAME + "_kernel", 512, 102, 256)
open(sys.argv[1], "w").write(out)
```

```python
import sys, math
from asmlib import *

NAME = "standalone__kv_cache_quant_int4_int2_kv_with_per_channel_or_per_token_scales__prompt"
OPT = dict(stamp=0, prod=1, vmgap=4, sb=6, sa=6, pl=10, ahead=4, thr=64, tden=32, ab=0, pf2=1,
           q0=0, qa=3, qb=3, qc=4, qd=4, qe=2, sl=28, sb1=40, sb2=32, c0=0, c1=81, c2=81, c3=4, pq=53, v23=0, kq=0, vqd=208, kst0=57, rot=1, win=8, nv=4, sch=1, sd=8, pc=29, plate=0, su=2, pa=58, pb=29, fin=1, wins=3, tail=3, td=16, tq=1, tw=1)
for a in sys.argv[2:]:
    k, v = a.split("="); assert k in OPT, k; OPT[k] = int(v)
NS = 6; D = 4
STAGE = 24576
HEADBYTES = 64 * STAGE
RING = NS * STAGE
TS = 1792
TAB = RING + 128
LDS_BYTES = TAB + 8 * TS
CSCALE = (192.0 ** -0.5) * math.log2(math.e)
HEADER = open("cdna_kernels/" + NAME + ".s.ref").read().split("; Override launch geometry")[0]
MF = "v_mfma_f32_16x16x32_bf16"
NG = 96

V_FV = 55; V_RDV = [1, 21, 22]; V_RDK = [2, 3]; V_DMA = 4; V_L = [5, 6, 7, 8]
V_KLD = 9; V_KTAB = 10; V_KST = 11; V_VLD = 12; V_FLAG = 13
V_T = 16; NTP = 2
V_VST = 20; V_VTAB = 23
V_FR = 24; NFS = 6
TQ = [48, 56, 60]; V_VO = 52; BX = 224; BY = 240; BZ = 144
V_POLL = V_VO; V_KA = V_VO + 2
UNIT = [64, 80, 160, 176]; HI = [96, 112]
def Sq(t, qb, tb):
    if tb and (t == 3 or (t == 2 and qb >= 2)): return HI[t % 2] + 4 * (qb ^ 2)
    return (UNIT[t % 4] if tb == 0 else HI[t % 2]) + 4 * qb
def P(t, qb): return UNIT[t % 4] + 4 * qb
def NEGM(qb): return 128 + 4 * qb
def O(qb, db): return (qb * 12 + db) * 4
def Qf(qb, s, half=None):
    i = qb * 6 + s
    base, f = (192 + 4 * i, ar) if i < 16 else (192 + 4 * (i - 16), vr)
    return f(base, 4) if half is None else f(base + 2 * half, 2)
def FR(f): return vr(V_FR + 4 * (f % NFS), 4)

S_RDELTA = 3; S_WS = 4; S_Q = 8; S_OUT = 12; S_FLG = 20
S_WAVE = 25; S_DMK = 26; S_GOFF = 27; S_RK = 28; S_TMP = 29; S_RV = 30; S_CNT = 31; S_GOFFK = 32
S_PK0 = 33; S_PK1 = 34; S_PV0 = 35; S_PV1 = 36; S_KW = 37; S_CS = 38; S_RET = 39; S_KW2 = 80; S_VW = 81; S_QL = 82; S_LEAD = 83
S_PT = 48; S_DMV = 56; S_TK = 57; S_TV = 58; S_TP = 59
S_QK = 64; S_QV = 68; S_DBG = 88
S_NEED = 92; S_HOFF = 93; S_HEAD = 94; S_QB = 95; S_BUDGET = 96; S_MASK = 97
FLAG_OFF = 64 << 20
WSHEAD = HEADBYTES + 8 * STAGE
SC1 = " sc1"; NTKV = " nt"; NTQ = " nt"; STF = " sc1"; OF = " sc0 sc1"

STAMPS = []
def SR(i): return ([40, 42, 44, 46, 0, 72, 74, 76, 78, 84, 86, 16, 98, 100] if OPT['stamp'] in (3, 6, 9) else [16, 40, 42, 44, 84, 86, 0])[i]
def kstamp(name, mode=6):
    if OPT["stamp"] != mode: return []
    i = len(STAMPS); STAMPS.append(name)
    return [f"s_memtime s[{SR(i)}:{SR(i)+1}]"]
def vstamp(name):
    if OPT["stamp"] != 7: return []
    i = len(STAMPS); STAMPS.append(name)
    return ["s_memrealtime s[100:101]", "s_waitcnt lgkmcnt(0)", f"v_writelane_b32 v14, s100, {i}"]
def stamp(name):
    if OPT["stamp"] not in (1, 8): return []
    i = len(STAMPS); STAMPS.append(name)
    return [f"s_memrealtime s[{SR(i)}:{SR(i)+1}]"]

class W:
    def __init__(self, *tags): self.tags = tags; self.n = None
class VM:
    def __init__(self, tag, text): self.tag = tag; self.text = text
class LG:
    def __init__(self, tag, soft=False): self.tag = tag; self.n = None; self.need = False; self.soft = soft
class DS:
    def __init__(self, tag, text): self.tag = tag; self.text = text
class SIG:
    def __init__(self, name): self.name = name
class CHK:
    def __init__(self, name): self.name = name

def softmax_part(t, half, qbs=None):
    flat = []; prev = None
    qbs = qbs or (2 * half, 2 * half + 1)
    for gp in range(4 * len(qbs)):
        qb = qbs[gp // 4]; pi = gp % 4
        t0 = V_T + 2 * (gp % NTP); t1 = t0 + 1
        src = Sq(t, qb, pi >> 1) + 2 * (pi & 1)
        E = [f"v_exp_f32 v{t0}, v{src}", f"v_exp_f32 v{t1}, v{src+1}"]
        A = [f"v_add_f32 v{V_L[qb]}, v{V_L[qb]}, v{t0}", f"v_add_f32 v{V_L[qb]}, v{V_L[qb]}, v{t1}"]
        C = [f"v_cvt_pk_bf16_f32 v{P(t,qb)+pi}, v{t0}, v{t1}"]
        if OPT["ab"] == 1: A = []
        if OPT["ab"] == 2: A = [f"v_pk_add_f32 v[6:7], v[6:7], v[{t0}:{t1}]"]
        if OPT["ab"] == 3: A = []; C = C + [f"v_dot2_f32_bf16 v{V_L[qb]}, v{P(t,qb)+pi}, v14, v{V_L[qb]}"]
        if OPT["ab"] == 4: A = []; C = C + [f"v_dot2c_f32_bf16 v{V_L[qb]}, v{P(t,qb)+pi}, v14"]
        flat += E if prev is None else [E[0]] + prev[0] + [E[1]] + prev[1]
        prev = (A, C)
    return flat + prev[0] + prev[1]

def kfrag(g):
    return 2 * (g >> 2) + (g & 1), (g >> 1) & 1
def vfrag(db):
    return (db >> 2, (db & 3) * 768)
def frag_read(kind, f, regs=None, tag=None):
    if kind == "q":
        s, tb = kfrag(f % 12)
        return DS(tag or ("f", kind, f), f"ds_read_b128 {FR(f)}, v{V_RDK[s&1]} offset:{(f//12)*12288 + tb*6144 + (s>>1)*128}")
    a, off = vfrag(f >> 1)
    return DS(tag or ("f", kind, f), f"ds_read_b128 {FR(f)}, v{(regs or V_RDV)[a]} offset:{(f&1)*12288 + off}")

def dma_tile(part, pos, peel=False):
    dm, go, tmp = (S_DMK, S_GOFFK, S_TK) if part == "k" else (S_DMV, S_GOFF, S_TV)
    l = [f"s_mov_b32 m0, s{dm}"]
    for j in range(3):
        l.append(VM(("d" + part, (pos >> 1) % 4), f"buffer_load_dwordx4 v{V_DMA}, s[{S_WS}:{S_WS+3}], s{go} offen offset:{j*1024}{SC1} lds"))
    if peel and pos < 7:
        l += [f"s_add_u32 s{go}, s{go}, {STAGE}", f"s_sub_u32 s{tmp}, s{go}, {8*STAGE}", f"s_min_u32 s{go}, s{go}, s{tmp}"]
    elif peel and pos == 7:
        l += [f"s_mov_b32 s{go}, {8*STAGE + (0 if part == 'k' else 12288)}"]
    else:
        l += [f"s_add_u32 s{go}, s{go}, {STAGE}"]
    if pos % 2 == 0: l += [f"s_add_u32 s{dm}, s{dm}, 12288"]
    else: l += [f"s_add_u32 s{dm}, s{dm}, {2*STAGE - 12288}", f"s_sub_u32 s{tmp}, s{dm}, {RING}", f"s_min_u32 s{dm}, s{dm}, s{tmp}"]
    return l
def with_nop(l):
    out = []
    real = [i for i, x in enumerate(l) if not isinstance(x, (SIG, CHK))]
    nxt = {a: b for a, b in zip(real, real[1:])}
    for i, x in enumerate(l):
        out.append(x)
        if isinstance(x, str) and " m0," in x and i in nxt and isinstance(l[nxt[i]], VM): out.append("s_nop 0")
    return out
def rd_step(kind):
    cur, regs = (S_RK, V_RDK) if kind == "q" else (S_RV, V_RDV)
    return [f"s_add_u32 s{S_TMP}, s{cur}, {2*STAGE}", f"s_sub_u32 s{S_RDELTA}, s{S_TMP}, {RING}",
            f"s_min_u32 s{S_TMP}, s{S_TMP}, s{S_RDELTA}", f"s_sub_u32 s{S_RDELTA}, s{S_TMP}, s{cur}", f"s_mov_b32 s{cur}, s{S_TMP}"] + \
           [f"v_add_u32 v{r}, s{S_RDELTA}, v{r}" for r in regs]

def k_ld(h, buf, tag, js=range(4)):
    return [VM((tag, j >> 1), f"buffer_load_dwordx4 v[{buf+4*j}:{buf+4*j+3}], v{V_KLD}, s[{S_QK}:{S_QK+3}], s{S_PK0 if j < 2 else S_PK1} offen offset:{(j&1)*1536+384*h}{NTKV}")
            for j in js]
def v_ld(h, buf, tag, js=range(4)):
    return [VM((tag, r >> 1), f"buffer_load_dwordx4 v[{buf+4*r}:{buf+4*r+3}], v{V_VLD}, s[{S_QV}:{S_QV+3}], s{S_PV0 if h == 0 else S_PV1} offen offset:{r*768}{NTKV}")
            for r in js]
def k_unit(h, buf, out, jp, i, q):
    ab = [(buf + 4 * j + 2 * i, buf + 4 * j + 2 * i + 1) for j in (2 * jp, 2 * jp + 1)]
    return [f"v_cvt_f32_i32 v{r}, v{r}" for a, b in ab for r in (a, b)] + \
           [f"v_fma_f32 v{r}, v{r}, v{q+x}, v{q+2+x}" for a, b in ab for x, r in enumerate((a, b))] + \
           [f"v_cvt_pk_bf16_f32 v{out+4*j+2*h+i}, v{a}, v{b}" for j, (a, b) in zip((2 * jp, 2 * jp + 1), ab)]
def v_unit(buf, i, q):
    l = []
    for e0 in (0, 2):
        ab = [(buf + 8 * i + e, buf + 8 * i + 4 + e) for e in (e0, e0 + 1)]
        l += [f"v_cvt_f32_i32 v{r}, v{r}" for a, b in ab for r in (a, b)]
        l += [f"v_fma_f32 v{r}, v{r}, v{q+x}, v{q+2+x}" for a, b in ab for x, r in enumerate((a, b))]
    return l
def v_pack(h, buf, out, lst):
    return [f"v_cvt_pk_bf16_f32 v{out+4*e+2*h+i}, v{buf+8*i+e}, v{buf+8*i+4+e}" for e, i in lst]
V_INPLACE = [(0, 0), (1, 0), (0, 1), (1, 1), (2, 0), (2, 1), (3, 0), (3, 1)]
def tq_rd(name, q):
    if name[0] == "k": va, off = V_KTAB, "ab".index(name[1]) * 768 + int(name[2]) * 384
    else: va, off = V_VTAB, ("ab".index(name[1]) * 2 + int(name[2])) * 16
    return DS(("tq", name), f"ds_read_b128 v[{q}:{q+3}], v{va} offset:{off}")
def ins(l, i, x): return l[:i] + x + l[i:]
def chain_k():
    T0, T1, T2 = TQ
    c = [tq_rd("ka1", T1), W(("ka", 0)), LG(("tq", "ka0"), True)] + ins(k_unit(0, BX, BX, 0, 0, T0), 3, [tq_rd("kb0", T2)])
    c += [LG(("tq", "ka1"), True)] + k_unit(0, BX, BX, 0, 1, T1) + [W(("ka", 1))] + k_unit(0, BX, BX, 1, 0, T0) + k_unit(0, BX, BX, 1, 1, T1)
    c += [tq_rd("kb1", T0), W(("kb", 0)), LG(("tq", "kb0"), True)] + ins(k_unit(1, BY, BX, 0, 0, T2), 3, [tq_rd("va0", T1), f"v_add_u32 v{V_KTAB}, {TS}, v{V_KTAB}"])
    c += [LG(("tq", "kb1"), True)] + k_unit(1, BY, BX, 0, 1, T0) + [SIG("BY0"), W(("kb", 1))] + k_unit(1, BY, BX, 1, 0, T2) + k_unit(1, BY, BX, 1, 1, T0)
    return c + [SIG("BY1"), SIG("Kdone")]
def chain_v(last=False):
    T0, T1, T2 = TQ
    c = [tq_rd("va1", T2), W(("va", 0)), LG(("tq", "va0"), True)] + ins(v_unit(BZ, 0, T1), 3, [tq_rd("vb0", T0)])
    c += [tq_rd("vb1", T1), W(("va", 1)), LG(("tq", "va1"), True)] + ins(v_unit(BZ, 1, T2), 3, [f"v_add_u32 v{V_VTAB}, {TS}, v{V_VTAB}"]) + v_pack(0, BZ, BZ, V_INPLACE)
    c += [W(("vb", 0)), LG(("tq", "vb0"), True)] + v_unit(BY, 0, T0) + ([] if last else [tq_rd("ka0", T0)]) + v_pack(1, BY, BZ, [(e, 0) for e in range(4)]) + [SIG("BY0")]
    c += [W(("vb", 1)), LG(("tq", "vb1"), True)] + v_unit(BY, 1, T1) + v_pack(1, BY, BZ, [(e, 1) for e in range(4)])
    return c + [SIG("BY1"), SIG("Vdone")]
def cut(c, n0, n1):
    out = []; n = 0; pend = []
    for x in c:
        if isinstance(x, str) and x.startswith("v_"):
            if n0 <= n < n1: out += pend + [x]
            pend = []; n += 1
        elif isinstance(x, SIG):
            if n0 <= n - 1 < n1: out.append(x)
        else: pend.append(x)
    assert not pend
    return out
def k_st(j, out, tag="kst"):
    return [VM(tag, f"buffer_store_dwordx4 v[{out+4*j}:{out+4*j+3}], v{V_KA if j & 1 else V_KST}, s[{S_WS}:{S_WS+3}], s{S_KW if j < 2 else S_KW2} offen offset:{(j&1)*768}{STF}")]
def v_st(e, out, tag="vst"):
    return [VM(tag, f"buffer_store_dwordx4 v[{out+4*e}:{out+4*e+3}], v{V_VST}, s[{S_WS}:{S_WS+3}], s{S_VW} offen offset:{e*768}{STF}")]
def adv(r0, r1, w):
    return [f"s_add_u32 s{r0}, s{r0}, {8*STAGE}", f"s_sub_u32 s{r1}, s{r0}, {HEADBYTES}", f"s_min_u32 s{r0}, s{r0}, s{r1}", f"s_add_u32 s{r1}, s{r0}, 3072"] + \
           [f"s_add_u32 s{x}, s{x}, {8*STAGE}" for x in w]
def k_adv(): return adv(S_PK0, S_PK1, (S_KW, S_KW2))
def v_adv(): return adv(S_PV0, S_PV1, (S_VW,))
HT = {"ka": (k_ld, 0, BX), "kb": (k_ld, 1, BY), "va": (v_ld, 0, BZ), "vb": (v_ld, 1, BY)}
def flag_post():
    return [f"v_add_u32 v{V_FV}, 1, v{V_FV}",
            VM("flag", f"buffer_store_dword v{V_FV}, v{V_FLAG}, s[{S_FLG}:{S_FLG+3}], 0 offen sc1")]
def poll_addr():
    return [f"v_bfe_u32 v{V_POLL+1}, v{V_DMA}, 4, 6", f"v_lshlrev_b32 v{V_POLL+1}, 2, v{V_POLL+1}"]
def poll_load():
    return poll_addr() + [VM("poll", f"buffer_load_dword v{V_POLL}, v{V_POLL+1}, s[{S_FLG}:{S_FLG+3}], 0 offen sc1")]
def poll_test():
    return [f"v_subrev_u32 v{V_POLL}, s{S_NEED}, v{V_POLL}", f"v_cmp_lt_u32 vcc, 15, v{V_POLL}", "s_nop 0", f"s_and_b32 s{S_TP}, vcc_lo, 0xff"]
def smem_flags():
    return [f"s_buffer_load_dwordx8 s[{S_PT}:{S_PT+7}], s[{S_FLG}:{S_FLG+3}], 0 glc"]
def smem_test():
    l = smem_flags() + ["s_waitcnt lgkmcnt(0)"]
    for i in range(8): l.append(f"s_sub_u32 s{S_PT+i}, s{S_PT+i}, s{S_NEED}")
    for i in range(1, 8): l.append(f"s_max_u32 s{S_PT}, s{S_PT}, s{S_PT+i}")
    return l + [f"s_cmp_lt_u32 s{S_PT}, 16"]
def poll_slow(site):
    l = [f"L_pollslow{site}:"]
    if OPT["stamp"] and site != "P": l += [f"s_add_u32 s{S_LEAD}, s{S_LEAD}, {1 << (3 * site)}"]
    if site != "P":
        l += [f"s_mov_b32 s{S_TP}, 200", f"L_pollsm{site}:"] + smem_test() + [f"s_cbranch_scc1 L_pollok{site}",
              f"s_sub_u32 s{S_TP}, s{S_TP}, 1", f"s_cbranch_scc1 L_pollvec{site}", "s_sleep 1", f"s_branch L_pollsm{site}"]
    l += [f"L_pollvec{site}:",
            f"s_sub_u32 s{S_BUDGET}, s{S_BUDGET}, 1",
            f"s_cbranch_scc1 L_pollgiveup{site}",
            "s_sleep 2",
            f"buffer_load_dword v{V_POLL}, v{V_POLL+1}, s[{S_FLG}:{S_FLG+3}], 0 offen sc1",
            "s_waitcnt vmcnt(0)"] + poll_test() + [
            f"s_cbranch_scc1 L_pollvec{site}",
            f"s_branch L_pollok{site}",
            f"L_pollgiveup{site}:",
            f"s_mov_b32 s{S_BUDGET}, 0",
            f"s_branch L_pollok{site}"]
    return l
def tag_load():
    return [VM("tag", f"buffer_load_dword v{V_POLL}, off, s[{S_DBG}:{S_DBG+3}], s{S_HOFF} sc1")]
def tag_check():
    return [f"v_readfirstlane_b32 s{S_NEED}, v{V_POLL}", f"s_mov_b32 s{S_RET}, 100",
            "L_tagretry:", f"s_cmp_lg_u32 s{S_NEED}, 0", "s_cbranch_scc1 L_tagok",
            f"s_sub_u32 s{S_RET}, s{S_RET}, 1", "s_cbranch_scc1 L_tagslow", "s_sleep 8",
            f"s_buffer_load_dword s{S_NEED}, s[{S_DBG}:{S_DBG+3}], s{S_HOFF} glc", "s_waitcnt lgkmcnt(0)", "s_branch L_tagretry",
            "L_tagok:", f"s_add_u32 s{S_NEED}, s{S_NEED}, 1", f"v_mov_b32 v{V_FV}, s{S_NEED}"]
def first_post():
    return ["s_mov_b64 exec, 1", f"v_mov_b32 v{V_T}, 1", f"v_mov_b32 v{V_T+1}, {RING}",
            f"ds_add_rtn_u32 v{V_T}, v{V_T+1}, v{V_T}", "s_waitcnt lgkmcnt(0)",
            f"v_readfirstlane_b32 s24, v{V_T}", "s_nop 0", "s_cmp_lg_u32 s24, 3", "s_cbranch_scc1 L_nopost",
            f"s_lshl_b32 s{S_RET}, s{S_QB}, 2",
            f"buffer_store_dword v{V_FV}, off, s[{S_FLG}:{S_FLG+3}], s{S_RET} sc1",
            "L_nopost:", "s_mov_b64 exec, -1"]
def poll_smem():
    l = poll_addr() + [f"s_mov_b32 s{S_RET}, 200", "s_waitcnt lgkmcnt(0)"]
    l += [f"s_sub_u32 s{72+i}, s{72+i}, s{S_NEED}" for i in range(8)] + [f"s_max_u32 s72, s72, s{72+i}" for i in range(1, 8)]
    l += ["s_cmp_lt_u32 s72, 16", "s_cbranch_scc1 L_pollokP", "L_pollretry:"] + smem_test()
    l += ["s_cbranch_scc1 L_pollokP",
          f"s_sub_u32 s{S_RET}, s{S_RET}, 1", "s_cbranch_scc1 L_pollslowP", "s_sleep 1", "s_branch L_pollretry",
          "L_pollokP:", f"s_add_u32 s{S_NEED}, s{S_NEED}, 1"]
    return l
def tag_slow():
    return ["L_tagslow:",
            f"s_sub_u32 s{S_BUDGET}, s{S_BUDGET}, 1",
            "s_cbranch_scc1 L_taggiveup",
            "s_sleep 2",
            f"buffer_load_dword v{V_POLL}, off, s[{S_DBG}:{S_DBG+3}], s{S_HOFF} sc1",
            "s_waitcnt vmcnt(0)",
            f"v_readfirstlane_b32 s{S_NEED}, v{V_POLL}", "s_nop 0", f"s_cmp_eq_u32 s{S_NEED}, 0", "s_cbranch_scc1 L_tagslow",
            "s_branch L_tagok",
            "L_taggiveup:",
            f"s_mov_b32 s{S_BUDGET}, 0",
            "s_branch L_tagok"]

def text_of(x):
    if isinstance(x, (W, LG)): return "s_waitcnt"
    if isinstance(x, (VM, DS)): return x.text
    if isinstance(x, (SIG, CHK)): return ""
    return x
def kind_of(x):
    if isinstance(x, (SIG, CHK)) or (isinstance(x, LG) and x.soft): return "label"
    t = text_of(x)
    if t.endswith(":"): return "label"
    if t.startswith("v_"): return "valu"
    if t.startswith("ds_"): return "ds"
    if t.startswith("buffer_store"): return "store"
    if t.startswith("buffer_"): return "load"
    return "salu"
def cost_of(x):
    k = kind_of(x)
    if k == "label": return 0
    t = text_of(x)
    if k == "store": return 20 if "x4" in t else (12 if "x2" in t else 8)
    if k == "load": return 8
    if t.startswith("ds_write_b128"): return 12
    if t.startswith("v_exp"): return 8
    if t.startswith("s_nop"): return 4 * (int(t.split()[1]) + 1)
    if t.startswith("s_cbranch") or t.startswith("s_branch"): return 12
    if t.startswith("s_barrier"): return 8
    return 4
def gap_time(ops):
    t = 4; prev = None
    for o in ops:
        k = kind_of(o)
        if k == "label": continue
        if k == "salu": t += cost_of(o)
        else: t = max(t, 8) + cost_of(o) + (8 if (k != "valu" and prev == "valu") else 0)
        prev = k
    return t

class Stream:
    def __init__(self, ops, first, last, maxper=99):
        self.ops = list(ops); self.first = first; self.last = last; self.maxper = maxper
        self.total = sum(cost_of(o) for o in self.ops); self.done = 0; self.i = 0

def pack(A, B, C, T, streams, novm=(), nosalu=(), ng=NG):
    out = []; over = 0; lastvm = -99
    pend = {o.name for st in streams for o in st.ops if isinstance(o, SIG)} | {o.name for l in B for o in l if isinstance(o, SIG)}
    placed = set()
    for g in range(ng):
        pend -= placed
        placed |= {o.name for o in B[g] if isinstance(o, SIG)}
        a, b, c, tl = list(A[g]), list(B[g]), list(C[g]), list(T[g])
        cnt = {}; inC = set(); blocked = set()
        while True:
            best = None; bl = None; bsec = None
            for st in streams:
                if st.i >= len(st.ops) or g < st.first: continue
                force = g >= st.last
                o = st.ops[st.i]; k = kind_of(o); cst = cost_of(o)
                if isinstance(o, CHK) and o.name in pend:
                    assert not force, o.name
                    continue
                if k == "label":
                    if isinstance(o, SIG): placed.add(o.name)
                    best = st; bsec = "c" if (id(st) in inC or isinstance(o, SIG)) else "b"; bl = (True, True, 1e9); break
                if (cnt.get(id(st), 0) >= st.maxper or id(st) in blocked) and not force: continue
                if k == "salu" and g in nosalu:
                    assert not force
                    continue
                if k in ("load", "store") and (g in novm or g - lastvm < OPT["vmgap"]) and not force: continue
                if k == "ds" and any(kind_of(x) in ("ds", "load", "store") for x in b) and not force: continue
                if k in ("load", "store", "ds"):
                    sec = "b" if id(st) not in inC and id(st) not in blocked else "c"
                    if sec == "c" and not force: continue
                elif k == "salu" and not a and cnt.get(id(st), 0) == 0 and not any(x is not None for x in b if isinstance(x, (LG, CHK))):
                    sec = "a"
                else: sec = "c"
                tgt = st.total * (g - st.first + 1) / (st.last - st.first + 1)
                lag = tgt - st.done
                if not force:
                    if lag < cst / 2 - OPT["ahead"] and cst: continue
                    trial = (a + [o] if sec == "a" else a) + (b + [o] if sec == "b" else b) + (c + [o] if sec == "c" else c) + tl
                    if gap_time(trial) > 16:
                        if not (lag > 24 and gap_time(trial) <= 20): continue
                        if g % 2 == 0: continue
                key = (force, k in ("load", "store"), lag / max(1, (st.last - g + 1)) ** 0.5)
                if best is None or key > bl: best = st; bl = key; bsec = sec
            if best is None: break
            o = best.ops[best.i]
            {"a": a, "b": b, "c": c}[bsec].append(o)
            if bsec == "c": inC.add(id(best))
            if kind_of(o) != "label":
                if " m0," in text_of(o): blocked.add(id(best))
                if kind_of(o) in ("load", "store"): lastvm = g
                cnt[id(best)] = cnt.get(id(best), 0) + 1
            best.i += 1; best.done += cost_of(o)
        ops = a + b + c + tl
        tt = gap_time(ops)
        if tt > 16: over += tt - 16
        out.append(ops)
    for st in streams: assert st.i == len(st.ops), [text_of(o) for o in st.ops[st.i:]]
    return out, over

NK = 81; NV = 81
SCHED = {
    0: ((0, 6, 23, 40, 57, 72, NK), (0, 12, 40, 66, NV)),
    1: ((0, 0, 19, 38, 57, 76, NK), (0, 6, 37, 69, NV)),
    2: ((0, 0, 20, 40, 60, 80, NK), (0, 6, 38, 70, NV)),
    3: ((0, 0, 20, 40, 61, NK, NK), (0, 8, 38, 70, NV)),
}
def steady(k, last=False):
    s0 = OPT["kst0"]; sd = OPT["sd"]; kc, vc = SCHED[OPT["sch"]]
    gs = [s0, s0 + sd, s0 + 2 * sd, s0 + 3 * sd]
    gs = [g + 4 if GBAR - 2 <= g <= GBAR + 2 else g for g in gs]
    st = lambda w: [(w, j, g) for j, g in enumerate(gs)] + [("dmaw", 0, s0 - OPT["sb"] - 1)]
    pc = OPT["pc"]
    if OPT["plate"]:
        pl2, pl5 = [("pollld", 92, 94)], [("pollld", 84, 94)]
    else:
        pl2, pl5 = [("pollld", 0, 8)], [("pollld", 2, 10)]
    k0s = kc[5] if OPT["sch"] == 3 else None
    t = {
        0: [("post", "kst"), ("cv", "v", vc[1], vc[2], 0, 95), ("ld", "vb", (2, 3), 0, 14), ("ld", "ka", (0, 1, 2, 3), 16, 50), ("dmaw", 20, 74)],
        1: [("cv", "v", vc[2], vc[3], 0, 95), ("ld", "kb", (0, 1), 76, 94)],
        2: [("cv", "v", vc[3], NV, 0, s0 - 3), ("cv", "k", kc[0], kc[1], s0 + 6, 95)] + pl2 + st("vst"),
        3: [("post", "vst"), ("pollchk", pc), ("ld", "kb", (2, 3), 0, 20), ("cv", "k", kc[1], kc[2], 0, 95), ("dmaw", pc + 7, 76)],
        4: [("cv", "k", kc[2], kc[3], 0, 95), ("ld", "va", (0, 1, 2, 3), 0, 44)],
        5: [("cv", "k", kc[3], kc[4], 0, 95)] + pl5 + ([("pf", 60, 76)] if OPT["pf2"] else []),
        6: [("cv", "k", kc[4], kc[5], 0, 95), ("pollchk", pc), ("ld", "vb", (0, 1), 80, 94), ("dmaw", pc + 7, 76)],
        7: [("cv", "k", kc[5], kc[6], 0, s0 - 3), ("cv", "v", vc[0], vc[1], s0 + 6 if kc[5] < NK else 0, 94)] + st("kst"),
    }[k]
    t = [x for x in t if not (x[0] == "cv" and x[2] >= x[3])]
    if last:
        t = [x for x in t if not ((x[0] == "cv" and x[1] == "k") or (x[0] == "ld" and x[1] != "vb") or (x[0] == "ld" and k > 0))]
        t = [("cv", "vl") + x[2:] if x[:2] == ("cv", "v") else x for x in t]
    return t

GBAR = 4 * (24 - D) - 1
POLLSITES = []
def qk_mfma(t0, g):
    qb = (g >> 1) & 3
    F = 2 * (g >> 3) + (g & 1)
    t = t0 + F // 12; s, tb = kfrag(F % 12)
    d = vr(Sq(t, qb, tb), 4)
    c = vr(NEGM(qb), 4) if (s < 2 and g % 2 == 0) else d
    return f"{MF} {d}, {FR(F)}, {Qf(qb,s)}, {c}"
def pv_mfma(t0, db, qb, w, first=False):
    d = ar(O(qb, db), 4)
    return f"{MF} {d}, {vr(P(t0+w,qb),4)}, {FR(2*db+w)}, {'0' if (first and w == 0) else d}"

def gen_iter(it, tasks=(), dma=None, name=None, endops=(), peel=False, extra_sm=False, nostep=False, extra=(), extra_late=()):
    kind = "q" if it % 2 else "p"
    nk = "p" if kind == "q" else "q"
    A = [[] for _ in range(NG)]; B = [[] for _ in range(NG)]; C = [[] for _ in range(NG)]; T = [[] for _ in range(NG)]
    streams = []; novm = set(range(0, NG, 2)); nosalu = set()
    for F in range(24):
        fr = F + D
        B[4 * F].append(frag_read(kind, fr) if fr < 24 else frag_read(nk, fr - 24))
    for F in range(2, 25, 2):
        A[4 * F - 1].append(LG(("f", kind, F + 1) if F < 24 else ("f", nk, 1)))
    smB = softmax_part(it, 1); smA = softmax_part(it + 1, 0)
    if extra_sm: smB = softmax_part(it, 0) + smB
    if kind == "q":
        streams.append(Stream(smB, 0, 50)); streams.append(Stream(smA, 52, 95))
    else:
        streams.append(Stream(smB + smA, 0, 95))
    if endops:
        A[92] += endops[:1]; A[94] += [A[95][0]] + list(endops[1:-1]); A[95] = []; T[95] = list(endops[-1:]); nosalu |= {94, 95}
    if extra: streams.append(Stream(extra, 0, 90))
    if extra_late: streams.append(Stream(extra_late, GBAR + 1, 94))
    if not OPT["prod"]: tasks = ()
    if dma is None:
        w = [t[1:] for t in tasks if t[0] == "dmaw"]
        w = w[0] if w else (0, GBAR - 5)
        p0 = it + 5 if kind == "q" else it + 2
        c_ = "k" if kind == "q" else "v"
        dma = [((c_, p0), (c_, p0 + 1)) + tuple(w)]
    for grp in dma:
        dl = []
        for part, pos in grp[:-2]: dl += dma_tile(part, pos, peel)
        n = max(i for i, x in enumerate(dl) if isinstance(x, VM)) + 1
        streams.append(Stream(dl[:n], grp[-2], grp[-1], maxper=2))
        streams.append(Stream(dl[n:], grp[-1] + 1, min(93 if endops else 95, grp[-1] + 12), maxper=2))
    nj = ((it + 2) // 2) if nk == "q" else (it - 1) // 2
    wtags = [("dk" if nk == "q" else "dv", nj % 4)]
    if not nostep:
        streams.append(Stream(rd_step(nk), 30, GBAR - 3, maxper=1))
    for t in tasks:
        k_ = t[0]
        if k_ == "cv":
            c = {"k": chain_k, "v": chain_v, "vl": lambda: chain_v(True)}[t[1]]()
            streams.append(Stream(cut(c, t[2], t[3]), t[4], t[5]))
        elif k_ in ("kst", "vst"):
            grp = k_st(t[1], BX) if k_ == "kst" else v_st(t[1], BZ)
            g = t[2]; assert g % 4 == 1 and not B[g], g
            if t[1] == 0: B[g].append(CHK("Kdone" if k_ == "kst" else "Vdone"))
            B[g].append(grp[-1]); novm |= set(range(g - OPT["sb"], g + OPT["sa"] + 1))
            if t[1] == 3: B[g].append(SIG("BX" if k_ == "kst" else "BZ"))
            if grp[:-1]: streams.append(Stream(grp[:-1], max(0, g - 5), g - 1))
        elif k_ in ("ld", "ldn"):
            ld, h, buf = HT[t[1]]
            adv = ({"ka": k_adv(), "va": v_adv()}.get(t[1], []) if k_ == "ld" else [])
            chk = {"ka": [CHK("BX")], "va": [CHK("BZ")]}.get(t[1], [CHK(f"BY{j>>1}") for j in t[2] if j % 2 == 0])
            streams.append(Stream(chk + adv + ld(h, buf, t[1], t[2]), t[3], t[4], maxper=1))
        elif k_ == "post":
            wtags += list(t[1:])
            streams.append(Stream(flag_post(), GBAR + 1, 93, maxper=1))
        elif k_ == "pf":
            streams.append(Stream([VM("pf", f"buffer_load_dword v15, v{V_DMA}, s[{S_DBG}:{S_DBG+3}], s{S_HOFF} offen")], t[1], t[2]))
        elif k_ == "pollld": streams.append(Stream(poll_load(), t[1], t[2], maxper=1))
        elif k_ in ("pollchk", "pollchk0"):
            ps = len(POLLSITES); POLLSITES.append(ps)
            g = t[1]; assert g % 4 == 1 and not (GBAR - 6 <= g <= GBAR)
            pt = poll_test()
            A[g] += [W("poll")]; T[g] += pt[:2]; novm |= {g, g + 4}
            A[g + 3] += [pt[3]]; A[g + 4] += [f"s_cbranch_scc1 L_pollslow{ps}", f"L_pollok{ps}:"]; nosalu |= {g + 3, g + 4}
            if k_ == "pollchk": A[g + 5] += [f"s_add_u32 s{S_NEED}, s{S_NEED}, 1"]
    A[GBAR - 1] += [W(*wtags)]; novm |= {GBAR}
    A[GBAR - 2] += A[GBAR]; A[GBAR] = ["s_barrier"]
    if endops:
        for st_ in streams: st_.last = min(st_.last, 94)
    fill, over = pack(A, B, C, T, streams, novm, nosalu)
    if over: print(f"iter {name or it}: over budget by {over} cycles", file=sys.stderr)
    out = [f"; ---- iteration {name or it}"]
    for g in range(NG):
        if kind == "q": out.append(qk_mfma(it + 1, g))
        else: out.append(pv_mfma(it - 2, g >> 3, (g >> 1) & 3, g & 1, first=(peel and it == 2)))
        out += fill[g]
    return with_nop(out)

GA = [60, 61]; BP = 62; ONE = 15; RD2 = [9, 10, 11]
RLQ = [48, 52, 56, 128]
RT = [20, 23]
def epi_addr():
    ta = 63
    return [f"v_bfe_u32 v{ta}, v{V_DMA}, 4, 6", f"v_and_b32 v{BP}, 48, v{ta}", f"v_and_b32 v{ta}, 15, v{ta}",
            f"v_mul_u32_u24 v{GA[1]}, 96, v{BP}", f"v_lshl_add_u32 v{GA[0]}, v{ta}, 4, v{GA[1]}", f"v_lshl_add_u32 v{GA[1]}, v{ta}, 3, v{GA[1]}",
            f"s_lshl_b32 s24, s{S_QB}, 2", f"s_add_u32 s24, s24, s{S_WAVE}", f"s_mul_i32 s24, s24, {STAGE}", f"v_mov_b32 v{ONE}, 1.0"] + \
           [f"s_add_u32 s{S_PK0+i}, s24, {6144*i}" for i in range(4)]
def epi_l(qs):
    fl = [f"v_mfma_f32_16x16x4_f32 v[{RLQ[q]}:{RLQ[q]+3}], v{V_L[q]}, v{ONE}, 0" for q in qs]
    return fl, [f"v_rcp_f32 v{RLQ[q]+i}, v{RLQ[q]+i}" for q in qs for i in range(4)]
def epi_q(qb, temps, pk):
    p = []
    for i in range(4):
        ob = temps[(4 * qb + i) % len(temps)]
        rl = RLQ[qb] + i
        p += [f"v_accvgpr_read_b32 v{ob+db}, a{O(qb,db)+i}" for db in range(12)]
        if pk: p += [f"v_pk_mul_f32 v[{ob+2*j}:{ob+2*j+1}], v[{ob+2*j}:{ob+2*j+1}], v[{rl&~1}:{(rl&~1)+1}] op_sel:[0,{rl&1}] op_sel_hi:[1,{rl&1}]" for j in range(6)]
        else: p += [f"v_mul_f32 v{ob+j}, v{ob+j}, v{rl}" for j in range(12)]
        p += [f"v_cvt_pk_bf16_f32 v{ob+j}, v{ob+2*j}, v{ob+2*j+1}" for j in range(6)]
        p += [f"buffer_store_dwordx4 v[{ob}:{ob+3}], v{GA[0]}, s[{S_OUT}:{S_OUT+3}], s{S_PK0+qb} offen offset:{384*i}{OF}",
              f"buffer_store_dwordx2 v[{ob+4}:{ob+5}], v{GA[1]}, s[{S_OUT}:{S_OUT+3}], s{S_PK0+qb} offen offset:{384*i+256}{OF}"]
    return p

def gen_tail():
    passes = [(60, (0, 1)), (62, (0, 1)), (60, (2, 3)), (62, (2, 3))]
    def tg(i): return ("f", "p", i) if i < 24 else ("f", "t", i)
    def rd(i):
        ps, f = divmod(i, 24)
        return frag_read("p", f, V_RDV if passes[ps][0] == 60 else RD2, tg(i))
    def run(ps, fill, lim):
        t0, qbs = passes[ps]
        out = []; fill = list(fill)
        for db in range(12):
            for i, (qb, w) in enumerate([(q, w) for q in qbs for w in (0, 1)]):
                out.append(pv_mfma(t0, db, qb, w))
                cur = []
                gi = 24 * ps + 2 * db
                if i in (0, 2) and gi + (i >> 1) + D < 96: cur.append(rd(gi + (i >> 1) + D))
                if i == 3 and gi + 3 < 96: cur.append(LG(tg(gi + 3)))
                L_ = 16 if i % 2 == 0 else lim
                while fill and gap_time(cur + [fill[0]]) <= L_ + (12 if (text_of(fill[0]).startswith(("buffer", "ds_")) and i % 2) else 0):
                    cur.append(fill.pop(0))
                out += cur
        return out, fill
    thr = f"s_mov_b32 s{S_TMP}, 0x{f32bits(2.0**OPT['thr']):08x}"
    seq = []
    seq += kstamp("ps0", 9)
    c, r = run(0, softmax_part(63, 0), 16); seq += c + r + ["s_nop 1"] + kstamp("ps1", 9)
    c, r = run(1, [f"v_max_f32 v{RT[0]}, v{V_L[0]}, v{V_L[1]}", thr, f"v_cmp_lt_f32 vcc, s{S_TMP}, v{RT[0]}"] + softmax_part(62, 1), 16)
    seq += c + r + ["s_cbranch_vccnz L_slow"] + kstamp("ps2", 9)
    tempsA = [BX, BX + 12, BZ, 132]
    must = softmax_part(63, 1) + [f"v_max_f32 v{RT[0]}, v{V_L[2]}, v{V_L[3]}", f"v_cmp_lt_f32 vcc, s{S_TMP}, v{RT[0]}"]
    m01, r01 = epi_l((0, 1)); m23, r23 = epi_l((2, 3))
    seq += m01
    rest = r01 + epi_q(0, tempsA, False) + epi_q(1, tempsA, False)
    c, r = run(2, must + rest, OPT["tden"])
    nm = max(0, len(r) - len(rest)); c += r[:nm]; r = r[nm:]
    seq += c + ["s_nop 1", "s_cbranch_vccnz L_slow"] + kstamp("ps3", 9)
    seq += m23
    c, r = run(3, r + r23, OPT["tden"]); seq += c + kstamp("rest", 9) + r
    print("tail: left after pass 3:", len(r), file=sys.stderr)
    tempsB = [64 + 12 * i for i in range(5)]
    seq += ["s_nop 4"] + kstamp("e2", 9) + epi_q(2, tempsB, True) + kstamp("e3", 9) + epi_q(3, tempsB, True) + kstamp("fin", 9)
    return seq
class Passes:
    def __init__(self, passes, ring, name, issued=0, t0kind=None):
        self.ps = passes; self.ring = ring; self.LA = len(ring) - 2; self.name = name
        self.idx = []
        self.start = []
        for n, p in enumerate(passes):
            self.start.append(len(self.idx))
            self.idx += [(n, f) for f in range(p.get("f0", 0), D if p.get("look") else 24)]
        self.next = issued; self.issued = issued; self.t0kind = t0kind
    def tg(self, i):
        n, f = self.idx[i]
        if self.ps[n].get("look"): return ("f", self.ps[n]["kind"], f)
        if i < self.issued: return ("f", self.t0kind, i)
        return ("f", self.name, i)
    def reg(self, i): return vr(self.ring[i % len(self.ring)], 4)
    def rd(self, i):
        n, f = self.idx[i]; p = self.ps[n]
        x = frag_read(p["kind"], f, p.get("addr"), self.tg(i))
        x.text = x.text.replace(FR(f), self.reg(i), 1)
        if p.get("look"): assert self.reg(i) == FR(f)
        return (list(p.get("pre", ())) if i == self.start[n] else []) + [x]
    def prime(self, n):
        out = []
        while self.next < n: out += self.rd(self.next); self.next += 1
        return out + [LG(self.tg(1))]
    def run(self, ps, fill, lim, bar=None, sec=(), vm=(), barF=14, vmi=1):
        p = self.ps[ps]; kind, t0, qbs = p["kind"], p["t0"], p["qbs"]
        out = [f"; ---- pass {self.name}{ps}"]; fill = list(fill); sec = list(sec); vm = list(vm); n = 2 * len(qbs); nf = len(self.idx)
        f0 = p.get("f0", 0)
        for F in range(f0, 24, 2):
            gi = self.start[ps] + F - f0
            if F == 12 and self.name == "t" and "HOLD" in fill: assert fill[0] == "HOLD", (ps, fill[:3])
            for i, (qb, w) in enumerate([(q, w) for q in qbs for w in (0, 1)]):
                a = self.reg(gi + w)
                if kind == "q":
                    t = t0 + F // 12; s_, tb = kfrag((F + w) % 12); d = vr(Sq(t, qb, tb), 4)
                    c = ("0" if p.get("cz") else vr(NEGM(qb), 4)) if (s_ < 2 and w == 0) else d
                    out.append(f"{MF} {d}, {a}, {Qf(qb,s_)}, {c}")
                else:
                    d = ar(O(qb, F >> 1), 4)
                    out.append(f"{MF} {d}, {vr(P(t0+w,qb),4)}, {a}, {'0' if (p.get('first') and w == 0) else d}")
                cur = []
                lim_ = gi + (6 if len(self.ring) == 6 else self.LA)
                k = (2 if (n == 2 or self.next < lim_ - 2) else 1) if i % 2 == 0 else 0
                while k and self.next < min(nf, lim_):
                    cur += self.rd(self.next); self.next += 1; k -= 1
                if i == n - 1 and gi + 3 < nf: cur.append(LG(self.tg(gi + 3)))
                if bar and F == barF and i == 1: cur += [W(*bar), "s_barrier"]
                elif vm and i == vmi: cur += vm.pop(0)
                L_ = 16 if i % 2 == 0 else lim
                for l in (fill, sec):
                    while l and l[0] != "HOLD" and gap_time(cur + [l[0]]) <= L_ + (12 if (text_of(l[0]).startswith(("buffer", "ds_")) and i % 2) else 0):
                        if kind_of(l[0]) == "ds" and any(kind_of(x) == "valu" for x in cur): break
                        cur.append(l.pop(0))
                if fill and fill[0] == "HOLD" and F >= 12 and i >= 1 and (F > 12 or i == n - 1): fill.pop(0)
                out += cur
        assert not vm, vm
        return with_nop(out), [x for x in fill if x != "HOLD"], sec

def gen_tail3():
    tw = OPT["tw"]
    RD3 = [12, 13, 14]
    VA = {58: V_RDV, 60: RD2, 62: RD3}
    pl = [("p", 58, (0, 1) if tw else (0, 1, 2, 3)), ("q", 62, (0, 1)), ("p", 60, (0, 1)), ("p", 62, (0, 1))] + ([("p", 58, (2, 3))] if tw else []) + \
         [("q", 62, (2, 3)), ("p", 60, (2, 3))] + ([("p", 62, (2,)), ("p", 62, (3,))] if OPT["tq"] else [("p", 62, (2, 3))])
    PS = Passes([dict(kind=k, t0=t, qbs=q, addr=(VA[t] if k == "p" else None)) for k, t, q in pl],
                [V_FR + 4 * i for i in range(NFS)] + [240 + 4 * i for i in range(4)], "t", issued=D, t0kind="p")
    def run(ps, fill, lim, bar=None, sec=(), vm=()): return PS.run(ps, fill, lim, (bar,) if bar else None, sec, vm)
    den = OPT["tden"]; d0 = OPT["td"]
    thr = f"s_mov_b32 s{S_TMP}, 0x{f32bits(2.0**OPT['thr']):08x}"
    seq = []
    l = dma_tile("v", 62) + dma_tile("v", 63)
    vm = [l[0:1], l[1:2], l[2:3], l[3:4], l[4:7], l[7:8], l[8:9], l[9:10]]
    assert " m0," in l[6]
    rd23 = [f"v_subrev_u32 v{RD2[i]}, {4*STAGE}, v{V_RDV[i]}" for i in range(3)] + [f"v_subrev_u32 v{RD3[i]}, {2*STAGE}, v{V_RDV[i]}" for i in range(3)]
    m01, r01 = epi_l((0, 1)); m23, r23 = epi_l((2, 3))
    c, r, _ = run(0, rd_step("q") + ([] if tw else softmax_part(60, 1)) + softmax_part(61, 0), d0, ("dk", 3), vm=vm); seq += c + r + kstamp("a1", 9)
    c, r, _ = run(1, rd23 + epi_addr() + ["HOLD"] + softmax_part(62, 0), d0, ("dv", 2)); seq += c + kstamp("a2", 9)
    chk01 = [f"v_max_f32 v{RT[0]}, v{V_L[0]}, v{V_L[1]}", thr, f"v_cmp_lt_f32 vcc, s{S_TMP}, v{RT[0]}"]
    c, r, _ = run(2, r + softmax_part(63, 0) + chk01, d0, ("dv", 3)); seq += c + r + m01 + ["s_cbranch_vccnz L_slow"] + kstamp("a3", 9)
    tempsA = [BX, BZ]
    c, r, _ = run(3, softmax_part(60 if tw else 61, 1) + r01, d0); seq += c + r + kstamp("b0", 9)
    e = epi_q(0, tempsA, False) + epi_q(1, tempsA, False)
    ps = 4
    if tw:
        c, r, e = run(4, ["s_nop 3", "HOLD"] + softmax_part(61, 1, (2,)), den, sec=e); seq += c + r + kstamp("b1", 9); ps = 5
    c, r, e = run(ps, (softmax_part(61, 1, (3,)) if tw else ["s_nop 3"]) + ["HOLD"] + softmax_part(62, 1), den, sec=e); seq += c + kstamp("b2", 9)
    chk23 = [f"v_max_f32 v{RT[0]}, v{V_L[2]}, v{V_L[3]}", f"v_cmp_lt_f32 vcc, s{S_TMP}, v{RT[0]}"]
    c, r, e = run(ps + 1, r + softmax_part(63, 1) + chk23, den, sec=e)
    seq += c + r + ["s_nop 0"] + m23 + ["s_cbranch_vccnz L_slow"] + kstamp("b3", 9)
    c, r, e = run(ps + 2, [], den, sec=e + ["s_nop 3"] + r23); seq += c + r + kstamp("b4", 9)
    tempsB = [64 + 12 * i for i in range(5)]
    if OPT["tq"]:
        c, r, e = run(ps + 3, ["s_nop 3"], den, sec=e + epi_q(2, tempsA, False)); seq += c + kstamp("rest", 9) + e
    else:
        seq += e + ["s_nop 4"] + epi_q(2, tempsB, True)
    print("tail3: left after last pass:", len(e), file=sys.stderr)
    seq += ["s_nop 4"] + kstamp("e3", 9) + epi_q(3, tempsB, True) + kstamp("fin", 9)
    return seq
def slow_epi():
    m, r = epi_l((0, 1, 2, 3))
    seq = ["s_nop 1"] + m + ["s_nop 10"] + r + ["s_nop 0"]
    for q in range(4): seq += epi_q(q, [64 + 12 * i for i in range(5)], True)
    return seq

def xlane(op, t):
    l = []
    for sw in ("v_permlane16_swap_b32", "v_permlane32_swap_b32"):
        l += [f"v_mov_b32 v{t+1}, v{t}", "s_nop 1", f"{sw} v{t}, v{t+1}", "s_nop 1", f"{op} v{t}, v{t}, v{t+1}"]
    return l

def gen_slow():
    KF = 64; VF = 112; SS = 160; PP = 224; M = [240, 241, 242, 243]; KA = [244, 245]; LA = [246, 247, 248]; AL = 250; t = V_T
    p = ["L_slow:", "s_waitcnt vmcnt(0) lgkmcnt(0)", "s_nop 15"]
    for i in range(192): p.append(f"v_accvgpr_write_b32 a{i}, 0")
    for q in range(4): p += [f"v_mov_b32 v{V_L[q]}, 0", f"v_mov_b32 v{M[q]}, 0xff7fffff"]
    p += [f"v_subrev_u32 v{KA[i]}, s{S_RK}, v{V_RDK[i]}" for i in range(2)] + [f"v_subrev_u32 v{LA[i]}, s{S_RV}, v{V_RDV[i]}" for i in range(3)]
    p += [f"s_mov_b32 s{S_PT}, 0", "L_slowloop:"]
    p += [f"s_add_u32 s{S_PT+1}, s{S_PT}, 6144", f"s_add_u32 s{S_PT+2}, s{S_PT}, 12288"]
    for f in range(12):
        s, tb = kfrag(f)
        p.append(f"buffer_load_dwordx4 v[{KF+4*f}:{KF+4*f+3}], v{KA[s&1]}, s[{S_WS}:{S_WS+3}], s{S_PT+tb} offen offset:{(s>>1)*128} sc1")
    for db in range(12):
        a, off = vfrag(db)
        p.append(f"buffer_load_dwordx4 v[{VF+4*db}:{VF+4*db+3}], v{LA[a]}, s[{S_WS}:{S_WS+3}], s{S_PT+2} offen offset:{off} sc1")
    p.append("s_waitcnt vmcnt(12)")
    for f in range(12):
        s, tb = kfrag(f)
        for qb in range(4):
            d = vr(SS + 8 * qb + 4 * tb, 4)
            p.append(f"{MF} {d}, v[{KF+4*f}:{KF+4*f+3}], {Qf(qb,s)}, {'0' if s == 0 else d}")
    p.append("s_nop 9")
    for qb in range(4):
        sb = SS + 8 * qb
        p += [f"v_max3_f32 v{t}, v{sb}, v{sb+1}, v{sb+2}", f"v_max3_f32 v{t}, v{t}, v{sb+3}, v{sb+4}",
              f"v_max3_f32 v{t}, v{t}, v{sb+5}, v{sb+6}", f"v_max3_f32 v{t}, v{t}, v{sb+7}, v{M[qb]}"]
        p += xlane("v_max_f32", t)
        p += [f"v_sub_f32 v{t+1}, v{M[qb]}, v{t}", f"v_exp_f32 v{t+1}, v{t+1}", f"v_mov_b32 v{M[qb]}, v{t}"]
        p += [f"ds_bpermute_b32 v{AL+i}, v{BP}, v{t+1} offset:{4*i}" for i in range(4)]
        for i in range(8): p.append(f"v_sub_f32 v{sb+i}, v{sb+i}, v{t}")
        for i in range(8): p.append(f"v_exp_f32 v{sb+i}, v{sb+i}")
        p.append(f"v_mul_f32 v{V_L[qb]}, v{V_L[qb]}, v{t+1}")
        for i in range(8): p.append(f"v_add_f32 v{V_L[qb]}, v{V_L[qb]}, v{sb+i}")
        for i in range(4): p.append(f"v_cvt_pk_bf16_f32 v{PP+4*qb+i}, v{sb+2*i}, v{sb+2*i+1}")
        p.append("s_waitcnt lgkmcnt(0)")
        for i in range(48):
            a = O(qb, 0) + i; tt = t + 2 + (i % 2)
            p += [f"v_accvgpr_read_b32 v{tt}, a{a}", f"v_mul_f32 v{tt}, v{tt}, v{AL+i%4}", f"v_accvgpr_write_b32 a{a}, v{tt}"]
    p += ["s_waitcnt vmcnt(0)", "s_nop 1"]
    for db in range(12):
        for qb in range(4):
            d = ar(O(qb, db), 4)
            p.append(f"{MF} {d}, v[{PP+4*qb}:{PP+4*qb+3}], v[{VF+4*db}:{VF+4*db+3}], {d}")
    p += [f"s_add_u32 s{S_PT}, s{S_PT}, {STAGE}", f"s_cmp_lt_u32 s{S_PT}, {HEADBYTES}", "s_nop 7", "s_cbranch_scc1 L_slowloop"]
    e = slow_epi(); resolve(e)
    return p + fin(e) + ["s_branch L_fin"]

def resolve(seq, check=True):
    vm = []; ds = []; done = 0; tok = set(); where = ""; nm = 0
    for x in seq:
        if isinstance(x, str) and x.startswith("; ----"): where = x; nm = 0
        if isinstance(x, str) and x.startswith("v_mfma"): nm += 1
        if isinstance(x, VM): vm.append(x.tag)
        elif isinstance(x, DS): ds.append(x.tag)
        elif isinstance(x, W):
            for tag in x.tags:
                idx = [i for i, t in enumerate(vm) if t == tag]
                if idx:
                    n = len(vm) - 1 - idx[-1]
                    x.n = n if x.n is None else min(x.n, n)
        elif isinstance(x, LG):
            idx = [i for i, t in enumerate(ds) if t == x.tag]
            assert idx, x.tag
            n = len(ds) - 1 - idx[-1]
            x.n = n if x.n is None else min(x.n, n)
            if idx[-1] >= done:
                x.need = True
                if x.soft: print(f"soft LDS wait needed: {x.tag} n={n} {where} gap {nm}", file=sys.stderr)
            done = max(done, idx[-1] + 1)
        elif isinstance(x, SIG): tok.add(x.name)
        elif isinstance(x, CHK):
            assert x.name in tok or not OPT["prod"], f"token {x.name} missing {where} gap {nm}"
            tok.discard(x.name)
        else:
            assert not x.startswith("ds_") or "lgkmcnt(0)" in " ".join(y for y in seq[seq.index(x):seq.index(x)+3] if isinstance(y, str)), x
            if "lgkmcnt(0)" in x: done = len(ds)
def fin(seq):
    out = []
    for x in seq:
        if isinstance(x, W):
            if not OPT["prod"] and x.n is None: continue
            assert x.n is not None, x.tags
            out.append(f"s_waitcnt vmcnt({min(x.n, 63)})")
        elif isinstance(x, LG):
            if x.need:
                out.append(f"s_waitcnt lgkmcnt({min(x.n, 15)})")
            elif not x.soft: out.append("s_nop 0")
        elif isinstance(x, (VM, DS)): out.append(x.text)
        elif isinstance(x, (SIG, CHK)): pass
        else: out.append(x)
    return out
def srd(s, lo, off_s, size):
    return [f"s_add_u32 s{s}, s{lo}, s{off_s}", f"s_addc_u32 s{s+1}, s{lo+1}, 0", f"s_mov_b32 s{s+2}, {size}", f"s_mov_b32 s{s+3}, 0x20000"]
def sprinkle(code, extra):
    out = []; n = len(code); m = len(extra); j = 0
    for i, x in enumerate(code):
        while j < m and (i + 1) * m > j * n:
            out += extra[j]; j += 1
        if isinstance(x, list): out += x
        else: out.append(x)
    for g in extra[j:]: out += g
    return out

def gen_prologue():
    p = []
    K = f"{NAME}_kernel"
    p += [f"{K}:", "s_load_dwordx16 s[40:55], s[0:1], 0", "s_getpc_b64 s[60:61]", "L_pc:",
          "s_movk_i32 s62, 0x4000", "s_lshl_b32 s63, 1, 17", "v_lshlrev_b32 v31, 6, v0",
          VM("pf", "buffer_load_dword v15, v31, s[60:63], 0 offen"),
          "s_lshr_b32 s24, s2, 8", "s_cbranch_scc1 L_done", "s_load_dwordx4 s[16:19], s[0:1], 64", "v_lshlrev_b32 v30, 4, v0"]
    if OPT["stamp"]:
        p += ["s_mov_b64 s[100:101], s[0:1]" if OPT["stamp"] == 8 else "s_memtime s[100:101]", "s_memrealtime s[98:99]"]
    p += ["v_and_b32 v25, 63, v0", "v_lshrrev_b32 v24, 6, v0", "s_movk_i32 s24, 5120",
          "v_mul_u32_u24 v26, 43, v25", f"v_mad_u32_u24 v{V_VLD}, v24, s24, v30", "s_movk_i32 s24, 384", "v_lshrrev_b32 v26, 10, v26",
          "s_and_b32 s22, s2, 7", f"s_mul_i32 s{S_TMP}, s22, {264 if OPT['rot'] else 256}", f"v_mad_u32_u24 v{V_KLD}, v26, s24, v{V_VLD}",
          "s_andn2_b32 s23, s2, 63", f"s_bfe_u32 s{S_QB}, s2, 0x30003", f"s_add_u32 s{S_TMP}, s{S_TMP}, s23", f"s_add_u32 s{S_TMP}, s{S_TMP}, s{S_QB}",
          f"s_lshr_b32 s23, s{S_TMP}, 1", "s_mulk_i32 s23, 384", f"s_mul_i32 s24, s{S_TMP}, {STAGE}", "v_lshl_add_u32 v27, v25, 3, s23",
          "s_addk_i32 s24, 2048", "s_mov_b32 exec_hi, 0xffff"]
    p += ["s_waitcnt lgkmcnt(0)"] + vstamp("kernarg")
    p += [VM("ksc", "global_load_dwordx2 v[32:33], v27, s[46:47]"), VM("ksc", "global_load_dwordx2 v[34:35], v27, s[48:49]"),
          "s_add_u32 s56, s42, s24", "s_addc_u32 s57, s43, 0"]
    for h in range(2):
        p += [VM(("k0" + "ab"[h], j >> 1), f"global_load_dwordx4 v[{64+16*h+4*j}:{67+16*h+4*j}], v{V_KLD}, s[56:57] offset:{1536*j+384*h-2048}{NTKV}") for j in range(4)]
    p += vstamp("iss k") + ["s_add_u32 s58, s44, s24", "s_addc_u32 s59, s45, 0"]
    vl = [VM(("v0" + "ab"[r >> 2], (r >> 1) & 1), f"global_load_dwordx4 v[{96+4*r}:{99+4*r}], v{V_VLD}, s[58:59] offset:{768*r-2048}{NTKV}") for r in range(8)]
    nv = OPT["nv"]
    p += vl[:nv]
    p += [f"v_readfirstlane_b32 s{S_WAVE}, v24", f"s_lshl_b32 s23, s{S_TMP}, 6", f"s_lshr_b32 s{S_HEAD}, s{S_TMP}, 6",
          f"s_lshl4_add_u32 s23, s{S_WAVE}, s23",
          "s_load_dwordx4 s[64:67], s[50:51], s23", "s_load_dwordx4 s[68:71], s[52:53], s23"]
    p += [f"s_lshl_b32 s22, s{S_HEAD}, 10", f"s_add_u32 s22, s22, {FLAG_OFF}", f"s_or_b32 s{S_LEAD}, s{S_QB}, s{S_WAVE}", "s_cbranch_scc1 L_notleader0",
          "s_load_dwordx8 s[72:79], s[18:19], s22 glc", "L_notleader0:"]
    p += ["s_mov_b32 exec_hi, -1"]
    pv = len(p)
    VQD = OPT['vqd']
    p += [f"s_mul_i32 s24, s{S_HEAD}, 786432"] + srd(S_Q, 40, 24, 786432) + srd(S_OUT, 54, 24, 786432)
    p += [f"s_lshl2_add_u32 s24, s{S_QB}, s{S_WAVE}", f"s_mul_i32 s24, s24, {STAGE}",
          f"s_mul_i32 s{S_QL}, s{S_WAVE}, 6144", f"s_add_u32 s{S_QL}, s{S_QL}, {3*STAGE}"]
    QSL = (0, 1, 2, 1)
    p += [f"v_add_u32 v{VQD+b}, {64*b}, v25" for b in range(6)]
    p += [f"v_mul_u32_u24 v{VQD+8+b}, 2731, v{VQD+b}" for b in range(6)]
    p += [f"v_bfe_u32 v{VQD+8+b}, v{VQD+8+b}, 17, 3" for b in range(6)]
    p += [f"v_xor_b32 v{VQD+b}, v{VQD+b}, v{VQD+8+b}" for b in range(6)]
    p += [f"v_lshl_add_u32 v{VQD+b}, v{VQD+b}, 4, s24" for b in range(6)]
    def q_dma(lst):
        l = []
        for i in lst:
            a, b = divmod(i, 6)
            l.append(([f"s_waitcnt vmcnt({OPT['win'] + (OPT['wins'] if i < n3 + OPT['qd'] else 0)})"] if (OPT["win"] and n2 <= i < n3 + OPT["qd"] + OPT["qe"]) else []) + [f"s_add_u32 m0, s{S_QL}, {QSL[a]*STAGE + b*1024}", f"s_movk_i32 s24, {a*6144}",
                      VM(("q", a), f"buffer_load_dwordx4 v{VQD+b}, s[{S_Q}:{S_Q+3}], s24 offen{NTQ} lds")])
        return l
    flat = lambda gs: [x for g in gs for x in g]
    n0 = OPT["q0"]; n1 = n0 + OPT["qa"]; n2 = n1 + OPT["qb"]; n3 = n2 + OPT["qc"]
    assert n3 <= 18
    QD = 128
    def kprep(q, s_, z_):
        return [f"v_lshlrev_b32 v{q}, 16, v{s_}", f"v_and_b32 v{q+1}, s{S_MASK}, v{s_}", f"v_lshlrev_b32 v{q+2}, 16, v{z_}", f"v_and_b32 v{q+3}, s{S_MASK}, v{z_}"]
    t0 = [f"s_mov_b32 s{S_MASK}, 0xffff0000", f"s_mov_b32 s{S_CS}, 0x{f32bits(CSCALE):08x}",
          "v_mul_u32_u24 v27, 24, v26", "v_sub_u32 v27, v25, v27",
          f"v_lshlrev_b32 v{V_KTAB}, 4, v27", f"v_add_u32 v{V_KTAB}, {TAB}, v{V_KTAB}",
          "v_mul_u32_u24 v36, 768, v26", f"v_add_u32 v36, v36, v{V_KTAB}",
          W("ksc")] + kprep(QD, 32, 34) + kprep(QD + 4, 33, 35)
    t0 += [f"v_mul_f32 v{QD+4*u+x}, s{S_CS}, v{QD+4*u+x}" for u in range(2) for x in range(2)]
    t0 += [f"v_mul_f32_e64 v{QD+4*u+2+x}, -v{QD+4*u+2+x}, v{QD+4*u+x}" for u in range(2) for x in range(2)]
    t0 += [["s_mov_b32 exec_hi, 0xffff"] + [DS("t0w", f"ds_write_b128 v36, v[{QD+4*i}:{QD+4*i+3}] offset:{384*i}") for i in range(2)] + ["s_mov_b32 exec_hi, -1"]]
    t0 += [DS("t0r", f"ds_read_b128 v[{QD+4*u}:{QD+4*u+3}], v{V_KTAB} offset:{384*u}") for u in range(4)]
    setup0 = [f"v_mov_b32 v{V_T}, 0", f"v_mov_b32 v{V_T+1}, {RING}", DS("cnt", f"ds_write_b32 v{V_T+1}, v{V_T}")]
    setup = ["v_lshrrev_b32 v48, 1, v26", "v_lshlrev_b32 v48, 30, v48",
          "v_lshlrev_b32 v31, 4, v25", "v_mul_u32_u24 v30, 3072, v24", f"v_add_u32 v{V_DMA}, v30, v31",
          "v_lshl_add_u32 v49, v24, 2, v26", "v_mul_u32_u24 v49, 384, v49", "v_lshlrev_b32 v50, 1, v24", "v_xor_b32 v50, v27, v50",
          "v_lshl_add_u32 v49, v50, 4, v49", f"v_or_b32 v{V_KST}, v49, v48", f"v_xor_b32 v{V_KA}, 16, v{V_KST}",
          "v_lshrrev_b32 v49, 5, v25", "v_sub_u32 v49, 1, v49", "v_and_b32 v49, v49, v24", "v_lshlrev_b32 v49, 4, v49",
          f"v_xor_b32 v49, v49, v{V_DMA}", "v_add_u32 v49, 12288, v49", f"v_or_b32 v{V_VST}, v49, v48",
          f"s_mul_i32 s{S_KW}, s{S_QB}, {STAGE}", f"s_add_u32 s{S_KW2}, s{S_KW}, 6144", f"s_mov_b32 s{S_VW}, s{S_KW}",
          f"s_mul_i32 s{S_RET}, s{S_HEAD}, {WSHEAD}"]
    kv_or = [f"v_or_b32 v{V_KLD}, v{V_KLD}, v48", f"v_or_b32 v{V_VLD}, v{V_VLD}, v48"]
    p += setup0 + t0 + setup
    p[pv:] = sprinkle(p[pv:], [["s_mov_b32 exec_hi, 0xffff", x, "s_mov_b32 exec_hi, -1"] for x in vl[nv:]])
    p += vstamp("iss v") + kv_or + flat(q_dma(range(0, n0))) + vstamp("iss q0") + ["s_waitcnt lgkmcnt(0)"] + ["s_barrier"]
    p += srd(S_WS, 18, S_RET, HEADBYTES)
    p += srd(S_FLG, 18, 22, 32)
    p += [f"s_mov_b32 s{S_DBG}, s16", f"s_mov_b32 s{S_DBG+1}, s17", f"s_movk_i32 s{S_DBG+2}, 256", f"s_mov_b32 s{S_DBG+3}, s63", f"s_lshl_b32 s{S_HOFF}, s{S_HEAD}, 3"]
    p += [f"s_cmp_lg_u32 s{S_LEAD}, 0", "s_cbranch_scc1 L_notleader", "s_mov_b32 s24, 1"]
    for i in range(8):
        p += [f"s_lshr_b32 s{72+i}, s{72+i}, 8", f"s_min_u32 s{72+i}, s{72+i}, 31", f"s_bitset1_b32 s24, s{72+i}"]
    p += ["s_ff0_i32_b32 s24, s24", "s_lshl_b32 s24, s24, 8", f"v_mov_b32 v{V_POLL}, s24",
          "s_mov_b64 exec, 1", f"buffer_store_dword v{V_POLL}, off, s[{S_DBG}:{S_DBG+3}], s{S_HOFF} sc1", "s_mov_b64 exec, -1",
          "L_notleader:"]
    kc = []
    for h, buf in ((0, 64), (1, 80)):
        for jp in range(2):
            kc += [W(("k0a" if h == 0 else "k0b", jp))] + k_unit(h, buf, 64, jp, 0, QD + 8 * h) + k_unit(h, buf, 64, jp, 1, QD + 8 * h + 4)
    p += sprinkle(kc, q_dma(range(n0, n1))) + vstamp("kcv")
    p += [k_st(j, 64, "st0")[-1] for j in range(4)]
    p += ["s_mov_b32 exec_hi, 0xffff"] + [DS("own", f"ds_write_b128 v{V_KA if j & 1 else V_KST}, v[{64+4*j}:{64+4*j+3}] offset:{(j&1)*768+(j>>1)*6144}") for j in range(4)] + ["s_mov_b32 exec_hi, -1"]
    p += vstamp("kst")
    vc = []
    for u in range(4):
        q = QD + 4 * u
        vc += [f"s_lshl_b32 s57, s{64+u}, 16", f"s_and_b32 s58, s{64+u}, s{S_MASK}", f"v_mov_b32 v{q}, s57", f"v_mov_b32 v{q+1}, s58",
               f"s_lshl_b32 s57, s{68+u}, 16", f"s_and_b32 s58, s{68+u}, s{S_MASK}", f"v_mul_f32_e64 v{q+2}, -s57, v{q}", f"v_mul_f32_e64 v{q+3}, -s58, v{q+1}"]
    vc += [W(("v0a", 0))] + v_unit(96, 0, QD) + [W(("v0a", 1))] + v_unit(96, 1, QD + 4) + v_pack(0, 96, 96, V_INPLACE)
    vc += [W(("v0b", 0))] + v_unit(112, 0, QD + 8) + [W(("v0b", 1))] + v_unit(112, 1, QD + 12) + v_pack(1, 112, 96, V_INPLACE)
    p += sprinkle(vc, q_dma(range(n1, n2))) + vstamp("vcv")
    p += [x for e in range(4) for x in v_st(e, 96, "st0")]
    p += ["s_mov_b32 exec_hi, 0xffff"] + [DS("own", f"ds_write_b128 v{V_VST}, v[{96+4*e}:{96+4*e+3}] offset:{STAGE - 12288 + e*768}") for e in range(4)] + ["s_mov_b32 exec_hi, -1"]
    p += vstamp("vst")
    s2 = [f"s_lshl_b32 s{S_RET}, s{S_QB}, 2", f"v_lshl_add_u32 v{V_FLAG}, v0, 2, s{S_RET}", "v_cmp_lt_u32 vcc, 0, v0", "v_mov_b32 v30, 0x40000000",
          f"s_mov_b32 s{S_BUDGET}, 100000", f"v_cndmask_b32 v{V_FLAG}, v{V_FLAG}, v30, vcc"]
    s2 += [f"s_mul_i32 s{S_RET}, s{S_HEAD}, {HEADBYTES}"] + [srd(S_QK, 42, S_RET, HEADBYTES), srd(S_QV, 44, S_RET, HEADBYTES)]
    s2 += [f"s_and_b32 s{S_PK0}, s{S_TMP}, 63", f"s_mul_i32 s{S_PK0}, s{S_PK0}, {STAGE}", f"s_mov_b32 s{S_PV0}, s{S_PK0}"]
    s2 += [f"s_mul_i32 s{S_DMK}, s{S_WAVE}, 3072", f"s_add_u32 s{S_DMK}, s{S_DMK}, 12288", f"s_add_u32 s{S_DMV}, s{S_DMK}, {STAGE}",
          f"s_add_u32 s{S_RET}, s{S_QB}, 1", f"s_and_b32 s{S_RET}, s{S_RET}, 7", f"s_mul_i32 s{S_GOFFK}, s{S_RET}, {STAGE}", f"s_add_u32 s{S_GOFF}, s{S_GOFFK}, 12288",
          f"s_mov_b32 s{S_RK}, 0", f"s_mov_b32 s{S_RV}, {STAGE}"]
    s2 += ["v_and_b32 v26, 15, v25", "v_lshrrev_b32 v49, 4, v25", "v_bfe_u32 v28, v25, 1, 3",
           "v_xor_b32 v29, v49, v28", "v_mul_u32_u24 v30, 384, v26", f"v_lshl_add_u32 v{V_RDK[0]}, v29, 4, v30",
           f"v_xor_b32 v{V_RDK[1]}, 64, v{V_RDK[0]}"]
    s2 += [f"v_mul_u32_u24 v50, 3072, v49", f"v_add_u32 v50, {STAGE}, v50", "v_and_b32 v51, 1, v49", "v_lshl_add_u32 v51, v26, 1, v51",
           f"v_lshl_add_u32 v{V_RDV[0]}, v51, 4, v50", f"v_xor_b32 v{V_RDV[1]}, 16, v{V_RDV[0]}",
           f"v_lshl_add_u32 v{V_RDV[2]}, v26, 4, v50", f"v_add_u32 v{V_RDV[2]}, 512, v{V_RDV[2]}"]
    s2 += ["v_lshrrev_b32 v29, 1, v49", "v_xor_b32 v29, v29, v28", "v_lshl_add_u32 v31, v29, 4, v30",
           "v_and_b32 v29, 1, v49", "v_lshl_add_u32 v31, v29, 3, v31"]
    s2 += ["v_lshlrev_b32 v15, 6, v0", f"v_add_u32 v0, s{S_QL}, v31"]
    s2 += [f"v_mov_b32 v{V_L[q]}, 0" for q in range(4)]
    qd = [[f"v_mov_b32 v{V_POLL}, 0"] + tag_load()] + q_dma(range(n2, n3))
    p += sprinkle(s2, qd) + vstamp("iss s2")
    pf2 = ["s_mov_b32 s62, L_slow-L_pc", "s_bfe_u32 s24, s2, 0x20003", "s_add_u32 s24, s24, 1", "s_lshl_b32 s24, s24, 14",
           VM("pf", "buffer_load_dword v15, v15, s[60:63], s24 offen")]
    TR = 80
    tl = [f"s_lshl_b32 s24, s{S_WAVE}, 4", f"s_add_u32 s24, s24, s{S_TMP}",
          f"s_and_b32 s58, s24, 63", f"s_add_u32 s24, s24, 8", "s_and_b32 s57, s24, 63", f"s_andn2_b32 s24, s{S_TMP}, 63",
          "s_or_b32 s58, s58, s24", "s_or_b32 s57, s57, s24",
          "v_mov_b32 v37, s58", "v_mov_b32 v38, s57", "v_cmp_lt_u32 vcc, 15, v25",
          "s_lshr_b32 s58, s58, 1", "s_lshr_b32 s57, s57, 1", "s_mulk_i32 s58, 384", "s_mulk_i32 s57, 384",
          "v_cndmask_b32 v37, v37, v38, vcc", "v_lshl_add_u32 v38, v25, 3, s58", "v_lshl_add_u32 v39, v25, 3, s57",
          "v_lshlrev_b32 v37, 6, v37", "v_lshl_add_u32 v37, v26, 2, v37", "s_mov_b32 exec_hi, 0xffff"]
    for x in range(2):
        tl += [VM("tab", f"global_load_dwordx2 v[{TR+4*x+2*i}:{TR+4*x+2*i+1}], v{38+x}, s[{46+2*i}:{47+2*i}]") for i in range(2)]
    tl += ["s_mov_b32 exec_hi, 0"] + [VM("tab", f"global_load_dword v{TR+8+i}, v37, s[{50+2*i}:{51+2*i}]") for i in range(2)] + ["s_mov_b32 exec_hi, -1"]
    tc = [W("tab")]
    for x in range(2):
        for i in range(2): tc += kprep(112 + 8 * x + 4 * i, TR + 4 * x + i, TR + 4 * x + 2 + i)
    tc += kprep(92, TR + 8, TR + 9)
    tc += [f"v_mul_f32 v{112+4*u+x}, s{S_CS}, v{112+4*u+x}" for u in range(4) for x in range(2)]
    tc += [f"v_mul_f32_e64 v{q+2+x}, -v{q+2+x}, v{q+x}" for q in (112, 116, 120, 124, 92) for x in range(2)]
    tc += [f"s_mul_i32 s57, s{S_WAVE}, {2*TS}", "v_add_u32 v36, s57, v36", f"s_add_u32 s57, s57, {TAB}", "v_lshrrev_b32 v37, 4, v25",
           f"v_mul_u32_u24 v37, {TS}, v37", "v_lshl_add_u32 v37, v26, 4, v37", "v_add_u32 v37, s57, v37",
           ]
    tc += [["s_mov_b32 exec_hi, 0xffff"] + [DS("tabw", f"ds_write_b128 v36, v[{112+8*x+4*i}:{115+8*x+4*i}] offset:{TS*x+384*i}") for x in range(2) for i in range(2)] +
           ["s_mov_b32 exec_hi, 0", DS("tabw", "ds_write_b128 v37, v[92:95] offset:1536"), "s_mov_b32 exec_hi, -1"],
           f"v_add_u32 v{V_KTAB}, {TS}, v{V_KTAB}",
           f"s_lshl_b32 s57, s{S_WAVE}, 6", f"s_add_u32 s57, s57, {TAB+TS+1536}", f"v_mov_b32 v{V_VTAB}, s57"]
    KF = 144
    tq = 48
    def q_read(qb):
        l = [f"v_xor_b32 v{V_T+kk}, {32*kk}, v0" for kk in range(1, 4)] + [W(("q", qb))] + vstamp(f"q{qb}")
        for s in range(6):
            for h in range(2):
                sp = s + 6 * h
                l.append(DS("qr", f"ds_read_b64 {Qf(qb,s,h)}, v{V_T+(sp&3) if sp&3 else 0} offset:{QSL[qb]*STAGE + (sp>>2)*128}"))
        return l
    def qk0(qb):
        l = ["s_waitcnt lgkmcnt(0)"]
        for f in sorted(range(12), key=lambda f: kfrag(f)[::-1]):
            s, tb = kfrag(f)
            d = vr(Sq(0, qb, tb), 4)
            l.append(f"{MF} {d}, v[{KF+4*f}:{KF+4*f+3}], {Qf(qb,s)}, {'0' if s == 0 else d}")
        return l
    def sm0(qb):
        a, b = Sq(0, qb, 0), Sq(0, qb, 1)
        l = [f"v_max3_f32 v{tq}, v{a}, v{a+1}, v{a+2}", f"v_max3_f32 v{tq}, v{tq}, v{a+3}, v{b}",
             f"v_max3_f32 v{tq}, v{tq}, v{b+1}, v{b+2}", f"v_max_f32 v{tq}, v{tq}, v{b+3}"] + xlane("v_max_f32", tq)
        l += [f"v_sub_f32 v{NEGM(qb)+i}, 0, v{tq}" for i in range(4)]
        rest = [f"v_sub_f32 v{r+i}, v{r+i}, v{tq}" for r in (a, b) for i in range(4)]
        rest += [f"v_exp_f32 v{r+i}, v{r+i}" for r in (a, b) for i in range(4)]
        rest += [f"v_add_f32 v{V_L[qb]}, v{V_L[qb]}, v{r+i}" for r in (a, b) for i in range(4)]
        rest += [f"v_cvt_pk_bf16_f32 v{a}, v{a}, v{a+1}", f"v_cvt_pk_bf16_f32 v{a+1}, v{a+2}, v{a+3}",
                 f"v_cvt_pk_bf16_f32 v{a+2}, v{b}, v{b+1}", f"v_cvt_pk_bf16_f32 v{a+3}, v{b+2}, v{b+3}"]
        return l, rest
    def step(qb, extra=()):
        l, rest = sm0(qb)
        return qk0(qb) + ["s_nop 7"] + sprinkle(l + rest, extra)
    post = vstamp("pre tag") + [W("tag", "st0")] + vstamp("tag") + tag_check() + first_post() + stamp("posted") + vstamp("posted")
    bar = q_read(0) + ["s_waitcnt lgkmcnt(0)", "s_barrier"] + stamp("barA") + vstamp("barA")
    kf = []
    for f in range(12):
        s, tb = kfrag(f)
        kf.append(DS("k0f", f"ds_read_b128 v[{KF+4*f}:{KF+4*f+3}], v{V_RDK[s&1]} offset:{tb*6144 + (s>>1)*128}"))
    n4 = n3 + OPT["qd"]
    assert n4 <= 18
    misc = [k_adv(), v_adv()]
    if OPT["pf2"]:
        misc += [f"s_mov_b32 s{S_DBG}, s60", f"s_mov_b32 s{S_DBG+1}, s61", f"s_mov_b32 s{S_DBG+2}, L_slow-L_pc",
              f"s_lshr_b32 s{S_TP}, s2, 3", f"s_mul_i32 s{S_HOFF}, s{S_TP}, 43", f"s_lshr_b32 s{S_HOFF}, s{S_HOFF}, 7",
              f"s_mul_i32 s{S_RET}, s{S_HOFF}, 3", f"s_sub_u32 s{S_TP}, s{S_TP}, s{S_RET}", f"s_lshl_b32 s{S_TP}, s{S_TP}, 10",
              f"s_mul_i32 s{S_HOFF}, s{S_HOFF}, 12288", f"s_add_u32 s{S_HOFF}, s{S_HOFF}, s{S_TP}"]
    n5 = min(18, n4 + OPT["qe"])
    flg = stamp("at poll") + vstamp("at poll") + [x.replace(f"s[{S_PT}:{S_PT+7}]", "s[72:79]") for x in smem_flags()]
    p += post + flat(q_dma(range(n3, n3 + 2))) + tl + bar + kf + step(0, q_dma(range(n3 + 2, n4))) + vstamp("qk0")
    dm = {(a, b): with_nop(dma_tile(a, b, True)) for a, b in (("k", 1), ("k", 2), ("k", 3), ("v", 1), ("v", 2), ("v", 3))}
    kraw = k_ld(0, BX, "ka") + k_ld(1, BY, "kb")
    p += flg + sprinkle(misc + tc, q_dma(range(n4, n5))) + vstamp("tc")
    p += poll_smem() + stamp("poll ok") + vstamp("poll ok")
    p += dm["k", 1] + q_read(1) + step(1, [dm["k", 2], dm["k", 3], dm["v", 1]] + [dm["v", 2], dm["v", 3]][:OPT["v23"]]) + vstamp("qk1")
    kstep = lambda d: [f"v_add_u32 v{r}, {d & 0xffffffff}, v{r}" for r in V_RDK]
    vstep = lambda d: [f"v_add_u32 v{r}, {d & 0xffffffff}, v{r}" for r in V_RDV]
    A, B = (0, 1), (2, 3)
    PS = Passes([dict(kind="q", t0=0, qbs=A, f0=12), dict(kind="q", t0=2, qbs=A, pre=kstep(2 * STAGE)),
                 dict(kind="p", t0=0, qbs=A, first=1), dict(kind="p", t0=2, qbs=A, pre=vstep(2 * STAGE)),
                 dict(kind="q", t0=0, qbs=B, cz=1, pre=kstep(-2 * STAGE)), dict(kind="q", t0=2, qbs=B, pre=kstep(2 * STAGE)),
                 dict(kind="p", t0=0, qbs=B, first=1, pre=vstep(-2 * STAGE)),
                 dict(kind="q", look=1, pre=kstep(2 * STAGE) + [f"s_mov_b32 s{S_RK}, {4*STAGE}"])],
                [V_FR + 4 * i for i in range(NFS)], "s")
    def split(l):
        g = []
        for x in l:
            if isinstance(x, VM) or not g or isinstance(g[-1][-1], VM) or len(g[-1]) >= 3: g.append([x])
            else: g[-1].append(x)
        return g
    lim = OPT["sl"]
    p += [W(("dk", 0))] + vstamp("dk0") + ["s_waitcnt lgkmcnt(0)", "s_barrier"] + PS.prime(4)
    if OPT["stamp"] == 7: p += vstamp("phase A")
    v23 = sum([split(dma_tile("v", 2, True)), split(dma_tile("v", 3, True))][OPT["v23"]:], [])
    va = v_ld(0, BZ, "va")
    kq = OPT["kq"]
    kr = [[x] for x in kraw]
    vmq = q_dma(range(n5, 24 - kq)) + v23 + kr + q_dma(range(24 - kq, 24))
    vmq += [[CHK("BZ"), va[0]]] + [[x] for x in va[1:]] + [pf2[:4], pf2[4:]]
    p += [SIG("BZ")]
    c, r, _ = PS.run(0, [], lim, bar=[("dk", 1)], vm=vmq[:5], barF=18); p += c + vstamp("A1")
    c, r, _ = PS.run(1, softmax_part(1, 0) + ["HOLD"] + softmax_part(2, 0), lim, bar=[("dv", 0)], vm=vmq[5:16], barF=18); p += c
    assert len(r) < 38
    p += vstamp("A2")
    c, r, _ = PS.run(2, r + softmax_part(3, 0), lim, bar=[("dv", 1)], vm=vmq[16:27], barF=18); p += c + r + vstamp("A3")
    kc_ = chain_k(); vc_ = chain_v(); c0 = OPT["c0"]; c1 = OPT["c1"]; c2 = OPT["c2"]; c3 = OPT["c3"]
    c, r, e = PS.run(3, [tq_rd("ka0", TQ[0])], lim, vm=vmq[27:], sec=cut(kc_, 0, c0)); p += q_read(2) + ["s_waitcnt lgkmcnt(0)"] + c + e
    p += vstamp("A done") + q_read(3) + ["s_waitcnt lgkmcnt(0)", "s_barrier"]
    if OPT["stamp"] == 7:
        p += vstamp("loop start") + ["v_writelane_b32 v14, s98, 31", "s_add_u32 s40, s18, 0xfa00000", "s_addc_u32 s41, s19, 0", "s_mov_b32 s42, 1048576", "s_mov_b32 s43, 0x20000",
              "s_lshl_b32 s24, s2, 2", f"s_add_u32 s24, s24, s{S_WAVE}", "s_lshl_b32 s24, s24, 7", f"v_bfe_u32 v15, v{V_DMA}, 4, 6", "v_lshlrev_b32 v15, 2, v15", "s_mov_b64 exec, 0xffffffff",
              VM("stamp", "buffer_store_dword v14, v15, s[40:43], s24 offen"), "s_mov_b64 exec, -1"]
        open(sys.argv[1] + ".stamps", "w").write("\n".join(STAMPS))
    elif OPT["stamp"]:
        p += stamp("loop start") + ["s_memtime s[8:9]"]
    mx = []
    T2 = {2: V_T, 3: V_T + 2}
    def both(f): return [f(q) for q in B]
    a_ = lambda q: Sq(0, q, 0); b_ = lambda q: Sq(0, q, 1)
    mx += both(lambda q: f"v_max3_f32 v{T2[q]}, v{a_(q)}, v{a_(q)+1}, v{a_(q)+2}") + both(lambda q: f"v_max3_f32 v{T2[q]}, v{T2[q]}, v{a_(q)+3}, v{b_(q)}")
    mx += both(lambda q: f"v_max3_f32 v{T2[q]}, v{T2[q]}, v{b_(q)+1}, v{b_(q)+2}") + both(lambda q: f"v_max_f32 v{T2[q]}, v{T2[q]}, v{b_(q)+3}")
    for sw in ("v_permlane16_swap_b32", "v_permlane32_swap_b32"):
        mx += both(lambda q: f"v_mov_b32 v{T2[q]+1}, v{T2[q]}") + ["s_nop 0"] + both(lambda q: f"{sw} v{T2[q]}, v{T2[q]+1}") + ["s_nop 0"]
        mx += both(lambda q: f"v_max_f32 v{T2[q]}, v{T2[q]}, v{T2[q]+1}")
    mx += [f"v_sub_f32 v{NEGM(q)+i}, 0, v{T2[q]}" for q in B for i in range(4)]
    sub = lambda t: [f"v_add_f32 v{Sq(t,q,tb)+i}, v{Sq(t,q,tb)+i}, v{NEGM(q)}" for q in B for tb in range(2) for i in range(4)]
    p += kstamp("b1", 3)
    lim2 = OPT["sb2"]
    c, r, e = PS.run(4, ["HOLD"] + mx + sub(0) + softmax_part(0, 1), OPT["sb1"], sec=cut(kc_, c0, c1), vm=split(dma_tile("k", 4, True)) + split(dma_tile("k", 5, True)))
    early = c1 >= NK
    nm = max(0, len(r) - 56); p += c + r[:nm] + (e if early else []) + ["s_nop 1"] + kstamp("b2", 3); r = r[nm:]
    vb = v_ld(1, BY, "vb")
    if early:
        st = [k_st(j, BX)[0] for j in range(4)]
        vm = [[CHK("Kdone"), st[0]], [], [st[1]], [], [st[2]], [], [st[3], SIG("BX")], [], [CHK("BY0"), vb[0]], [vb[1]], [CHK("BY1"), vb[2]], [vb[3]]]
        c, r, e = PS.run(5, r + sub(1) + softmax_part(1, 1), lim2, vm=vm)
        p += c + r + kstamp("b3", 3)
        c, r, e = PS.run(6, softmax_part(2, 1), lim2, bar=[("dk", 2), "kst"], sec=cut(vc_, 0, c3), vm=split(dma_tile("v", 4, True)) + [[], [], [], flag_post()], barF=18)
    else:
        c, r, e = PS.run(5, r + sub(1) + softmax_part(1, 1), lim2, sec=e + cut(kc_, c1, c2))
        p += c + r + kstamp("b3", 3)
        c, r, e = PS.run(6, softmax_part(2, 1), lim2, bar=[("dk", 2)], sec=e + cut(kc_, c2, NK), vm=split(dma_tile("v", 4, True)) + [[], [], [], [CHK("BY0"), vb[0]], [vb[1]]], barF=18)
    p += c + r + e
    if OPT["stamp"]: p += [f"s_mov_b32 s{S_LEAD}, 0"]
    p += [f"s_mov_b32 s{S_CNT}, 5"]
    return p

def gen_main():
    p = gen_prologue()
    K_ = lambda *j: tuple(("k", x) for x in j)
    V_ = lambda *j: tuple(("v", x) for x in j)
    G = lambda it, t, d, **kw: (kstamp(f"p{it}", 3) if it < 14 else []) + gen_iter(it, t, dma=d, name=f"p{it}", peel=True, **kw)
    ST = lambda w, g0=57: [(w, 0, g0), (w, 1, g0 + 8), (w, 2, g0 + 16), (w, 3, 85)]
    A4 = (0, 1, 2, 3)
    kc = SCHED[OPT["sch"]][0]
    SE = lambda w: [(w, 0, 1), (w, 1, 9), (w, 2, 17), (w, 3, 25)]
    SL = lambda w: [(w, 0, 65), (w, 1, 73), (w, 2, 85), (w, 3, 93)]
    assert OPT["c1"] >= NK
    vcut = SCHED[OPT["sch"]][1]
    p += G(3, [("cv", "v", OPT["c3"], 30, 0, 95)], [V_(5) + K_(6, 7) + (0, 76)])
    PS = Passes([dict(kind="p", t0=2, qbs=(2, 3)), dict(kind="q", look=1)], [V_FR + 4 * i for i in range(NFS)], "h", issued=D, t0kind="p")
    l = dma_tile("v", 6, True) + dma_tile("v", 7, True)
    vm = [l[0:1], l[1:2], l[2:3], l[3:4], l[4:8], l[8:9], l[9:10], l[10:11], l[11:12]]
    c, r, e = PS.run(0, rd_step("q") + softmax_part(4, 1) + softmax_part(5, 0), OPT["sb2"], bar=[("dk", 3)], sec=cut(chain_v(), 30, 44), vm=vm + [l[12:]], barF=18)
    p += kstamp("p4", 3) + c + r + e
    pc = OPT["pq"]
    p += G(5, [("pollld", 0, 6), ("ld", "ka", A4, 8, 40), ("pollchk", pc), ("cv", "v", 44, NV, 0, 95)], [K_(8, 9) + (pc + 6, 92)])
    p += G(6, [("post", "vst"), ("ld", "kb", A4, 32, 56), ("cv", "k", 0, 24, 30, 95)] + SE("vst"), [K_(10, 11) + (58, 92)])
    p += G(7, [("ld", "va", A4, 0, 30), ("cv", "k", 24, 56, 0, 95), ("pollld", 66, 72)], [K_(12, 13) + (32, 62)])
    p += G(8, [("cv", "k", 56, NK, 0, 95), ("pollchk", pc - 8), ("ld", "vb", (0, 1), 24, 40)], [V_(8, 9) + (pc - 2, 84)])
    if OPT["su"] == 1:
        p += G(9, [("post", "kst"), ("ld", "vb", (2, 3), 32, 40), ("cv", "v", 0, 24, 30, 95)] + SE("kst"), [V_(10, 11) + K_(14, 15) + (42, 94)])
        p += G(10, [("ld", "ka", A4, 0, 30), ("cv", "v", 24, 54, 0, 95), ("pollld", 66, 72)], [V_(12, 13) + (32, 62)])
        p += G(11, [("cv", "v", 54, NV, 0, 95), ("pollchk", pc - 8), ("ld", "kb", (0, 1), 28, 40)], [K_(16, 17) + (pc - 2, 84)])
    else:
        p += G(9, [("post", "kst"), ("ld", "vb", (2, 3), 32, 40), ("cv", "v", 0, 24, 30, 95)] + SE("kst"), [V_(10, 11) + (44, 92)])
        p += G(10, [("ld", "ka", A4, 76, 94), ("cv", "v", 24, 54, 0, 95), ("pollld", 68, 74)], [K_(14) + V_(12, 13) + (0, 64)])
        p += G(11, [("cv", "v", 54, NV, 0, 95), ("pollchk", pc - 8), ("ld", "kb", (0, 1), 30, 40)], [K_(15) + (0, 24), K_(16, 17) + (pc - 2, 92)])
    p += G(12, [("post", "vst"), ("ld", "kb", (2, 3), 32, 40), ("cv", "k", 0, 20, 30, 95)] + SE("vst"), [V_(14, 15) + (42, 76)])
    p += G(13, [("ld", "va", A4, 0, 30), ("cv", "k", 20, 48, 0, 95), ("pollld", 66, 72)], [K_(18, 19) + (32, 62)])
    p += G(14, [("cv", "k", 48, kc[5], 0, 94), ("pollchk", pc - 8), ("ld", "vb", (0, 1), 84, 93)], [V_(16, 17) + (pc - 2, 78)], endops=["s_nop 0", "s_branch L_join"])
    JOIN = 7
    p += [".p2align 6", "L_loop:"]
    pro_ = p
    bodyA = []
    for k in range(8):
        if k == JOIN: bodyA.append("L_join:"); jpos = len(bodyA)
        eo = [f"s_sub_u32 s{S_CNT}, s{S_CNT}, 1", f"s_cmp_lg_u32 s{S_CNT}, 0", "s_cbranch_scc1 L_loop"] if k == 7 else ()
        bodyA += kstamp(f"k{k}") + gen_iter(16 + k, steady(k), endops=eo, name=f"k{k}")
    mid = []
    for k in range(4): mid += kstamp(f"m{k}") + gen_iter(48 + k, steady(k, last=True), name=f"mid{k}")
    mid += [f"s_mov_b32 s{S_CNT}, 2", ".p2align 6", "L_loop2:"]
    bodyC = []
    for k in range(4):
        eo = [f"s_sub_u32 s{S_CNT}, s{S_CNT}, 1", f"s_cmp_lg_u32 s{S_CNT}, 0", "s_cbranch_scc1 L_loop2"] if k == 3 else ()
        t = {1: [("pollld", 2, 10)] + ([("pf", 60, 76)] if OPT["pf2"] else []), 2: [("pollchk0", OPT["pc"]), ("dmaw", OPT["pc"] + 7, 76)]}.get(k, [])
        bodyC += gen_iter(52 + k, t, name=f"C{k}", endops=eo)
    LE = (stamp("loop end") + ["s_memtime s[10:11]"]) if OPT["stamp"] not in (0, 7) else []
    if OPT["tail"] == 3:
        tailc = LE + kstamp("a0", 9) + gen_tail3() + ["L_fin:"]
    else:
        t60 = gen_iter(60, name="T60", extra=epi_addr())
        t61 = gen_iter(61, dma=[], name="T61", extra_late=[f"v_add_u32 v{RD2[i]}, {2*STAGE}, v{V_RDV[i]}" for i in range(3)])
        for x in t61:
            if isinstance(x, W): x.n = 0; x.tags = ()
        tailc = LE + kstamp("t60", 9) + t60 + kstamp("t61", 9)
        tailc += t61 + gen_tail() + ["L_fin:"]
    resolve(pro_ + bodyA[jpos:] + bodyA + bodyA + mid + bodyC + bodyC + tailc)
    P_ = Prog()
    P_.extend(fin(pro_))
    a0 = len(P_.ins); P_.extend(fin(bodyA)); a1 = len(P_.ins)
    P_.extend(fin(mid))
    c0_ = len(P_.ins); P_.extend(fin(bodyC)); c1 = len(P_.ins)
    P_.extend(fin(tailc))
    p = P_
    if OPT["stamp"] == 8:
        p("s_waitcnt vmcnt(0)")
        p.extend(stamp("end"))
        p("s_load_dwordx2 s[8:9], s[100:101], 64")
        p("s_waitcnt lgkmcnt(0)")
        p("s_mov_b32 s10, 256"); p("s_mov_b32 s11, 0x20000")
        p("s_mov_b64 exec, 1")
        nm = {n: SR(i) for i, n in enumerate(STAMPS)}
        vals = [("not", 98), ("", 98), ("", nm["loop start"]), ("", nm["loop end"]), ("", nm["end"]), ("not", nm["end"]), ("not", nm["loop start"]), ("", nm["posted"])]
        for i, (op, r) in enumerate(vals):
            if op: p(f"s_not_b32 s24, s{r}"); p(f"v_mov_b32 v{64+i}, s24")
            else: p(f"v_mov_b32 v{64+i}, s{r}")
            p(f"buffer_atomic_umax v{64+i}, off, s[8:11], 0 offset:{8*i+4}")
    elif OPT["stamp"] and OPT["stamp"] != 7:
        p("s_waitcnt vmcnt(0)")
        p.extend(stamp("end") + kstamp("drain", 9))
        p("s_memtime s[22:23]")
        p("s_waitcnt lgkmcnt(0)")
        p("s_sub_u32 s22, s22, s100")
        regs = [98] + [SR(i) for i in range(len(STAMPS))]
        p("s_sub_u32 s10, s10, s8")
        regs += [10] * (14 - len(regs)) + [22]
        regs = regs[:15] + [S_LEAD]
        for i, s in enumerate(regs): p(f"v_mov_b32 v{64+i}, s{s}")
        p("s_add_u32 s8, s18, 0xfa00000"); p("s_addc_u32 s9, s19, 0"); p("s_mov_b32 s10, 1048576"); p("s_mov_b32 s11, 0x20000")
        p("s_lshl_b32 s24, s2, 2"); p(f"s_add_u32 s24, s24, s{S_WAVE}"); p("s_lshl_b32 s24, s24, 6")
        p("v_mov_b32 v32, s24")
        p(f"v_cmp_eq_u32 vcc, 0, v{GA[0]}")
        p("s_and_saveexec_b64 s[20:21], vcc")
        for i in range(4):
            p(f"buffer_store_dwordx4 v[{64+4*i}:{67+4*i}], v32, s[8:11], 0 offen offset:{16*i}")
        open(sys.argv[1] + ".stamps", "w").write("\n".join(STAMPS))
    p("L_done:")
    p("s_endpgm")
    main_end0 = len(p.ins)
    for ps in POLLSITES + ["P"]: p.extend(poll_slow(ps))
    p.extend(tag_slow())
    main_end = len(p.ins)
    p.extend(gen_slow())
    slow_end = len(p.ins)
    ji = [i for i, x in enumerate(p.ins) if x.text == "L_join:"][0]
    lin = p.ins[:a0] + p.ins[ji:a1] + p.ins[a0:c1] + p.ins[c0_:main_end0]
    sl = [i for i, x in enumerate(p.ins) if x.text == "L_slowloop:"][0]
    ei = [i for i, x in enumerate(p.ins) if x.text == "L_fin:"][0]
    bi = [i for i, x in enumerate(p.ins) if x.text == "s_cbranch_scc1 L_slowloop"][0]
    probs = check_hazards(lin, "main") + check_hazards(p.ins[main_end:bi+1] + p.ins[sl:slow_end] + p.ins[ei:ei+60], "slow") + check_hazards(p.ins[main_end0:main_end], "aux")
    for x in probs: print(x, file=sys.stderr)
    return p

def kd(name, vgpr, sgpr, accum):
    return f""".amdhsa_kernel {name}
  .amdhsa_next_free_vgpr {vgpr}
  .amdhsa_next_free_sgpr {sgpr}
  .amdhsa_accum_offset {accum}
  .amdhsa_group_segment_fixed_size 0
  .amdhsa_kernarg_size 80
  .amdhsa_user_sgpr_count 2
  .amdhsa_user_sgpr_kernarg_segment_ptr 1
  .amdhsa_system_sgpr_workgroup_id_x 1
.end_amdhsa_kernel
"""
out = HEADER
out += f"; @launch grid=(256,1,1) block=(256,1,1) lds={LDS_BYTES}\n"
out += '.amdgcn_target "amdgcn-amd-amdhsa--gfx950"\n.text\n'
out += f".globl {NAME}_kernel\n.p2align 8\n.type {NAME}_kernel,@function\n" + gen_main().text()
out += '.section .rodata,"a"\n.p2align 6\n' + kd(NAME + "_kernel", 512, 102, 256)
open(sys.argv[1], "w").write(out)
```

```python
import sys, math
from asmlib import *

NAME = "standalone__kv_cache_quant_int4_int2_kv_with_per_channel_or_per_token_scales__prompt"
OPT = dict(stamp=0, prod=1, vmgap=4, sb=3, sa=3, pl=10, ahead=4, thr=64, tden=32, ab=0, pf2=1,
           q0=0, qa=3, qb=3, qc=4, qd=4, qe=2, sl=28, sb1=28, sb2=24, c0=0, c1=81, c2=81, c3=16, pq=53, touch=1, a4=1, nA=24, rs=0, nt1=14, nt2=2, koff=0, voff=0, v23=0, kq=0, vqd=208, kst0=5, rot=1, win=8, nv=4, sch=5, sd=16, pc=29, plate=0, su=2, pa=58, pb=29, fin=1, wins=3, tail=3, td=16, tq=1, tw=1)
for a in sys.argv[2:]:
    k, v = a.split("="); assert k in OPT, k; OPT[k] = int(v)
NS = 6; D = 4
STAGE = 24576
HEADBYTES = 64 * STAGE
RING = NS * STAGE
TS = 1792
TAB = RING + 128
LDS_BYTES = TAB + 8 * TS
CSCALE = (192.0 ** -0.5) * math.log2(math.e)
HEADER = open("cdna_kernels/" + NAME + ".s.ref").read().split("; Override launch geometry")[0]
MF = "v_mfma_f32_16x16x32_bf16"
NG = 96

V_FV = 55; V_RDV = [1, 21, 22]; V_RDK = [2, 3]; V_DMA = 8; V_L = [4, 5, 6, 7]; SEL = 14
V_KLD = 9; V_KTAB = 10; V_KST = 11; V_VLD = 12; V_FLAG = 13
V_T = 16; NTP = 2
V_VST = 20; V_VTAB = 23
V_FR = 24; NFS = 6
TQ = [48, 56, 60]; V_VO = 52; BX = 224; BY = 240; BZ = 144
V_POLL = V_VO; V_KA = V_VO + 2
UNIT = [64, 80, 160, 176]; HI = [96, 112]
def Sq(t, qb, tb):
    if tb and (t == 3 or (t == 2 and qb >= 2)): return HI[t % 2] + 4 * (qb ^ 2)
    return (UNIT[t % 4] if tb == 0 else HI[t % 2]) + 4 * qb
def P(t, qb): return UNIT[t % 4] + 4 * qb
def NEGM(qb): return 128 + 4 * qb
def O(qb, db): return (qb * 12 + db) * 4
def Qf(qb, s, half=None):
    i = qb * 6 + s
    base, f = (192 + 4 * i, ar) if i < 16 else (192 + 4 * (i - 16), vr)
    return f(base, 4) if half is None else f(base + 2 * half, 2)
def FR(f): return vr(V_FR + 4 * (f % NFS), 4)

S_RDELTA = 3; S_WS = 4; S_Q = 8; S_OUT = 12; S_FLG = 20
S_WAVE = 25; S_DMK = 26; S_GOFF = 27; S_RK = 28; S_TMP = 29; S_RV = 30; S_CNT = 31; S_GOFFK = 32
S_PK0 = 33; S_PK1 = 34; S_PV0 = 35; S_PV1 = 36; S_KW = 37; S_CS = 38; S_RET = 39; S_KW2 = 80; S_VW = 81; S_QL = 82; S_LEAD = 83
S_PT = 48; S_DMV = 56; S_TK = 57; S_TV = 58; S_TP = 59
S_QK = 64; S_QV = 68; S_DBG = 88
S_NEED = 92; S_HOFF = 93; S_HEAD = 94; S_QB = 95; S_BUDGET = 96; S_MASK = 97
FLAG_OFF = 64 << 20
WSHEAD = HEADBYTES + 8 * STAGE
SC1 = " sc1"; NTKV = " nt"; NTQ = " nt"; STF = " sc1"; OF = " sc0 sc1"

STAMPS = []
def SR(i): return ([40, 42, 44, 46, 0, 72, 74, 76, 78, 84, 86, 16, 98, 100] if OPT['stamp'] in (3, 4, 6, 9) else [16, 40, 42, 44, 84, 86, 0])[i]
def kstamp(name, mode=6):
    if OPT["stamp"] != mode: return []
    i = len(STAMPS); STAMPS.append(name)
    return [f"s_memtime s[{SR(i)}:{SR(i)+1}]"]
def vstamp(name):
    if OPT["stamp"] != 7: return []
    i = len(STAMPS); STAMPS.append(name)
    return ["s_memrealtime s[100:101]", "s_waitcnt lgkmcnt(0)", f"v_writelane_b32 v14, s100, {i}"]
def stamp(name):
    if OPT["stamp"] not in (1, 8): return []
    i = len(STAMPS); STAMPS.append(name)
    return [f"s_memrealtime s[{SR(i)}:{SR(i)+1}]"]

class W:
    def __init__(self, *tags): self.tags = tags; self.n = None
class VM:
    def __init__(self, tag, text): self.tag = tag; self.text = text
class LG:
    def __init__(self, tag, soft=False): self.tag = tag; self.n = None; self.need = False; self.soft = soft
class DS:
    def __init__(self, tag, text): self.tag = tag; self.text = text
class SIG:
    def __init__(self, name): self.name = name
class CHK:
    def __init__(self, name): self.name = name

def softmax_part(t, half, qbs=None, more=()):
    flat = []; prev = None; late = []
    qbs = [(t, q) for q in (qbs or (2 * half, 2 * half + 1))] + list(more)
    for gp in range(4 * len(qbs)):
        t, qb = qbs[gp // 4]; pi = gp % 4
        t0 = V_T + 2 * (gp % NTP); t1 = t0 + 1
        src = Sq(t, qb, pi >> 1) + 2 * (pi & 1)
        E = [f"v_exp_f32 v{t0}, v{src}", f"v_exp_f32 v{t1}, v{src+1}"]
        A = [f"v_add_f32 v{V_L[qb]}, v{V_L[qb]}, v{t0}", f"v_add_f32 v{V_L[qb]}, v{V_L[qb]}, v{t1}"]
        C = [f"v_cvt_pk_bf16_f32 v{P(t,qb)+pi}, v{t0}, v{t1}"]
        if OPT["rs"]:
            A = []
            if late: C = C + [late.pop()]
            if pi & 1: late.append(f"v_mfma_f32_4x4x4_16b_bf16 v[{V_L[0]}:{V_L[3]}], v[{SEL}:{SEL+1}], v[{P(t,qb)+pi-1}:{P(t,qb)+pi}], v[{V_L[0]}:{V_L[3]}] cbsz:4 abid:{qb}")
        if OPT["ab"] == 1: A = []
        if OPT["ab"] == 2: A = [f"v_pk_add_f32 v[6:7], v[6:7], v[{t0}:{t1}]"]
        if OPT["ab"] == 3: A = []; C = C + [f"v_dot2_f32_bf16 v{V_L[qb]}, v{P(t,qb)+pi}, v14, v{V_L[qb]}"]
        if OPT["ab"] == 4: A = []; C = C + [f"v_dot2c_f32_bf16 v{V_L[qb]}, v{P(t,qb)+pi}, v14"]
        flat += E if prev is None else [E[0]] + prev[0] + [E[1]] + prev[1]
        prev = (A, C)
    return flat + prev[0] + prev[1] + late

def kfrag(g):
    return 2 * (g >> 2) + (g & 1), (g >> 1) & 1
def vfrag(db):
    return (db >> 2, (db & 3) * 768)
def frag_read(kind, f, regs=None, tag=None):
    if kind == "q":
        s, tb = kfrag(f % 12)
        return DS(tag or ("f", kind, f), f"ds_read_b128 {FR(f)}, v{V_RDK[s&1]} offset:{(f//12)*12288 + tb*6144 + (s>>1)*128}")
    a, off = vfrag(f >> 1)
    return DS(tag or ("f", kind, f), f"ds_read_b128 {FR(f)}, v{(regs or V_RDV)[a]} offset:{(f&1)*12288 + off}")

def dma_tile(part, pos, peel=False):
    dm, go, tmp = (S_DMK, S_GOFFK, S_TK) if part == "k" else (S_DMV, S_GOFF, S_TV)
    l = [f"s_mov_b32 m0, s{dm}"]
    for j in range(3):
        l.append(VM(("d" + part, (pos >> 1) % 4), f"buffer_load_dwordx4 v{V_DMA}, s[{S_WS}:{S_WS+3}], s{go} offen offset:{j*1024}{SC1} lds"))
    if peel and pos < 7:
        l += [f"s_add_u32 s{go}, s{go}, {STAGE}", f"s_sub_u32 s{tmp}, s{go}, {8*STAGE}", f"s_min_u32 s{go}, s{go}, s{tmp}"]
    elif peel and pos == 7:
        l += [f"s_mov_b32 s{go}, {8*STAGE + (0 if part == 'k' else 12288)}"]
    else:
        l += [f"s_add_u32 s{go}, s{go}, {STAGE}"]
    if pos % 2 == 0: l += [f"s_add_u32 s{dm}, s{dm}, 12288"]
    else: l += [f"s_add_u32 s{dm}, s{dm}, {2*STAGE - 12288}", f"s_sub_u32 s{tmp}, s{dm}, {RING}", f"s_min_u32 s{dm}, s{dm}, s{tmp}"]
    return l
def with_nop(l):
    out = []
    real = [i for i, x in enumerate(l) if not isinstance(x, (SIG, CHK))]
    nxt = {a: b for a, b in zip(real, real[1:])}
    for i, x in enumerate(l):
        out.append(x)
        if isinstance(x, str) and " m0," in x and i in nxt and isinstance(l[nxt[i]], VM): out.append("s_nop 0")
    return out
def rd_step(kind):
    cur, regs = (S_RK, V_RDK) if kind == "q" else (S_RV, V_RDV)
    return [f"s_add_u32 s{S_TMP}, s{cur}, {2*STAGE}", f"s_sub_u32 s{S_RDELTA}, s{S_TMP}, {RING}",
            f"s_min_u32 s{S_TMP}, s{S_TMP}, s{S_RDELTA}", f"s_sub_u32 s{S_RDELTA}, s{S_TMP}, s{cur}", f"s_mov_b32 s{cur}, s{S_TMP}"] + \
           [f"v_add_u32 v{r}, s{S_RDELTA}, v{r}" for r in regs]

def k_ld(h, buf, tag, js=range(4)):
    return [VM((tag, j >> 1), f"buffer_load_dwordx4 v[{buf+4*j}:{buf+4*j+3}], v{V_KLD}, s[{S_QK}:{S_QK+3}], s{S_PK0 if j < 2 else S_PK1} offen offset:{(j&1)*1536+384*h}{NTKV}")
            for j in js]
def v_ld(h, buf, tag, js=range(4)):
    return [VM((tag, r >> 1), f"buffer_load_dwordx4 v[{buf+4*r}:{buf+4*r+3}], v{V_VLD}, s[{S_QV}:{S_QV+3}], s{S_PV0 if h == 0 else S_PV1} offen offset:{r*768}{NTKV}")
            for r in js]
def k_unit(h, buf, out, jp, i, q):
    ab = [(buf + 4 * j + 2 * i, buf + 4 * j + 2 * i + 1) for j in (2 * jp, 2 * jp + 1)]
    return [f"v_cvt_f32_i32 v{r}, v{r}" for a, b in ab for r in (a, b)] + \
           [f"v_fma_f32 v{r}, v{r}, v{q+x}, v{q+2+x}" for a, b in ab for x, r in enumerate((a, b))] + \
           [f"v_cvt_pk_bf16_f32 v{out+4*j+2*h+i}, v{a}, v{b}" for j, (a, b) in zip((2 * jp, 2 * jp + 1), ab)]
def v_unit(buf, i, q):
    l = []
    for e0 in (0, 2):
        ab = [(buf + 8 * i + e, buf + 8 * i + 4 + e) for e in (e0, e0 + 1)]
        l += [f"v_cvt_f32_i32 v{r}, v{r}" for a, b in ab for r in (a, b)]
        l += [f"v_fma_f32 v{r}, v{r}, v{q+x}, v{q+2+x}" for a, b in ab for x, r in enumerate((a, b))]
    return l
def v_pack(h, buf, out, lst):
    return [f"v_cvt_pk_bf16_f32 v{out+4*e+2*h+i}, v{buf+8*i+e}, v{buf+8*i+4+e}" for e, i in lst]
V_INPLACE = [(0, 0), (1, 0), (0, 1), (1, 1), (2, 0), (2, 1), (3, 0), (3, 1)]
def tq_rd(name, q):
    if name[0] == "k": va, off = V_KTAB, "ab".index(name[1]) * 768 + int(name[2]) * 384
    else: va, off = V_VTAB, ("ab".index(name[1]) * 2 + int(name[2])) * 16
    return DS(("tq", name), f"ds_read_b128 v[{q}:{q+3}], v{va} offset:{off}")
def ins(l, i, x): return l[:i] + x + l[i:]
def chain_k():
    T0, T1, T2 = TQ
    c = [tq_rd("ka1", T1), W(("ka", 0)), LG(("tq", "ka0"), True)] + ins(k_unit(0, BX, BX, 0, 0, T0), 3, [tq_rd("kb0", T2)])
    c += [LG(("tq", "ka1"), True)] + k_unit(0, BX, BX, 0, 1, T1) + [W(("ka", 1))] + k_unit(0, BX, BX, 1, 0, T0) + k_unit(0, BX, BX, 1, 1, T1)
    c += [tq_rd("kb1", T0), W(("kb", 0)), LG(("tq", "kb0"), True)] + ins(k_unit(1, BY, BX, 0, 0, T2), 3, [tq_rd("va0", T1), f"v_add_u32 v{V_KTAB}, {TS}, v{V_KTAB}"])
    c += [LG(("tq", "kb1"), True)] + k_unit(1, BY, BX, 0, 1, T0) + [SIG("BY0"), W(("kb", 1))] + k_unit(1, BY, BX, 1, 0, T2) + k_unit(1, BY, BX, 1, 1, T0)
    return c + [SIG("BY1"), SIG("Kdone")]
def chain_v(last=False):
    T0, T1, T2 = TQ
    c = [tq_rd("va1", T2), W(("va", 0)), LG(("tq", "va0"), True)] + ins(v_unit(BZ, 0, T1), 3, [tq_rd("vb0", T0)])
    c += [tq_rd("vb1", T1), W(("va", 1)), LG(("tq", "va1"), True)] + ins(v_unit(BZ, 1, T2), 3, [f"v_add_u32 v{V_VTAB}, {TS}, v{V_VTAB}"]) + v_pack(0, BZ, BZ, V_INPLACE)
    c += [W(("vb", 0)), LG(("tq", "vb0"), True)] + v_unit(BY, 0, T0) + ([] if last else [tq_rd("ka0", T0)]) + v_pack(1, BY, BZ, [(e, 0) for e in range(4)]) + [SIG("BY0")]
    c += [W(("vb", 1)), LG(("tq", "vb1"), True)] + v_unit(BY, 1, T1) + v_pack(1, BY, BZ, [(e, 1) for e in range(4)])
    return c + [SIG("BY1"), SIG("Vdone")]
def cut(c, n0, n1):
    out = []; n = 0; pend = []
    for x in c:
        if isinstance(x, str) and x.startswith("v_"):
            if n0 <= n < n1: out += pend + [x]
            pend = []; n += 1
        elif isinstance(x, SIG):
            if n0 <= n - 1 < n1: out.append(x)
        else: pend.append(x)
    assert not pend
    return out
def k_st(j, out, tag="kst"):
    return [VM(tag, f"buffer_store_dwordx4 v[{out+4*j}:{out+4*j+3}], v{V_KA if j & 1 else V_KST}, s[{S_WS}:{S_WS+3}], s{S_KW if j < 2 else S_KW2} offen offset:{(j&1)*768}{STF}")]
def v_st(e, out, tag="vst"):
    return [VM(tag, f"buffer_store_dwordx4 v[{out+4*e}:{out+4*e+3}], v{V_VST}, s[{S_WS}:{S_WS+3}], s{S_VW} offen offset:{e*768}{STF}")]
def adv(r0, r1, w):
    return [f"s_add_u32 s{r0}, s{r0}, {8*STAGE}", f"s_sub_u32 s{r1}, s{r0}, {HEADBYTES}", f"s_min_u32 s{r0}, s{r0}, s{r1}", f"s_add_u32 s{r1}, s{r0}, 3072"] + \
           [f"s_add_u32 s{x}, s{x}, {8*STAGE}" for x in w]
def k_adv(): return adv(S_PK0, S_PK1, (S_KW, S_KW2))
def v_adv(): return adv(S_PV0, S_PV1, (S_VW,))
HT = {"ka": (k_ld, 0, BX), "kb": (k_ld, 1, BY), "va": (v_ld, 0, BZ), "vb": (v_ld, 1, BY)}
def flag_post():
    return [f"v_add_u32 v{V_FV}, 1, v{V_FV}",
            VM("flag", f"buffer_store_dword v{V_FV}, v{V_FLAG}, s[{S_FLG}:{S_FLG+3}], 0 offen sc1")]
def poll_addr():
    return [f"v_bfe_u32 v{V_POLL+1}, v{V_DMA}, 4, 6", f"v_lshlrev_b32 v{V_POLL+1}, 2, v{V_POLL+1}"]
def poll_load():
    return poll_addr() + [VM("poll", f"buffer_load_dword v{V_POLL}, v{V_POLL+1}, s[{S_FLG}:{S_FLG+3}], 0 offen sc1")]
def poll_test():
    return [f"v_subrev_u32 v{V_POLL}, s{S_NEED}, v{V_POLL}", f"v_cmp_lt_u32 vcc, 15, v{V_POLL}", "s_nop 0", f"s_and_b32 s{S_TP}, vcc_lo, 0xff"]
def smem_flags():
    return [f"s_buffer_load_dwordx8 s[{S_PT}:{S_PT+7}], s[{S_FLG}:{S_FLG+3}], 0 glc"]
def smem_test():
    l = smem_flags() + ["s_waitcnt lgkmcnt(0)"]
    for i in range(8): l.append(f"s_sub_u32 s{S_PT+i}, s{S_PT+i}, s{S_NEED}")
    for i in range(1, 8): l.append(f"s_max_u32 s{S_PT}, s{S_PT}, s{S_PT+i}")
    return l + [f"s_cmp_lt_u32 s{S_PT}, 16"]
def poll_slow(site):
    l = [f"L_pollslow{site}:"]
    if OPT["stamp"] and site != "P": l += [f"s_add_u32 s{S_LEAD}, s{S_LEAD}, {1 << (3 * site)}"]
    if site != "P":
        l += [f"s_mov_b32 s{S_TP}, 200", f"L_pollsm{site}:"] + smem_test() + [f"s_cbranch_scc1 L_pollok{site}",
              f"s_sub_u32 s{S_TP}, s{S_TP}, 1", f"s_cbranch_scc1 L_pollvec{site}", "s_sleep 1", f"s_branch L_pollsm{site}"]
    l += [f"L_pollvec{site}:",
            f"s_sub_u32 s{S_BUDGET}, s{S_BUDGET}, 1",
            f"s_cbranch_scc1 L_pollgiveup{site}",
            "s_sleep 2",
            f"buffer_load_dword v{V_POLL}, v{V_POLL+1}, s[{S_FLG}:{S_FLG+3}], 0 offen sc1",
            "s_waitcnt vmcnt(0)"] + poll_test() + [
            f"s_cbranch_scc1 L_pollvec{site}",
            f"s_branch L_pollok{site}",
            f"L_pollgiveup{site}:",
            f"s_mov_b32 s{S_BUDGET}, 0",
            f"s_branch L_pollok{site}"]
    return l
def tag_load():
    return [VM("tag", f"buffer_load_dword v{V_POLL}, off, s[{S_DBG}:{S_DBG+3}], s{S_HOFF} sc1")]
def tag_check():
    return [f"v_readfirstlane_b32 s{S_NEED}, v{V_POLL}", f"s_mov_b32 s{S_RET}, 100",
            "L_tagretry:", f"s_cmp_lg_u32 s{S_NEED}, 0", "s_cbranch_scc1 L_tagok",
            f"s_sub_u32 s{S_RET}, s{S_RET}, 1", "s_cbranch_scc1 L_tagslow", "s_sleep 8",
            f"s_buffer_load_dword s{S_NEED}, s[{S_DBG}:{S_DBG+3}], s{S_HOFF} glc", "s_waitcnt lgkmcnt(0)", "s_branch L_tagretry",
            "L_tagok:", f"s_add_u32 s{S_NEED}, s{S_NEED}, 1", f"v_mov_b32 v{V_FV}, s{S_NEED}"]
def first_post():
    return ["s_mov_b64 exec, 1", f"v_mov_b32 v{V_T}, 1", f"v_mov_b32 v{V_T+1}, {RING}",
            f"ds_add_rtn_u32 v{V_T}, v{V_T+1}, v{V_T}", "s_waitcnt lgkmcnt(0)",
            f"v_readfirstlane_b32 s24, v{V_T}", "s_nop 0", "s_cmp_lg_u32 s24, 3", "s_cbranch_scc1 L_nopost",
            f"s_lshl_b32 s{S_RET}, s{S_QB}, 2",
            f"buffer_store_dword v{V_FV}, off, s[{S_FLG}:{S_FLG+3}], s{S_RET} sc1",
            "L_nopost:", "s_mov_b64 exec, -1"]
def poll_smem():
    l = poll_addr() + [f"s_mov_b32 s{S_RET}, 200", "s_waitcnt lgkmcnt(0)"]
    l += [f"s_sub_u32 s{72+i}, s{72+i}, s{S_NEED}" for i in range(8)] + [f"s_max_u32 s72, s72, s{72+i}" for i in range(1, 8)]
    l += ["s_cmp_lt_u32 s72, 16", "s_cbranch_scc1 L_pollokP", "L_pollretry:"] + smem_test()
    l += ["s_cbranch_scc1 L_pollokP",
          f"s_sub_u32 s{S_RET}, s{S_RET}, 1", "s_cbranch_scc1 L_pollslowP", "s_sleep 1", "s_branch L_pollretry",
          "L_pollokP:", f"s_add_u32 s{S_NEED}, s{S_NEED}, 1"]
    return l
def tag_slow():
    return ["L_tagslow:",
            f"s_sub_u32 s{S_BUDGET}, s{S_BUDGET}, 1",
            "s_cbranch_scc1 L_taggiveup",
            "s_sleep 2",
            f"buffer_load_dword v{V_POLL}, off, s[{S_DBG}:{S_DBG+3}], s{S_HOFF} sc1",
            "s_waitcnt vmcnt(0)",
            f"v_readfirstlane_b32 s{S_NEED}, v{V_POLL}", "s_nop 0", f"s_cmp_eq_u32 s{S_NEED}, 0", "s_cbranch_scc1 L_tagslow",
            "s_branch L_tagok",
            "L_taggiveup:",
            f"s_mov_b32 s{S_BUDGET}, 0",
            "s_branch L_tagok"]

def text_of(x):
    if isinstance(x, (W, LG)): return "s_waitcnt"
    if isinstance(x, (VM, DS)): return x.text
    if isinstance(x, (SIG, CHK)): return ""
    return x
def kind_of(x):
    if isinstance(x, (SIG, CHK)) or (isinstance(x, LG) and x.soft): return "label"
    t = text_of(x)
    if t.endswith(":"): return "label"
    if t.startswith("v_mfma_f32_4x4x4"): return "smf"
    if t.startswith("v_"): return "valu"
    if t.startswith("ds_"): return "ds"
    if t.startswith("buffer_store"): return "store"
    if t.startswith("buffer_"): return "load"
    return "salu"
def cost_of(x):
    k = kind_of(x)
    if k == "label": return 0
    if k == "smf": return 4
    t = text_of(x)
    if k == "store": return 20 if "x4" in t else (12 if "x2" in t else 8)
    if k == "load": return 8
    if t.startswith("ds_write_b128"): return 12
    if t.startswith("v_exp"): return 8
    if t.startswith("s_nop"): return 4 * (int(t.split()[1]) + 1)
    if t.startswith("s_cbranch") or t.startswith("s_branch"): return 12
    if t.startswith("s_barrier"): return 8
    return 4
def gap_time(ops):
    t = 4; prev = None
    for o in ops:
        k = kind_of(o)
        if k in ("label", "smf"): continue
        if k == "salu": t += cost_of(o)
        else: t = max(t, 8) + cost_of(o) + (8 if (k != "valu" and prev == "valu") else 0)
        prev = k
    return t

class Stream:
    def __init__(self, ops, first, last, maxper=99):
        self.ops = list(ops); self.first = first; self.last = last; self.maxper = maxper
        self.total = sum(cost_of(o) for o in self.ops); self.done = 0; self.i = 0; self.lastg = -9

def pack(A, B, C, T, streams, novm=(), nosalu=(), ng=NG):
    out = []; over = 0; lastvm = -99
    pend = {o.name for st in streams for o in st.ops if isinstance(o, SIG)} | {o.name for l in B for o in l if isinstance(o, SIG)}
    placed = set()
    for g in range(ng):
        pend -= placed
        placed |= {o.name for o in B[g] if isinstance(o, SIG)}
        a, b, c, tl = list(A[g]), list(B[g]), list(C[g]), list(T[g])
        cnt = {}; inC = set(); blocked = set(); tm = []; stop = set()
        while True:
            best = None; bl = None; bsec = None
            for st in streams:
                if st.i >= len(st.ops) or g < st.first: continue
                force = g >= st.last
                o = st.ops[st.i]; k = kind_of(o); cst = cost_of(o)
                if id(st) in stop and not force: continue
                if k == "smf":
                    near = st.i == len(st.ops) - 1 and (st.lastg == g or (st.lastg == g - 1 and not (a or b or c)))
                    if force or (g % 2 == 1 and not tm and g != GBAR and not near):
                        best = st; bsec = "m"; bl = (True, True, 1e9); break
                    continue
                if isinstance(o, CHK) and o.name in pend:
                    assert not force, o.name
                    continue
                if k == "label":
                    if isinstance(o, SIG): placed.add(o.name)
                    best = st; bsec = "c" if (id(st) in inC or isinstance(o, SIG)) else "b"; bl = (True, True, 1e9); break
                if (cnt.get(id(st), 0) >= st.maxper or id(st) in blocked) and not force: continue
                if k == "salu" and g in nosalu:
                    assert not force
                    continue
                if k in ("load", "store") and (g in novm or g - lastvm < OPT["vmgap"]) and not force: continue
                if k == "ds" and any(kind_of(x) in ("ds", "load", "store") for x in b) and not force: continue
                if k in ("load", "store", "ds"):
                    sec = "b" if id(st) not in inC and id(st) not in blocked else "c"
                    if sec == "c" and not force: continue
                elif k == "salu" and not a and cnt.get(id(st), 0) == 0 and not any(x is not None for x in b if isinstance(x, (LG, CHK))):
                    sec = "a"
                else: sec = "c"
                tgt = st.total * (g - st.first + 1) / (st.last - st.first + 1)
                lag = tgt - st.done
                if not force:
                    if lag < cst / 2 - OPT["ahead"] and cst: continue
                    trial = (a + [o] if sec == "a" else a) + (b + [o] if sec == "b" else b) + (c + [o] if sec == "c" else c) + tl
                    if gap_time(trial) > 16:
                        if not (lag > 24 and gap_time(trial) <= 20): continue
                        if g % 2 == 0: continue
                key = (force, k in ("load", "store"), lag / max(1, (st.last - g + 1)) ** 0.5)
                if best is None or key > bl: best = st; bl = key; bsec = sec
            if best is None: break
            o = best.ops[best.i]
            if id(best) in stop: bsec = "m"
            {"a": a, "b": b, "c": c, "m": tm}[bsec].append(o)
            if bsec == "m": stop.add(id(best))
            if bsec == "c": inC.add(id(best))
            if kind_of(o) != "label":
                if " m0," in text_of(o): blocked.add(id(best))
                if kind_of(o) in ("load", "store"): lastvm = g
                cnt[id(best)] = cnt.get(id(best), 0) + 1
            best.i += 1; best.done += cost_of(o); best.lastg = g
        ops = a + b + c + tm + tl
        tt = gap_time(ops)
        if tt > 16: over += tt - 16
        out.append(ops)
    for st in streams: assert st.i == len(st.ops), [text_of(o) for o in st.ops[st.i:]]
    return out, over

NK = 81; NV = 81
SCHED = {
    0: ((0, 6, 23, 40, 57, 72, NK), (0, 12, 40, 66, NV)),
    1: ((0, 0, 19, 38, 57, 76, NK), (0, 6, 37, 69, NV)),
    2: ((0, 0, 20, 40, 60, 80, NK), (0, 6, 38, 70, NV)),
    3: ((0, 0, 20, 40, 61, NK, NK), (0, 8, 38, 70, NV)),
    4: ((0, 9, 27, 45, 63, NK, NK), (0, 22, 52, NV, NV)),
    5: ((0, 14, 31, 48, 65, NK, NK), (0, 25, 53, NV, NV)),
}
def steady(k, last=False):
    s0 = OPT["kst0"]; sd = OPT["sd"]; kc, vc = SCHED[OPT["sch"]]
    gs = [s0, s0 + sd, s0 + 2 * sd, s0 + 3 * sd]
    gs = [g + 4 if GBAR - 2 <= g <= GBAR + 2 else g for g in gs]
    st = lambda w: [(w, j, g) for j, g in enumerate(gs)] + [("dmaw", 0, s0 - OPT["sb"] - 1) if s0 > 30 else ("dmaw", 10, 92)]
    pc = OPT["pc"]
    if OPT["plate"]:
        pl2, pl5 = [("pollld", 92, 94)], [("pollld", 84, 94)]
    else:
        pl2, pl5 = [("pollld", 0, 8)], [("pollld", 2, 10)]
    k0s = kc[5] if OPT["sch"] == 3 else None
    t = {
        0: [("post", "kst"), ("cv", "v", vc[1], vc[2], 0, 95), ("ld", "vb", (2, 3), 0, 14), ("ld", "ka", (0, 1, 2, 3), 16, 50), ("dmaw", 20, 74)],
        1: [("cv", "v", vc[2], vc[3], 0, 95), ("ld", "kb", (0, 1), 76, 94), ("dmaw", 0, 72)],
        2: [("cv", "v", vc[3], NV, 0, s0 - 3), ("cv", "k", kc[0], kc[1], s0 + 6 if vc[3] < NV else 0, 95)] + pl2 + st("vst"),
        3: [("post", "vst"), ("pollchk", pc), ("ld", "kb", (2, 3), 0, 20), ("cv", "k", kc[1], kc[2], 0, 95), ("dmaw", pc + 7, 76)],
        4: [("cv", "k", kc[2], kc[3], 0, 95), ("ld", "va", (0, 1, 2, 3), 0, 44)],
        5: [("cv", "k", kc[3], kc[4], 0, 95)] + pl5 + ([("pf", 60, 76)] if OPT["pf2"] else []),
        6: [("cv", "k", kc[4], kc[5], 0, 95), ("pollchk", pc), ("ld", "vb", (0, 1), 80, 94), ("dmaw", pc + 7, 76)],
        7: [("cv", "k", kc[5], kc[6], 0, s0 - 3), ("cv", "v", vc[0], vc[1], s0 + 6 if kc[5] < NK else 0, 94)] + st("kst"),
    }[k]
    t = [x for x in t if not (x[0] == "cv" and x[2] >= x[3])]
    if last:
        t = [x for x in t if not ((x[0] == "cv" and x[1] == "k") or (x[0] == "ld" and x[1] != "vb") or (x[0] == "ld" and k > 0))]
        t = [("cv", "vl") + x[2:] if x[:2] == ("cv", "v") else x for x in t]
    return t

GBAR = 4 * (24 - D) - 1
POLLSITES = []
def qk_mfma(t0, g):
    qb = (g >> 1) & 3
    F = 2 * (g >> 3) + (g & 1)
    t = t0 + F // 12; s, tb = kfrag(F % 12)
    d = vr(Sq(t, qb, tb), 4)
    c = vr(NEGM(qb), 4) if (s < 2 and g % 2 == 0) else d
    return f"{MF} {d}, {FR(F)}, {Qf(qb,s)}, {c}"
def pv_mfma(t0, db, qb, w, first=False):
    d = ar(O(qb, db), 4)
    return f"{MF} {d}, {vr(P(t0+w,qb),4)}, {FR(2*db+w)}, {'0' if (first and w == 0) else d}"

def gen_iter(it, tasks=(), dma=None, name=None, endops=(), peel=False, extra_sm=False, nostep=False, extra=(), extra_late=()):
    kind = "q" if it % 2 else "p"
    nk = "p" if kind == "q" else "q"
    A = [[] for _ in range(NG)]; B = [[] for _ in range(NG)]; C = [[] for _ in range(NG)]; T = [[] for _ in range(NG)]
    streams = []; novm = set(range(0, NG, 2)); nosalu = set()
    for F in range(24):
        fr = F + D
        B[4 * F].append(frag_read(kind, fr) if fr < 24 else frag_read(nk, fr - 24))
    for F in range(2, 25, 2):
        A[4 * F - 1].append(LG(("f", kind, F + 1) if F < 24 else ("f", nk, 1)))
    smB = softmax_part(it, 1); smA = softmax_part(it + 1, 0)
    if extra_sm: smB = softmax_part(it, 0) + smB
    if kind == "q":
        streams.append(Stream(smB, 0, 50)); streams.append(Stream(smA, 52, 95))
    else:
        streams.append(Stream(softmax_part(it, 1, more=[(it + 1, 0), (it + 1, 1)]), 0, 95))
    if endops:
        A[92] += endops[:1]; A[94] += [A[95][0]] + list(endops[1:-1]); A[95] = []; T[95] = list(endops[-1:]); nosalu |= {94, 95}
    if extra: streams.append(Stream(extra, 0, 90))
    if extra_late: streams.append(Stream(extra_late, GBAR + 1, 94))
    if not OPT["prod"]: tasks = ()
    if dma is None:
        w = [t[1:] for t in tasks if t[0] == "dmaw"]
        w = w[0] if w else (0, GBAR - 5)
        p0 = it + 5 if kind == "q" else it + 2
        c_ = "k" if kind == "q" else "v"
        dma = [((c_, p0), (c_, p0 + 1)) + tuple(w)]
    for grp in dma:
        dl = []
        for part, pos in grp[:-2]: dl += dma_tile(part, pos, peel)
        n = max(i for i, x in enumerate(dl) if isinstance(x, VM)) + 1
        streams.append(Stream(dl[:n], grp[-2], grp[-1], maxper=2))
        streams.append(Stream(dl[n:], grp[-1] + 1, min(93 if endops else 95, grp[-1] + 12), maxper=2))
    nj = ((it + 2) // 2) if nk == "q" else (it - 1) // 2
    wtags = [("dk" if nk == "q" else "dv", nj % 4)]
    if not nostep:
        streams.append(Stream(rd_step(nk), 30, GBAR - 3, maxper=1))
    for t in tasks:
        k_ = t[0]
        if k_ == "cv":
            c = {"k": chain_k, "v": chain_v, "vl": lambda: chain_v(True)}[t[1]]()
            streams.append(Stream(cut(c, t[2], t[3]), t[4], t[5]))
        elif k_ in ("kst", "vst"):
            grp = k_st(t[1], BX) if k_ == "kst" else v_st(t[1], BZ)
            g = t[2]; assert g % 4 == 1 and not B[g], g
            if t[1] == 0: B[g].append(CHK("Kdone" if k_ == "kst" else "Vdone"))
            B[g].append(grp[-1]); novm |= set(range(g - OPT["sb"], g + OPT["sa"] + 1))
            if t[1] == 3: B[g].append(SIG("BX" if k_ == "kst" else "BZ"))
            if grp[:-1]: streams.append(Stream(grp[:-1], max(0, g - 5), g - 1))
        elif k_ in ("ld", "ldn"):
            ld, h, buf = HT[t[1]]
            adv = ({"ka": k_adv(), "va": v_adv()}.get(t[1], []) if k_ == "ld" else [])
            chk = {"ka": [CHK("BX")], "va": [CHK("BZ")]}.get(t[1], [CHK(f"BY{j>>1}") for j in t[2] if j % 2 == 0])
            streams.append(Stream(chk + adv + ld(h, buf, t[1], t[2]), t[3], t[4], maxper=1))
        elif k_ == "post":
            wtags += list(t[1:])
            streams.append(Stream(flag_post(), GBAR + 1, 93, maxper=1))
        elif k_ == "pf":
            streams.append(Stream([VM("pf", f"buffer_load_dword v0, v{V_DMA}, s[{S_DBG}:{S_DBG+3}], s{S_HOFF} offen")], t[1], t[2]))
        elif k_ == "pollld": streams.append(Stream(poll_load(), t[1], t[2], maxper=1))
        elif k_ in ("pollchk", "pollchk0"):
            ps = len(POLLSITES); POLLSITES.append(ps)
            g = t[1]; assert g % 4 == 1 and not (GBAR - 6 <= g <= GBAR)
            pt = poll_test()
            A[g] += [W("poll")]; T[g] += pt[:2]; novm |= {g, g + 4}
            A[g + 3] += [pt[3]]; A[g + 4] += [f"s_cbranch_scc1 L_pollslow{ps}", f"L_pollok{ps}:"]; nosalu |= {g + 3, g + 4}
            if k_ == "pollchk": A[g + 5] += [f"s_add_u32 s{S_NEED}, s{S_NEED}, 1"]
    A[GBAR - 1] += [W(*wtags)]; novm |= {GBAR}
    A[GBAR - 2] += A[GBAR]; A[GBAR] = ["s_barrier"]
    if endops:
        for st_ in streams: st_.last = min(st_.last, 94)
    fill, over = pack(A, B, C, T, streams, novm, nosalu)
    if over: print(f"iter {name or it}: over budget by {over} cycles", file=sys.stderr)
    out = [f"; ---- iteration {name or it}"]
    for g in range(NG):
        if kind == "q": out.append(qk_mfma(it + 1, g))
        else: out.append(pv_mfma(it - 2, g >> 3, (g >> 1) & 3, g & 1, first=(peel and it == 2)))
        out += fill[g]
    return with_nop(out)

GA = [60, 61]; BP = 62; ONE = 63; RD2 = [9, 10, 11]
RLQ = [48, 52, 56, 128]
RT = [20, 23]
def epi_addr():
    ta = 63
    return [f"v_bfe_u32 v{ta}, v{V_DMA}, 4, 6", f"v_and_b32 v{BP}, 48, v{ta}", f"v_and_b32 v{ta}, 15, v{ta}",
            f"v_mul_u32_u24 v{GA[1]}, 96, v{BP}", f"v_lshl_add_u32 v{GA[0]}, v{ta}, 4, v{GA[1]}", f"v_lshl_add_u32 v{GA[1]}, v{ta}, 3, v{GA[1]}",
            f"s_lshl_b32 s24, s{S_QB}, 2", f"s_add_u32 s24, s24, s{S_WAVE}", f"s_mul_i32 s24, s24, {STAGE}", f"v_mov_b32 v{ONE}, 1.0"] + \
           [f"s_add_u32 s{S_PK0+i}, s24, {6144*i}" for i in range(4)]
def epi_l(qs):
    fl = [f"v_mfma_f32_16x16x4_f32 v[{RLQ[q]}:{RLQ[q]+3}], v{V_L[q]}, v{ONE}, 0" for q in qs]
    return fl, [f"v_rcp_f32 v{RLQ[q]+i}, v{RLQ[q]+i}" for q in qs for i in range(4)]
def epi_q(qb, temps, pk):
    p = []
    for i in range(4):
        ob = temps[(4 * qb + i) % len(temps)]
        rl = RLQ[qb] + i
        p += [f"v_accvgpr_read_b32 v{ob+db}, a{O(qb,db)+i}" for db in range(12)]
        if pk: p += [f"v_pk_mul_f32 v[{ob+2*j}:{ob+2*j+1}], v[{ob+2*j}:{ob+2*j+1}], v[{rl&~1}:{(rl&~1)+1}] op_sel:[0,{rl&1}] op_sel_hi:[1,{rl&1}]" for j in range(6)]
        else: p += [f"v_mul_f32 v{ob+j}, v{ob+j}, v{rl}" for j in range(12)]
        p += [f"v_cvt_pk_bf16_f32 v{ob+j}, v{ob+2*j}, v{ob+2*j+1}" for j in range(6)]
        p += [f"buffer_store_dwordx4 v[{ob}:{ob+3}], v{GA[0]}, s[{S_OUT}:{S_OUT+3}], s{S_PK0+qb} offen offset:{384*i}{OF}",
              f"buffer_store_dwordx2 v[{ob+4}:{ob+5}], v{GA[1]}, s[{S_OUT}:{S_OUT+3}], s{S_PK0+qb} offen offset:{384*i+256}{OF}"]
    return p

def gen_tail():
    passes = [(60, (0, 1)), (62, (0, 1)), (60, (2, 3)), (62, (2, 3))]
    def tg(i): return ("f", "p", i) if i < 24 else ("f", "t", i)
    def rd(i):
        ps, f = divmod(i, 24)
        return frag_read("p", f, V_RDV if passes[ps][0] == 60 else RD2, tg(i))
    def run(ps, fill, lim):
        t0, qbs = passes[ps]
        out = []; fill = list(fill)
        for db in range(12):
            for i, (qb, w) in enumerate([(q, w) for q in qbs for w in (0, 1)]):
                out.append(pv_mfma(t0, db, qb, w))
                cur = []
                gi = 24 * ps + 2 * db
                if i in (0, 2) and gi + (i >> 1) + D < 96: cur.append(rd(gi + (i >> 1) + D))
                if i == 3 and gi + 3 < 96: cur.append(LG(tg(gi + 3)))
                L_ = 16 if i % 2 == 0 else lim
                while fill and gap_time(cur + [fill[0]]) <= L_ + (12 if (text_of(fill[0]).startswith(("buffer", "ds_")) and i % 2) else 0):
                    cur.append(fill.pop(0))
                out += cur
        return out, fill
    thr = f"s_mov_b32 s{S_TMP}, 0x{f32bits(2.0**OPT['thr']):08x}"
    seq = []
    seq += kstamp("ps0", 9)
    c, r = run(0, softmax_part(63, 0), 16); seq += c + r + ["s_nop 1"] + kstamp("ps1", 9)
    c, r = run(1, [f"v_max_f32 v{RT[0]}, v{V_L[0]}, v{V_L[1]}", thr, f"v_cmp_lt_f32 vcc, s{S_TMP}, v{RT[0]}"] + softmax_part(62, 1), 16)
    seq += c + r + ["s_cbranch_vccnz L_slow"] + kstamp("ps2", 9)
    tempsA = [BX, BX + 12, BZ, 132]
    must = softmax_part(63, 1) + [f"v_max_f32 v{RT[0]}, v{V_L[2]}, v{V_L[3]}", f"v_cmp_lt_f32 vcc, s{S_TMP}, v{RT[0]}"]
    m01, r01 = epi_l((0, 1)); m23, r23 = epi_l((2, 3))
    seq += m01
    rest = r01 + epi_q(0, tempsA, False) + epi_q(1, tempsA, False)
    c, r = run(2, must + rest, OPT["tden"])
    nm = max(0, len(r) - len(rest)); c += r[:nm]; r = r[nm:]
    seq += c + ["s_nop 1", "s_cbranch_vccnz L_slow"] + kstamp("ps3", 9)
    seq += m23
    c, r = run(3, r + r23, OPT["tden"]); seq += c + kstamp("rest", 9) + r
    print("tail: left after pass 3:", len(r), file=sys.stderr)
    tempsB = [64 + 12 * i for i in range(5)]
    seq += ["s_nop 4"] + kstamp("e2", 9) + epi_q(2, tempsB, True) + kstamp("e3", 9) + epi_q(3, tempsB, True) + kstamp("fin", 9)
    return seq
class Passes:
    def __init__(self, passes, ring, name, issued=0, t0kind=None):
        self.ps = passes; self.ring = ring; self.LA = len(ring) - 2; self.name = name
        self.idx = []
        self.start = []
        for n, p in enumerate(passes):
            self.start.append(len(self.idx))
            self.idx += [(n, f) for f in range(p.get("f0", 0), D if p.get("look") else p.get("f1", 24))]
        self.next = issued; self.issued = issued; self.t0kind = t0kind
    def tg(self, i):
        n, f = self.idx[i]
        if self.ps[n].get("look"): return ("f", self.ps[n]["kind"], f)
        if i < self.issued: return ("f", self.t0kind, i)
        return ("f", self.name, i)
    def reg(self, i): return vr(self.ring[i % len(self.ring)], 4)
    def rd(self, i):
        n, f = self.idx[i]; p = self.ps[n]
        x = frag_read(p["kind"], f, p.get("addr"), self.tg(i))
        x.text = x.text.replace(FR(f), self.reg(i), 1)
        if p.get("look"): assert self.reg(i) == FR(f)
        return (list(p.get("pre", ())) if i == self.start[n] else []) + [x]
    def prime(self, n):
        out = []
        while self.next < n: out += self.rd(self.next); self.next += 1
        return out + [LG(self.tg(1))]
    def run(self, ps, fill, lim, bar=None, sec=(), vm=(), barF=14, vmi=1):
        p = self.ps[ps]; kind, t0, qbs = p["kind"], p["t0"], p["qbs"]
        out = [f"; ---- pass {self.name}{ps}"]; fill = list(fill); sec = list(sec); vm = list(vm); n = 2 * len(qbs); nf = len(self.idx)
        f0 = p.get("f0", 0)
        for F in range(f0, p.get("f1", 24), 2):
            gi = self.start[ps] + F - f0
            if F == 12 and self.name == "t" and "HOLD" in fill: assert fill[0] == "HOLD", (ps, fill[:3])
            for i, (qb, w) in enumerate([(q, w) for q in qbs for w in (0, 1)]):
                a = self.reg(gi + w)
                if kind == "q":
                    t = t0 + F // 12; s_, tb = kfrag((F + w) % 12); d = vr(Sq(t, qb, tb), 4)
                    c = ("0" if p.get("cz") else vr(NEGM(qb), 4)) if (s_ < 2 and w == 0) else d
                    out.append(f"{MF} {d}, {a}, {Qf(qb,s_)}, {c}")
                else:
                    d = ar(O(qb, F >> 1), 4)
                    out.append(f"{MF} {d}, {vr(P(t0+w,qb),4)}, {a}, {'0' if (p.get('first') and w == 0) else d}")
                cur = []
                lim_ = gi + (6 if len(self.ring) == 6 else self.LA)
                k = (2 if (n == 2 or self.next < lim_ - 2) else 1) if i % 2 == 0 else 0
                while k and self.next < min(nf, lim_):
                    cur += self.rd(self.next); self.next += 1; k -= 1
                if i == n - 1 and gi + 3 < nf: cur.append(LG(self.tg(gi + 3)))
                if bar and F == barF and i == 1: cur += [W(*bar), "s_barrier"]
                elif vm and i == vmi: cur += vm.pop(0)
                L_ = 16 if i % 2 == 0 else lim
                tm = []
                for l in (fill, sec):
                    while l and l[0] != "HOLD" and gap_time(cur + [l[0]]) <= L_ + (12 if (text_of(l[0]).startswith(("buffer", "ds_")) and i % 2) else 0):
                        if kind_of(l[0]) == "ds" and any(kind_of(x) == "valu" for x in cur): break
                        if kind_of(l[0]) == "smf":
                            if i % 2: tm.append(l.pop(0))
                            break
                        cur.append(l.pop(0))
                cur += tm
                if fill and fill[0] == "HOLD" and F >= 12 and i >= 1 and (F > 12 or i == n - 1): fill.pop(0)
                out += cur
        assert not vm, vm
        return with_nop(out), [x for x in fill if x != "HOLD"], sec

def gen_tail3():
    tw = OPT["tw"]
    RD3 = [12, 13, 0]
    VA = {58: V_RDV, 60: RD2, 62: RD3}
    pl = [("p", 58, (0, 1) if tw else (0, 1, 2, 3)), ("q", 62, (0, 1)), ("p", 60, (0, 1)), ("p", 62, (0, 1))] + ([("p", 58, (2, 3))] if tw else []) + \
         [("q", 62, (2, 3)), ("p", 60, (2, 3))] + ([("p", 62, (2,)), ("p", 62, (3,))] if OPT["tq"] else [("p", 62, (2, 3))])
    PS = Passes([dict(kind=k, t0=t, qbs=q, addr=(VA[t] if k == "p" else None)) for k, t, q in pl],
                [V_FR + 4 * i for i in range(NFS)] + [240 + 4 * i for i in range(4)], "t", issued=D, t0kind="p")
    def run(ps, fill, lim, bar=None, sec=(), vm=()): return PS.run(ps, fill, lim, (bar,) if bar else None, sec, vm)
    den = OPT["tden"]; d0 = OPT["td"]
    thr = f"s_mov_b32 s{S_TMP}, 0x{f32bits(2.0**OPT['thr']):08x}"
    seq = []
    l = dma_tile("v", 62) + dma_tile("v", 63)
    vm = [l[0:1], l[1:2], l[2:3], l[3:4], l[4:7], l[7:8], l[8:9], l[9:10]]
    assert " m0," in l[6]
    rd23 = [f"v_subrev_u32 v{RD2[i]}, {4*STAGE}, v{V_RDV[i]}" for i in range(3)] + [f"v_subrev_u32 v{RD3[i]}, {2*STAGE}, v{V_RDV[i]}" for i in range(3)]
    m01, r01 = epi_l((0, 1)); m23, r23 = epi_l((2, 3))
    c, r, _ = run(0, rd_step("q") + ([] if tw else softmax_part(60, 1)) + softmax_part(61, 0), d0, ("dk", 3), vm=vm); seq += c + r + kstamp("a1", 9)
    c, r, _ = run(1, rd23 + epi_addr() + ["HOLD"] + softmax_part(62, 0), d0, ("dv", 2)); seq += c + kstamp("a2", 9)
    chk = lambda a, b: ["s_nop 4", f"v_cmp_nge_f32 vcc, s{S_TMP}, v{V_L[a]}", f"v_cmp_nge_f32_e64 s[56:57], s{S_TMP}, v{V_L[b]}", "s_nop 0", "s_or_b64 vcc, vcc, s[56:57]"]
    c, r, _ = run(2, [thr] + r + softmax_part(63, 0), d0, ("dv", 3)); seq += c + r + chk(0, 1) + m01 + ["s_cbranch_vccnz L_slow"] + kstamp("a3", 9)
    tempsA = [BX, BZ]
    c, r, _ = run(3, softmax_part(60 if tw else 61, 1) + r01, d0); seq += c + r + kstamp("b0", 9)
    e = epi_q(0, tempsA, False) + epi_q(1, tempsA, False)
    ps = 4
    if tw:
        c, r, e = run(4, ["s_nop 3", "HOLD"] + softmax_part(61, 1, (2,)), den, sec=e); seq += c + r + kstamp("b1", 9); ps = 5
    c, r, e = run(ps, (softmax_part(61, 1, (3,)) if tw else ["s_nop 3"]) + ["HOLD"] + softmax_part(62, 1), den, sec=e); seq += c + kstamp("b2", 9)
    c, r, e = run(ps + 1, r + softmax_part(63, 1), den, sec=e)
    seq += c + r + chk(2, 3) + m23 + ["s_cbranch_vccnz L_slow"] + kstamp("b3", 9)
    c, r, e = run(ps + 2, [], den, sec=e + ["s_nop 3"] + r23); seq += c + r + kstamp("b4", 9)
    tempsB = [64 + 12 * i for i in range(5)]
    if OPT["tq"]:
        c, r, e = run(ps + 3, ["s_nop 3"], den, sec=e + epi_q(2, tempsA, False)); seq += c + kstamp("rest", 9) + e
    else:
        seq += e + ["s_nop 4"] + epi_q(2, tempsB, True)
    print("tail3: left after last pass:", len(e), file=sys.stderr)
    seq += ["s_nop 4"] + kstamp("e3", 9) + epi_q(3, tempsB, True) + kstamp("fin", 9)
    return seq
def slow_epi():
    m, r = epi_l((0, 1, 2, 3))
    seq = ["s_nop 1"] + m + ["s_nop 10"] + r + ["s_nop 0"]
    for q in range(4): seq += epi_q(q, [64 + 12 * i for i in range(5)], True)
    return seq

def xlane(op, t):
    l = []
    for sw in ("v_permlane16_swap_b32", "v_permlane32_swap_b32"):
        l += [f"v_mov_b32 v{t+1}, v{t}", "s_nop 1", f"{sw} v{t}, v{t+1}", "s_nop 1", f"{op} v{t}, v{t}, v{t+1}"]
    return l

def gen_slow():
    KF = 64; VF = 112; SS = 160; PP = 224; M = [240, 241, 242, 243]; KA = [244, 245]; LA = [246, 247, 248]; AL = 250; t = V_T
    p = ["L_slow:", "s_waitcnt vmcnt(0) lgkmcnt(0)", "s_nop 15"]
    for i in range(192): p.append(f"v_accvgpr_write_b32 a{i}, 0")
    for q in range(4): p += [f"v_mov_b32 v{V_L[q]}, 0", f"v_mov_b32 v{M[q]}, 0xff7fffff"]
    p += [f"v_subrev_u32 v{KA[i]}, s{S_RK}, v{V_RDK[i]}" for i in range(2)] + [f"v_subrev_u32 v{LA[i]}, s{S_RV}, v{V_RDV[i]}" for i in range(3)]
    p += [f"s_mov_b32 s{S_PT}, 0", "L_slowloop:"]
    p += [f"s_add_u32 s{S_PT+1}, s{S_PT}, 6144", f"s_add_u32 s{S_PT+2}, s{S_PT}, 12288"]
    for f in range(12):
        s, tb = kfrag(f)
        p.append(f"buffer_load_dwordx4 v[{KF+4*f}:{KF+4*f+3}], v{KA[s&1]}, s[{S_WS}:{S_WS+3}], s{S_PT+tb} offen offset:{(s>>1)*128} sc1")
    for db in range(12):
        a, off = vfrag(db)
        p.append(f"buffer_load_dwordx4 v[{VF+4*db}:{VF+4*db+3}], v{LA[a]}, s[{S_WS}:{S_WS+3}], s{S_PT+2} offen offset:{off} sc1")
    p.append("s_waitcnt vmcnt(12)")
    for f in range(12):
        s, tb = kfrag(f)
        for qb in range(4):
            d = vr(SS + 8 * qb + 4 * tb, 4)
            p.append(f"{MF} {d}, v[{KF+4*f}:{KF+4*f+3}], {Qf(qb,s)}, {'0' if s == 0 else d}")
    p.append("s_nop 9")
    for qb in range(4):
        sb = SS + 8 * qb
        p += [f"v_max3_f32 v{t}, v{sb}, v{sb+1}, v{sb+2}", f"v_max3_f32 v{t}, v{t}, v{sb+3}, v{sb+4}",
              f"v_max3_f32 v{t}, v{t}, v{sb+5}, v{sb+6}", f"v_max3_f32 v{t}, v{t}, v{sb+7}, v{M[qb]}"]
        p += xlane("v_max_f32", t)
        p += [f"v_sub_f32 v{t+1}, v{M[qb]}, v{t}", f"v_exp_f32 v{t+1}, v{t+1}", f"v_mov_b32 v{M[qb]}, v{t}"]
        p += [f"ds_bpermute_b32 v{AL+i}, v{BP}, v{t+1} offset:{4*i}" for i in range(4)]
        for i in range(8): p.append(f"v_sub_f32 v{sb+i}, v{sb+i}, v{t}")
        for i in range(8): p.append(f"v_exp_f32 v{sb+i}, v{sb+i}")
        p.append(f"v_mul_f32 v{V_L[qb]}, v{V_L[qb]}, v{t+1}")
        for i in range(8): p.append(f"v_add_f32 v{V_L[qb]}, v{V_L[qb]}, v{sb+i}")
        for i in range(4): p.append(f"v_cvt_pk_bf16_f32 v{PP+4*qb+i}, v{sb+2*i}, v{sb+2*i+1}")
        p.append("s_waitcnt lgkmcnt(0)")
        for i in range(48):
            a = O(qb, 0) + i; tt = t + 2 + (i % 2)
            p += [f"v_accvgpr_read_b32 v{tt}, a{a}", f"v_mul_f32 v{tt}, v{tt}, v{AL+i%4}", f"v_accvgpr_write_b32 a{a}, v{tt}"]
    p += ["s_waitcnt vmcnt(0)", "s_nop 1"]
    for db in range(12):
        for qb in range(4):
            d = ar(O(qb, db), 4)
            p.append(f"{MF} {d}, v[{PP+4*qb}:{PP+4*qb+3}], v[{VF+4*db}:{VF+4*db+3}], {d}")
    p += [f"s_add_u32 s{S_PT}, s{S_PT}, {STAGE}", f"s_cmp_lt_u32 s{S_PT}, {HEADBYTES}", "s_nop 7", "s_cbranch_scc1 L_slowloop"]
    e = slow_epi(); resolve(e)
    return p + fin(e) + ["s_branch L_fin"]

def resolve(seq, check=True):
    vm = []; ds = []; done = 0; tok = set(); where = ""; nm = 0
    for x in seq:
        if isinstance(x, str) and x.startswith("; ----"): where = x; nm = 0
        if isinstance(x, str) and x.startswith("v_mfma"): nm += 1
        if isinstance(x, VM): vm.append(x.tag)
        elif isinstance(x, DS): ds.append(x.tag)
        elif isinstance(x, W):
            for tag in x.tags:
                idx = [i for i, t in enumerate(vm) if t == tag]
                if idx:
                    n = len(vm) - 1 - idx[-1]
                    x.n = n if x.n is None else min(x.n, n)
        elif isinstance(x, LG):
            idx = [i for i, t in enumerate(ds) if t == x.tag]
            assert idx, x.tag
            n = len(ds) - 1 - idx[-1]
            x.n = n if x.n is None else min(x.n, n)
            if idx[-1] >= done:
                x.need = True
                if x.soft: print(f"soft LDS wait needed: {x.tag} n={n} {where} gap {nm}", file=sys.stderr)
            done = max(done, idx[-1] + 1)
        elif isinstance(x, SIG): tok.add(x.name)
        elif isinstance(x, CHK):
            assert x.name in tok or not OPT["prod"], f"token {x.name} missing {where} gap {nm}"
            tok.discard(x.name)
        else:
            assert not x.startswith("ds_") or "lgkmcnt(0)" in " ".join(y for y in seq[seq.index(x):seq.index(x)+3] if isinstance(y, str)), x
            if "lgkmcnt(0)" in x: done = len(ds)
def fin(seq):
    out = []
    for x in seq:
        if isinstance(x, W):
            if not OPT["prod"] and x.n is None: continue
            assert x.n is not None, x.tags
            out.append(f"s_waitcnt vmcnt({min(x.n, 63)})")
        elif isinstance(x, LG):
            if x.need:
                out.append(f"s_waitcnt lgkmcnt({min(x.n, 15)})")
            elif not x.soft: out.append("s_nop 0")
        elif isinstance(x, (VM, DS)): out.append(x.text)
        elif isinstance(x, (SIG, CHK)): pass
        else:
            if x.startswith("v_mfma_f32_4x4x4"):
                rd = Ins(x).rd; back = [y for y in out[-6:] if Ins(y).kind != "none"][-2:][::-1]
                for d, y in enumerate(back):
                    if Ins(y).kind == "valu" and Ins(y).wr & rd: out.append(f"s_nop {1 - d}"); break
            out.append(x)
    return out
def srd(s, lo, off_s, size):
    return [f"s_add_u32 s{s}, s{lo}, s{off_s}", f"s_addc_u32 s{s+1}, s{lo+1}, 0", f"s_mov_b32 s{s+2}, {size}", f"s_mov_b32 s{s+3}, 0x20000"]
def sprinkle(code, extra):
    out = []; n = len(code); m = len(extra); j = 0
    for i, x in enumerate(code):
        while j < m and (i + 1) * m > j * n:
            out += extra[j]; j += 1
        if isinstance(x, list): out += x
        else: out.append(x)
    for g in extra[j:]: out += g
    return out

def touch_slot(tag, n):
    if not n: return []
    o = []
    for w in range(1, 4): o += [f"s_cmp_eq_u32 s{S_WAVE}, {w}", f"s_cbranch_scc1 L_t{tag}_{w}"]
    for w in range(4):
        o.append(f"L_t{tag}_{w}:")
        for k in range(w, n, 4): o += [f"s_branch L_tb{tag}_{k}", f"L_tb{tag}_{k}:"]
        if w < 3: o.append(f"s_branch L_t{tag}_end")
    return o + [f"L_t{tag}_end:"]

def gen_prologue():
    p = []
    K = f"{NAME}_kernel"
    p += [f"{K}:", "s_load_dwordx16 s[40:55], s[0:1], 0", "s_getpc_b64 s[60:61]", "L_pc:",
          "s_movk_i32 s62, 0x4000", "s_lshl_b32 s63, 1, 17", "v_lshlrev_b32 v31, 6, v0",
          VM("pf", "buffer_load_dword v15, v31, s[60:63], 0 offen"),
          "s_lshr_b32 s24, s2, 8", "s_cbranch_scc1 L_done", "s_load_dwordx4 s[16:19], s[0:1], 64", "v_lshlrev_b32 v30, 4, v0"]
    if OPT["stamp"]:
        p += ["s_mov_b64 s[100:101], s[0:1]" if OPT["stamp"] == 8 else "s_memtime s[100:101]", "s_memrealtime s[98:99]"]
    p += ["v_and_b32 v25, 63, v0", "v_lshrrev_b32 v24, 6, v0", "s_movk_i32 s24, 5120",
          "v_mul_u32_u24 v26, 43, v25", f"v_mad_u32_u24 v{V_VLD}, v24, s24, v30", "s_movk_i32 s24, 384", "v_lshrrev_b32 v26, 10, v26",
          "s_and_b32 s22, s2, 7", f"s_mul_i32 s{S_TMP}, s22, {264 if OPT['rot'] else 256}", f"v_mad_u32_u24 v{V_KLD}, v26, s24, v{V_VLD}",
          "s_andn2_b32 s23, s2, 63", f"s_bfe_u32 s{S_QB}, s2, 0x30003", f"s_add_u32 s{S_TMP}, s{S_TMP}, s23", f"s_add_u32 s{S_TMP}, s{S_TMP}, s{S_QB}",
          f"s_lshr_b32 s23, s{S_TMP}, 1", "s_mulk_i32 s23, 384", f"s_mul_i32 s24, s{S_TMP}, {STAGE}", "v_lshl_add_u32 v27, v25, 3, s23",
          "s_addk_i32 s24, 2048", "s_mov_b32 exec_hi, 0xffff"]
    p += ["s_waitcnt lgkmcnt(0)"] + vstamp("kernarg")
    p += [VM("ksc", "global_load_dwordx2 v[32:33], v27, s[46:47]"), VM("ksc", "global_load_dwordx2 v[34:35], v27, s[48:49]"),
          "s_add_u32 s56, s42, s24", "s_addc_u32 s57, s43, 0"]
    for h in range(2):
        p += [VM(("k0" + "ab"[h], j >> 1), f"global_load_dwordx4 v[{64+16*h+4*j}:{67+16*h+4*j}], v{V_KLD}, s[56:57] offset:{1536*j+384*h-2048}{NTKV}") for j in range(4)]
    p += vstamp("iss k") + ["s_add_u32 s58, s44, s24", "s_addc_u32 s59, s45, 0"]
    vl = [VM(("v0" + "ab"[r >> 2], (r >> 1) & 1), f"global_load_dwordx4 v[{96+4*r}:{99+4*r}], v{V_VLD}, s[58:59] offset:{768*r-2048}{NTKV}") for r in range(8)]
    nv = OPT["nv"]
    p += vl[:nv]
    p += [f"v_readfirstlane_b32 s{S_WAVE}, v24", f"s_lshl_b32 s23, s{S_TMP}, 6", f"s_lshr_b32 s{S_HEAD}, s{S_TMP}, 6",
          f"s_lshl4_add_u32 s23, s{S_WAVE}, s23",
          "s_load_dwordx4 s[64:67], s[50:51], s23", "s_load_dwordx4 s[68:71], s[52:53], s23"]
    p += [f"s_lshl_b32 s22, s{S_HEAD}, 10", f"s_add_u32 s22, s22, {FLAG_OFF}", f"s_or_b32 s{S_LEAD}, s{S_QB}, s{S_WAVE}", "s_cbranch_scc1 L_notleader0",
          "s_load_dwordx8 s[72:79], s[18:19], s22 glc", "L_notleader0:"]
    p += ["s_mov_b32 exec_hi, -1"]
    pv = len(p)
    VQD = OPT['vqd']
    p += [f"s_mul_i32 s24, s{S_HEAD}, 786432"] + srd(S_Q, 40, 24, 786432) + srd(S_OUT, 54, 24, 786432)
    p += [f"s_lshl2_add_u32 s24, s{S_QB}, s{S_WAVE}", f"s_mul_i32 s24, s24, {STAGE}",
          f"s_mul_i32 s{S_QL}, s{S_WAVE}, 6144", f"s_add_u32 s{S_QL}, s{S_QL}, {3*STAGE}"]
    QSL = (0, 1, 2, 1)
    p += [f"v_add_u32 v{VQD+b}, {64*b}, v25" for b in range(6)]
    p += [f"v_mul_u32_u24 v{VQD+8+b}, 2731, v{VQD+b}" for b in range(6)]
    p += [f"v_bfe_u32 v{VQD+8+b}, v{VQD+8+b}, 17, 3" for b in range(6)]
    p += [f"v_xor_b32 v{VQD+b}, v{VQD+b}, v{VQD+8+b}" for b in range(6)]
    p += [f"v_lshl_add_u32 v{VQD+b}, v{VQD+b}, 4, s24" for b in range(6)]
    def q_dma(lst):
        l = []
        for i in lst:
            a, b = divmod(i, 6)
            l.append(([f"s_waitcnt vmcnt({OPT['win'] + (OPT['wins'] if i < n3 + OPT['qd'] else 0)})"] if (OPT["win"] and n2 <= i < n3 + OPT["qd"] + OPT["qe"]) else []) + [f"s_add_u32 m0, s{S_QL}, {QSL[a]*STAGE + b*1024}", f"s_movk_i32 s24, {a*6144}",
                      VM(("q", a), f"buffer_load_dwordx4 v{VQD+b}, s[{S_Q}:{S_Q+3}], s24 offen{NTQ} lds")])
        return l
    flat = lambda gs: [x for g in gs for x in g]
    n0 = OPT["q0"]; n1 = n0 + OPT["qa"]; n2 = n1 + OPT["qb"]; n3 = n2 + OPT["qc"]
    assert n3 <= 18
    QD = 128
    def kprep(q, s_, z_):
        return [f"v_lshlrev_b32 v{q}, 16, v{s_}", f"v_and_b32 v{q+1}, s{S_MASK}, v{s_}", f"v_lshlrev_b32 v{q+2}, 16, v{z_}", f"v_and_b32 v{q+3}, s{S_MASK}, v{z_}"]
    t0 = [f"s_mov_b32 s{S_MASK}, 0xffff0000", f"s_mov_b32 s{S_CS}, 0x{f32bits(CSCALE):08x}",
          "v_mul_u32_u24 v27, 24, v26", "v_sub_u32 v27, v25, v27",
          f"v_lshlrev_b32 v{V_KTAB}, 4, v27", f"v_add_u32 v{V_KTAB}, {TAB}, v{V_KTAB}",
          "v_mul_u32_u24 v36, 768, v26", f"v_add_u32 v36, v36, v{V_KTAB}",
          W("ksc")] + kprep(QD, 32, 34) + kprep(QD + 4, 33, 35)
    t0 += [f"v_mul_f32 v{QD+4*u+x}, s{S_CS}, v{QD+4*u+x}" for u in range(2) for x in range(2)]
    t0 += [f"v_mul_f32_e64 v{QD+4*u+2+x}, -v{QD+4*u+2+x}, v{QD+4*u+x}" for u in range(2) for x in range(2)]
    if OPT["koff"]: t0 += [f"v_add_f32 v{QD+4*u+2+x}, 0x{f32bits(OPT['koff'] * 0.1 * CSCALE):08x}, v{QD+4*u+2+x}" for u in range(2) for x in range(2)]
    t0 += [["s_mov_b32 exec_hi, 0xffff"] + [DS("t0w", f"ds_write_b128 v36, v[{QD+4*i}:{QD+4*i+3}] offset:{384*i}") for i in range(2)] + ["s_mov_b32 exec_hi, -1"]]
    t0 += [DS("t0r", f"ds_read_b128 v[{QD+4*u}:{QD+4*u+3}], v{V_KTAB} offset:{384*u}") for u in range(4)]
    setup0 = [f"v_mov_b32 v{V_T}, 0", f"v_mov_b32 v{V_T+1}, {RING}", DS("cnt", f"ds_write_b32 v{V_T+1}, v{V_T}")]
    setup = ["v_lshrrev_b32 v48, 1, v26", "v_lshlrev_b32 v48, 30, v48",
          "v_lshlrev_b32 v31, 4, v25", "v_mul_u32_u24 v30, 3072, v24", f"v_add_u32 v{V_DMA}, v30, v31",
          "v_lshl_add_u32 v49, v24, 2, v26", "v_mul_u32_u24 v49, 384, v49", "v_lshlrev_b32 v50, 1, v24", "v_xor_b32 v50, v27, v50",
          "v_lshl_add_u32 v49, v50, 4, v49", f"v_or_b32 v{V_KST}, v49, v48", f"v_xor_b32 v{V_KA}, 16, v{V_KST}",
          "v_lshrrev_b32 v49, 5, v25", "v_sub_u32 v49, 1, v49", "v_and_b32 v49, v49, v24", "v_lshlrev_b32 v49, 4, v49",
          f"v_xor_b32 v49, v49, v{V_DMA}", "v_add_u32 v49, 12288, v49", f"v_or_b32 v{V_VST}, v49, v48",
          f"s_mul_i32 s{S_KW}, s{S_QB}, {STAGE}", f"s_add_u32 s{S_KW2}, s{S_KW}, 6144", f"s_mov_b32 s{S_VW}, s{S_KW}",
          f"s_mul_i32 s{S_RET}, s{S_HEAD}, {WSHEAD}"]
    kv_or = [f"v_or_b32 v{V_KLD}, v{V_KLD}, v48", f"v_or_b32 v{V_VLD}, v{V_VLD}, v48"]
    p += setup0 + t0 + setup
    p[pv:] = sprinkle(p[pv:], [["s_mov_b32 exec_hi, 0xffff", x, "s_mov_b32 exec_hi, -1"] for x in vl[nv:]])
    if OPT["touch"]:
        p += ["s_mov_b32 s62, L_slow-L_pc", "s_bfe_u32 s24, s2, 0x20003", "s_add_u32 s24, s24, 1", "s_lshl_b32 s24, s24, 14", "v_lshlrev_b32 v15, 6, v0",
              VM("pf", "buffer_load_dword v15, v15, s[60:63], s24 offen")]
    p += vstamp("iss v") + kv_or + flat(q_dma(range(0, n0))) + vstamp("iss q0") + ["s_waitcnt lgkmcnt(0)"] + ["s_barrier"]
    p += srd(S_WS, 18, S_RET, HEADBYTES)
    p += srd(S_FLG, 18, 22, 32)
    p += [f"s_mov_b32 s{S_DBG}, s16", f"s_mov_b32 s{S_DBG+1}, s17", f"s_movk_i32 s{S_DBG+2}, 256", f"s_mov_b32 s{S_DBG+3}, s63", f"s_lshl_b32 s{S_HOFF}, s{S_HEAD}, 3"]
    p += [f"s_cmp_lg_u32 s{S_LEAD}, 0", "s_cbranch_scc1 L_notleader", "s_mov_b32 s24, 1"]
    for i in range(8):
        p += [f"s_lshr_b32 s{72+i}, s{72+i}, 8", f"s_min_u32 s{72+i}, s{72+i}, 31", f"s_bitset1_b32 s24, s{72+i}"]
    p += ["s_ff0_i32_b32 s24, s24", "s_lshl_b32 s24, s24, 8", f"v_mov_b32 v{V_POLL}, s24",
          "s_mov_b64 exec, 1", f"buffer_store_dword v{V_POLL}, off, s[{S_DBG}:{S_DBG+3}], s{S_HOFF} sc1", "s_mov_b64 exec, -1",
          "L_notleader:"]
    kc = []
    for h, buf in ((0, 64), (1, 80)):
        for jp in range(2):
            kc += [W(("k0a" if h == 0 else "k0b", jp))] + k_unit(h, buf, 64, jp, 0, QD + 8 * h) + k_unit(h, buf, 64, jp, 1, QD + 8 * h + 4)
    p += sprinkle(kc, q_dma(range(n0, n1))) + vstamp("kcv")
    p += [k_st(j, 64, "st0")[-1] for j in range(4)]
    p += ["s_mov_b32 exec_hi, 0xffff"] + [DS("own", f"ds_write_b128 v{V_KA if j & 1 else V_KST}, v[{64+4*j}:{64+4*j+3}] offset:{(j&1)*768+(j>>1)*6144}") for j in range(4)] + ["s_mov_b32 exec_hi, -1"]
    p += vstamp("kst")
    vc = []
    for u in range(4):
        q = QD + 4 * u
        vc += [f"s_lshl_b32 s57, s{64+u}, 16", f"s_and_b32 s58, s{64+u}, s{S_MASK}", f"v_mov_b32 v{q}, s57", f"v_mov_b32 v{q+1}, s58",
               f"s_lshl_b32 s57, s{68+u}, 16", f"s_and_b32 s58, s{68+u}, s{S_MASK}", f"v_mul_f32_e64 v{q+2}, -s57, v{q}", f"v_mul_f32_e64 v{q+3}, -s58, v{q+1}"]
    vc += [W(("v0a", 0))] + v_unit(96, 0, QD) + [W(("v0a", 1))] + v_unit(96, 1, QD + 4) + v_pack(0, 96, 96, V_INPLACE)
    vc += [W(("v0b", 0))] + v_unit(112, 0, QD + 8) + [W(("v0b", 1))] + v_unit(112, 1, QD + 12) + v_pack(1, 112, 96, V_INPLACE)
    p += sprinkle(vc, q_dma(range(n1, n2))) + vstamp("vcv")
    p += [x for e in range(4) for x in v_st(e, 96, "st0")]
    p += ["s_mov_b32 exec_hi, 0xffff"] + [DS("own", f"ds_write_b128 v{V_VST}, v[{96+4*e}:{96+4*e+3}] offset:{STAGE - 12288 + e*768}") for e in range(4)] + ["s_mov_b32 exec_hi, -1"]
    p += vstamp("vst")
    s2 = [f"s_lshl_b32 s{S_RET}, s{S_QB}, 2", f"v_lshl_add_u32 v{V_FLAG}, v0, 2, s{S_RET}", "v_cmp_lt_u32 vcc, 0, v0", "v_mov_b32 v30, 0x40000000",
          f"s_mov_b32 s{S_BUDGET}, 100000", f"v_cndmask_b32 v{V_FLAG}, v{V_FLAG}, v30, vcc"]
    s2 += [f"s_mul_i32 s{S_RET}, s{S_HEAD}, {HEADBYTES}"] + [srd(S_QK, 42, S_RET, HEADBYTES), srd(S_QV, 44, S_RET, HEADBYTES)]
    s2 += [f"s_and_b32 s{S_PK0}, s{S_TMP}, 63", f"s_mul_i32 s{S_PK0}, s{S_PK0}, {STAGE}", f"s_mov_b32 s{S_PV0}, s{S_PK0}"]
    s2 += [f"s_mul_i32 s{S_DMK}, s{S_WAVE}, 3072", f"s_add_u32 s{S_DMK}, s{S_DMK}, 12288", f"s_add_u32 s{S_DMV}, s{S_DMK}, {STAGE}",
          f"s_add_u32 s{S_RET}, s{S_QB}, 1", f"s_and_b32 s{S_RET}, s{S_RET}, 7", f"s_mul_i32 s{S_GOFFK}, s{S_RET}, {STAGE}", f"s_add_u32 s{S_GOFF}, s{S_GOFFK}, 12288",
          f"s_mov_b32 s{S_RK}, 0", f"s_mov_b32 s{S_RV}, {STAGE}"]
    s2 += ["v_and_b32 v26, 15, v25", "v_lshrrev_b32 v49, 4, v25", "v_bfe_u32 v28, v25, 1, 3",
           "v_xor_b32 v29, v49, v28", "v_mul_u32_u24 v30, 384, v26", f"v_lshl_add_u32 v{V_RDK[0]}, v29, 4, v30",
           f"v_xor_b32 v{V_RDK[1]}, 64, v{V_RDK[0]}"]
    s2 += [f"v_mul_u32_u24 v50, 3072, v49", f"v_add_u32 v50, {STAGE}, v50", "v_and_b32 v51, 1, v49", "v_lshl_add_u32 v51, v26, 1, v51",
           f"v_lshl_add_u32 v{V_RDV[0]}, v51, 4, v50", f"v_xor_b32 v{V_RDV[1]}, 16, v{V_RDV[0]}",
           f"v_lshl_add_u32 v{V_RDV[2]}, v26, 4, v50", f"v_add_u32 v{V_RDV[2]}, 512, v{V_RDV[2]}"]
    s2 += ["v_lshrrev_b32 v29, 1, v49", "v_xor_b32 v29, v29, v28", "v_lshl_add_u32 v31, v29, 4, v30",
           "v_and_b32 v29, 1, v49", "v_lshl_add_u32 v31, v29, 3, v31"]
    s2 += ([] if OPT["touch"] else ["v_lshlrev_b32 v15, 6, v0"]) + [f"v_add_u32 v0, s{S_QL}, v31"]
    s2 += [f"v_mov_b32 v{V_L[q]}, 0" for q in range(4)]
    qd = [[f"v_mov_b32 v{V_POLL}, 0"] + tag_load()] + q_dma(range(n2, n3))
    p += sprinkle(s2, qd) + vstamp("iss s2")
    pf2 = ["s_mov_b32 s62, L_slow-L_pc", "s_bfe_u32 s24, s2, 0x20003", "s_add_u32 s24, s24, 1", "s_lshl_b32 s24, s24, 14",
           VM("pf", "buffer_load_dword v15, v15, s[60:63], s24 offen")]
    TR = 80
    tl = [f"s_lshl_b32 s24, s{S_WAVE}, 4", f"s_add_u32 s24, s24, s{S_TMP}",
          f"s_and_b32 s58, s24, 63", f"s_add_u32 s24, s24, 8", "s_and_b32 s57, s24, 63", f"s_andn2_b32 s24, s{S_TMP}, 63",
          "s_or_b32 s58, s58, s24", "s_or_b32 s57, s57, s24",
          "v_mov_b32 v37, s58", "v_mov_b32 v38, s57", "v_cmp_lt_u32 vcc, 15, v25",
          "s_lshr_b32 s58, s58, 1", "s_lshr_b32 s57, s57, 1", "s_mulk_i32 s58, 384", "s_mulk_i32 s57, 384",
          "v_cndmask_b32 v37, v37, v38, vcc", "v_lshl_add_u32 v38, v25, 3, s58", "v_lshl_add_u32 v39, v25, 3, s57",
          "v_lshlrev_b32 v37, 6, v37", "v_lshl_add_u32 v37, v26, 2, v37", "s_mov_b32 exec_hi, 0xffff"]
    for x in range(2):
        tl += [VM("tab", f"global_load_dwordx2 v[{TR+4*x+2*i}:{TR+4*x+2*i+1}], v{38+x}, s[{46+2*i}:{47+2*i}]") for i in range(2)]
    tl += ["s_mov_b32 exec_hi, 0"] + [VM("tab", f"global_load_dword v{TR+8+i}, v37, s[{50+2*i}:{51+2*i}]") for i in range(2)] + ["s_mov_b32 exec_hi, -1"]
    tc = [W("tab")]
    for x in range(2):
        for i in range(2): tc += kprep(112 + 8 * x + 4 * i, TR + 4 * x + i, TR + 4 * x + 2 + i)
    tc += kprep(92, TR + 8, TR + 9)
    tc += [f"v_mul_f32 v{112+4*u+x}, s{S_CS}, v{112+4*u+x}" for u in range(4) for x in range(2)]
    tc += [f"v_mul_f32_e64 v{q+2+x}, -v{q+2+x}, v{q+x}" for q in (112, 116, 120, 124, 92) for x in range(2)]
    if OPT["koff"]: tc += [f"v_add_f32 v{q+2+x}, 0x{f32bits(OPT['koff'] * 0.1 * CSCALE):08x}, v{q+2+x}" for q in (112, 116, 120, 124) for x in range(2)]
    if OPT["voff"]: tc += [f"v_add_f32 v{94+x}, 0x{f32bits(OPT['voff'] * 0.1):08x}, v{94+x}" for x in range(2)]
    tc += [f"s_mul_i32 s57, s{S_WAVE}, {2*TS}", "v_add_u32 v36, s57, v36", f"s_add_u32 s57, s57, {TAB}", "v_lshrrev_b32 v37, 4, v25",
           f"v_mul_u32_u24 v37, {TS}, v37", "v_lshl_add_u32 v37, v26, 4, v37", "v_add_u32 v37, s57, v37",
           ]
    tc += [["s_mov_b32 exec_hi, 0xffff"] + [DS("tabw", f"ds_write_b128 v36, v[{112+8*x+4*i}:{115+8*x+4*i}] offset:{TS*x+384*i}") for x in range(2) for i in range(2)] +
           ["s_mov_b32 exec_hi, 0", DS("tabw", "ds_write_b128 v37, v[92:95] offset:1536"), "s_mov_b32 exec_hi, -1"],
           f"v_add_u32 v{V_KTAB}, {TS}, v{V_KTAB}",
           f"s_lshl_b32 s57, s{S_WAVE}, 6", f"s_add_u32 s57, s57, {TAB+TS+1536}", f"v_mov_b32 v{V_VTAB}, s57"]
    KF = 144
    tq = 48
    def q_read(qb):
        l = [f"v_xor_b32 v{V_T+kk}, {32*kk}, v0" for kk in range(1, 4)] + [W(("q", qb))] + vstamp(f"q{qb}")
        for s in range(6):
            for h in range(2):
                sp = s + 6 * h
                l.append(DS("qr", f"ds_read_b64 {Qf(qb,s,h)}, v{V_T+(sp&3) if sp&3 else 0} offset:{QSL[qb]*STAGE + (sp>>2)*128}"))
        return l
    def qk0(qb):
        l = ["s_waitcnt lgkmcnt(0)"]
        for f in sorted(range(12), key=lambda f: kfrag(f)[::-1]):
            s, tb = kfrag(f)
            d = vr(Sq(0, qb, tb), 4)
            l.append(f"{MF} {d}, v[{KF+4*f}:{KF+4*f+3}], {Qf(qb,s)}, {'0' if s == 0 else d}")
        return l
    def sm0(qb):
        a, b = Sq(0, qb, 0), Sq(0, qb, 1)
        l = [f"v_max3_f32 v{tq}, v{a}, v{a+1}, v{a+2}", f"v_max3_f32 v{tq}, v{tq}, v{a+3}, v{b}",
             f"v_max3_f32 v{tq}, v{tq}, v{b+1}, v{b+2}", f"v_max_f32 v{tq}, v{tq}, v{b+3}"] + xlane("v_max_f32", tq)
        l += [f"v_sub_f32 v{NEGM(qb)+i}, 0, v{tq}" for i in range(4)]
        rest = [f"v_sub_f32 v{r+i}, v{r+i}, v{tq}" for r in (a, b) for i in range(4)]
        rest += [f"v_exp_f32 v{r+i}, v{r+i}" for r in (a, b) for i in range(4)]
        rest += [f"v_add_f32 v{V_L[qb]}, v{V_L[qb]}, v{r+i}" for r in (a, b) for i in range(4)]
        rest += [f"v_cvt_pk_bf16_f32 v{a}, v{a}, v{a+1}", f"v_cvt_pk_bf16_f32 v{a+1}, v{a+2}, v{a+3}",
                 f"v_cvt_pk_bf16_f32 v{a+2}, v{b}, v{b+1}", f"v_cvt_pk_bf16_f32 v{a+3}, v{b+2}, v{b+3}"]
        return l, rest
    def step(qb, extra=()):
        l, rest = sm0(qb)
        return qk0(qb) + ["s_nop 7"] + sprinkle(l + rest, extra)
    assert not (OPT["rs"] and (OPT["stamp"] == 7 or not OPT["touch"]))
    sel_init = [f"v_mov_b32 v{SEL}, 0", f"v_mov_b32 v{SEL+1}, 0", "s_mov_b64 exec, 0x8421", f"v_mov_b32 v{SEL}, 0x3f803f80", f"v_mov_b32 v{SEL+1}, 0x3f803f80", "s_mov_b64 exec, -1"] * OPT["rs"]
    post = (["s_branch L_anchor", ".p2align 12", "L_anchor:"] + touch_slot(1, OPT["nt1"])) * OPT["touch"] + vstamp("pre tag") + [W("tag", "st0")] + vstamp("tag") + tag_check() + first_post() + sel_init + stamp("posted") + vstamp("posted")
    bar = q_read(0) + ["s_waitcnt lgkmcnt(0)", "s_barrier"] + stamp("barA") + vstamp("barA")
    kf = []
    for f in range(12):
        s, tb = kfrag(f)
        kf.append(DS("k0f", f"ds_read_b128 v[{KF+4*f}:{KF+4*f+3}], v{V_RDK[s&1]} offset:{tb*6144 + (s>>1)*128}"))
    n4 = n3 + OPT["qd"]
    assert n4 <= 18
    misc = [k_adv(), v_adv()]
    if OPT["pf2"]:
        misc += [f"s_mov_b32 s{S_DBG}, s60", f"s_mov_b32 s{S_DBG+1}, s61", f"s_mov_b32 s{S_DBG+2}, L_slow-L_pc",
              f"s_lshr_b32 s{S_TP}, s2, 3", f"s_mul_i32 s{S_HOFF}, s{S_TP}, 43", f"s_lshr_b32 s{S_HOFF}, s{S_HOFF}, 7",
              f"s_mul_i32 s{S_RET}, s{S_HOFF}, 3", f"s_sub_u32 s{S_TP}, s{S_TP}, s{S_RET}", f"s_lshl_b32 s{S_TP}, s{S_TP}, 10",
              f"s_mul_i32 s{S_HOFF}, s{S_HOFF}, 12288", f"s_add_u32 s{S_HOFF}, s{S_HOFF}, s{S_TP}"]
    n5 = min(18, n4 + OPT["qe"])
    flg = stamp("at poll") + vstamp("at poll") + [x.replace(f"s[{S_PT}:{S_PT+7}]", "s[72:79]") for x in smem_flags()]
    p += post + flat(q_dma(range(n3, n3 + 2))) + tl + bar + kf + step(0, q_dma(range(n3 + 2, n4))) + vstamp("qk0")
    dm = {(a, b): with_nop(dma_tile(a, b, True)) for a, b in (("k", 1), ("k", 2), ("k", 3), ("v", 1), ("v", 2), ("v", 3))}
    kraw = k_ld(0, BX, "ka") + k_ld(1, BY, "kb")
    p += flg + sprinkle(misc + tc, q_dma(range(n4, n5))) + vstamp("tc")
    p += poll_smem() + stamp("poll ok") + vstamp("poll ok")
    p += dm["k", 1] + q_read(1) + step(1, [dm["k", 2], dm["k", 3], dm["v", 1]] + [dm["v", 2], dm["v", 3]][:OPT["v23"]]) + vstamp("qk1")
    kstep = lambda d: [f"v_add_u32 v{r}, {d & 0xffffffff}, v{r}" for r in V_RDK]
    vstep = lambda d: [f"v_add_u32 v{r}, {d & 0xffffffff}, v{r}" for r in V_RDV]
    A, B = (0, 1), (2, 3)
    a4 = 1
    PS = Passes([dict(kind="q", t0=0, qbs=A, f0=12), dict(kind="q", t0=2, qbs=A, pre=kstep(2 * STAGE)),
                 dict(kind="p", t0=0, qbs=A, first=1),
                 dict(kind="q", t0=0, qbs=B, cz=1, f1=12, pre=kstep(-2 * STAGE)), dict(kind="p", t0=2, qbs=A, pre=vstep(2 * STAGE)),
                 dict(kind="q", t0=0, qbs=B, f0=12), dict(kind="q", t0=2, qbs=B, pre=kstep(2 * STAGE)),
                 dict(kind="p", t0=0, qbs=B, first=1, pre=vstep(-2 * STAGE)),
                 dict(kind="q", look=1, pre=kstep(2 * STAGE) + [f"s_mov_b32 s{S_RK}, {4*STAGE}"])],
                [V_FR + 4 * i for i in range(NFS)], "s")
    def split(l):
        g = []
        for x in l:
            if isinstance(x, VM) or not g or isinstance(g[-1][-1], VM) or len(g[-1]) >= 3: g.append([x])
            else: g[-1].append(x)
        return g
    lim = OPT["sl"]
    p += kstamp("wdk", 4) + [W(("dk", 0))] + vstamp("dk0") + ["s_waitcnt lgkmcnt(0)", "s_barrier"] + PS.prime(4) + kstamp("a1", 4)
    if OPT["stamp"] == 7: p += vstamp("phase A")
    v23 = sum([split(dma_tile("v", 2, True)), split(dma_tile("v", 3, True))][OPT["v23"]:], [])
    va = v_ld(0, BZ, "va")
    kq = OPT["kq"]
    kr = [[x] for x in kraw]
    vmq = q_dma(range(n5, 24 - kq)) + v23 * a4 + kr + q_dma(range(24 - kq, 24))
    vmq += [[CHK("BZ"), va[0]]] + [[x] for x in va[1:]] + v23 * (1 - a4) + ([] if OPT["touch"] else [pf2[:4], pf2[4:]])
    p += [SIG("BZ")]
    c, r, _ = PS.run(0, [], lim, bar=[("dk", 1)], vm=vmq[:5], barF=18); p += c + vstamp("A1") + kstamp("a2", 4)
    c, r, _ = PS.run(1, softmax_part(1, 0) + ["HOLD"] + softmax_part(2, 0), lim, bar=[("dv", 0)], vm=vmq[5:16], barF=18); p += c
    assert len(r) < 38
    p += vstamp("A2") + kstamp("a3", 4)
    kc_ = chain_k(); vc_ = chain_v(); c0 = OPT["c0"]; c1 = OPT["c1"]; c2 = OPT["c2"]; c3 = OPT["c3"]
    nA = OPT["nA"]
    c, r, _ = PS.run(2, r + softmax_part(3, 0), lim, vm=vmq[16:nA]); p += c + r + vstamp("A3") + kstamp("q2", 4)
    p += [tq_rd("ka0", TQ[0])] + q_read(2) + kstamp("t2", 4)
    p += touch_slot(2, OPT["nt2"]) * OPT["touch"] + vstamp("A done") + kstamp("q3", 4) + q_read(3) + ["s_waitcnt lgkmcnt(0)"] + kstamp("bar", 4) + ["s_barrier"]
    if OPT["stamp"] == 7:
        p += vstamp("loop start") + ["v_writelane_b32 v14, s98, 31", "s_add_u32 s40, s18, 0xfa00000", "s_addc_u32 s41, s19, 0", "s_mov_b32 s42, 1048576", "s_mov_b32 s43, 0x20000",
              "s_lshl_b32 s24, s2, 2", f"s_add_u32 s24, s24, s{S_WAVE}", "s_lshl_b32 s24, s24, 7", f"v_bfe_u32 v15, v{V_DMA}, 4, 6", "v_lshlrev_b32 v15, 2, v15", "s_mov_b64 exec, 0xffffffff",
              VM("stamp", "buffer_store_dword v14, v15, s[40:43], s24 offen"), "s_mov_b64 exec, -1"]
        open(sys.argv[1] + ".stamps", "w").write("\n".join(STAMPS))
    elif OPT["stamp"]:
        p += stamp("loop start") + ["s_memtime s[8:9]"]
    mx = []
    T2 = {2: V_T, 3: V_T + 2}
    def both(f): return [f(q) for q in B]
    a_ = lambda q: Sq(0, q, 0); b_ = lambda q: Sq(0, q, 1)
    mx += both(lambda q: f"v_max3_f32 v{T2[q]}, v{a_(q)}, v{a_(q)+1}, v{a_(q)+2}") + both(lambda q: f"v_max3_f32 v{T2[q]}, v{T2[q]}, v{a_(q)+3}, v{b_(q)}")
    mx += both(lambda q: f"v_max3_f32 v{T2[q]}, v{T2[q]}, v{b_(q)+1}, v{b_(q)+2}") + both(lambda q: f"v_max_f32 v{T2[q]}, v{T2[q]}, v{b_(q)+3}")
    for sw in ("v_permlane16_swap_b32", "v_permlane32_swap_b32"):
        mx += both(lambda q: f"v_mov_b32 v{T2[q]+1}, v{T2[q]}") + ["s_nop 0"] + both(lambda q: f"{sw} v{T2[q]}, v{T2[q]+1}") + ["s_nop 0"]
        mx += both(lambda q: f"v_max_f32 v{T2[q]}, v{T2[q]}, v{T2[q]+1}")
    mx += [f"v_sub_f32 v{NEGM(q)+i}, 0, v{T2[q]}" for q in B for i in range(4)]
    sub = lambda t: [f"v_add_f32 v{Sq(t,q,tb)+i}, v{Sq(t,q,tb)+i}, v{NEGM(q)}" for q in B for tb in range(2) for i in range(4)]
    p += kstamp("b1", 3) + kstamp("b0", 4)
    lim2 = OPT["sb2"]
    k45 = split(dma_tile("k", 4, True)) + split(dma_tile("k", 5, True))
    rest = vmq[nA:]
    c, r, e = PS.run(3, [], OPT["sb1"], bar=[("dv", 1)], vm=rest[:5], barF=6); p += c + kstamp("a4", 4)
    vm = rest[5:] + k45
    c, r, e = PS.run(4, mx + sub(0) + softmax_part(0, 1), OPT["sb1"], sec=cut(kc_, 0, NK), vm=vm[:12])
    assert len(r) <= 56
    p += c + kstamp("b1", 4)
    c, r, e = PS.run(5, r, OPT["sb1"], sec=e, vm=vm[12:]); p += c + r + e + kstamp("b2", 3) + kstamp("b2", 4)
    vb = v_ld(1, BY, "vb")
    st = [k_st(j, BX)[0] for j in range(4)]
    vm = [[CHK("Kdone"), st[0]], [], [st[1]], [], [st[2]], [], [st[3], SIG("BX")], [], [CHK("BY0"), vb[0]], [vb[1]], [CHK("BY1"), vb[2]], [vb[3]]]
    c, r, e = PS.run(6, softmax_part(1, 1) + ["HOLD"] + softmax_part(2, 1), lim2, vm=vm)
    assert len(r) <= 40
    p += c + kstamp("b3", 3) + kstamp("b3", 4)
    c, r, e = PS.run(7, r, lim2, bar=[("dk", 2), "kst"], sec=cut(vc_, 0, c3), vm=split(dma_tile("v", 4, True)) + [[], [], [], flag_post()], barF=18)
    p += c + r + e
    p += kstamp("p3", 4)
    if OPT["stamp"]: p += [f"s_mov_b32 s{S_LEAD}, 0"]
    p += [f"s_mov_b32 s{S_CNT}, 5"]
    return p

def gen_main():
    p = gen_prologue()
    K_ = lambda *j: tuple(("k", x) for x in j)
    V_ = lambda *j: tuple(("v", x) for x in j)
    G = lambda it, t, d, **kw: (kstamp(f"p{it}", 3) if it < 14 else []) + gen_iter(it, t, dma=d, name=f"p{it}", peel=True, **kw)
    ST = lambda w, g0=57: [(w, 0, g0), (w, 1, g0 + 8), (w, 2, g0 + 16), (w, 3, 85)]
    A4 = (0, 1, 2, 3)
    kc = SCHED[OPT["sch"]][0]
    SE = lambda w: [(w, 0, 1), (w, 1, 9), (w, 2, 17), (w, 3, 25)]
    SL = lambda w: [(w, 0, 65), (w, 1, 73), (w, 2, 85), (w, 3, 93)]
    assert OPT["c1"] >= NK
    vcut = SCHED[OPT["sch"]][1]
    p += G(3, [("cv", "v", OPT["c3"], 30, 0, 95)], [V_(5) + K_(6, 7) + (0, 76)])
    if OPT["a4"]:
        PS = Passes([dict(kind="p", t0=2, qbs=(2, 3)), dict(kind="q", look=1)], [V_FR + 4 * i for i in range(NFS)], "h", issued=D, t0kind="p")
        l = dma_tile("v", 6, True) + dma_tile("v", 7, True)
        vm = [l[0:1], l[1:2], l[2:3], l[3:4], l[4:8], l[8:9], l[9:10], l[10:11], l[11:12]]
        c, r, e = PS.run(0, rd_step("q") + softmax_part(4, 1, more=[(5, 0), (5, 1)]), OPT["sb2"], bar=[("dk", 3)], sec=cut(chain_v(), 30, 44), vm=vm + [l[12:]], barF=18)
        p += kstamp("p4", 3) + c + r + e
    else:
        p += G(4, [("cv", "v", 30, 56, 0, 95)], [V_(6, 7) + (0, 74)])
    pc = OPT["pq"]
    p += G(5, [("pollld", 0, 6), ("ld", "ka", A4, 8, 40), ("pollchk", pc), ("cv", "v", 44 if OPT["a4"] else 56, NV, 0, 95)], [K_(8, 9) + (pc + 6, 92)])
    p += G(6, [("post", "vst"), ("ld", "kb", A4, 32, 56), ("cv", "k", 0, 24, 30, 95)] + SE("vst"), [K_(10, 11) + (58, 92)])
    p += G(7, [("ld", "va", A4, 0, 30), ("cv", "k", 24, 56, 0, 95), ("pollld", 66, 72)], [K_(12, 13) + (32, 62)])
    p += G(8, [("cv", "k", 56, NK, 0, 95), ("pollchk", pc - 8), ("ld", "vb", (0, 1), 24, 40)], [V_(8, 9) + (pc - 2, 84)])
    if OPT["su"] == 1:
        p += G(9, [("post", "kst"), ("ld", "vb", (2, 3), 32, 40), ("cv", "v", 0, 24, 30, 95)] + SE("kst"), [V_(10, 11) + K_(14, 15) + (42, 94)])
        p += G(10, [("ld", "ka", A4, 0, 30), ("cv", "v", 24, 54, 0, 95), ("pollld", 66, 72)], [V_(12, 13) + (32, 62)])
        p += G(11, [("cv", "v", 54, NV, 0, 95), ("pollchk", pc - 8), ("ld", "kb", (0, 1), 28, 40)], [K_(16, 17) + (pc - 2, 84)])
    else:
        p += G(9, [("post", "kst"), ("ld", "vb", (2, 3), 32, 40), ("cv", "v", 0, 24, 30, 95)] + SE("kst"), [V_(10, 11) + (44, 92)])
        p += G(10, [("ld", "ka", A4, 76, 94), ("cv", "v", 24, 54, 0, 95), ("pollld", 68, 74)], [K_(14) + V_(12, 13) + (0, 64)])
        p += G(11, [("cv", "v", 54, NV, 0, 95), ("pollchk", pc - 8), ("ld", "kb", (0, 1), 30, 40)], [K_(15) + (0, 24), K_(16, 17) + (pc - 2, 92)])
    p += G(12, [("post", "vst"), ("ld", "kb", (2, 3), 32, 40), ("cv", "k", 0, 20, 30, 95)] + SE("vst"), [V_(14, 15) + (42, 76)])
    p += G(13, [("ld", "va", A4, 0, 30), ("cv", "k", 20, 48, 0, 95), ("pollld", 66, 72)], [K_(18, 19) + (32, 62)])
    p += G(14, [("cv", "k", 48, kc[5], 0, 94), ("pollchk", pc - 8), ("ld", "vb", (0, 1), 84, 93)], [V_(16, 17) + (pc - 2, 78)], endops=["s_nop 0", "s_branch L_join"])
    JOIN = 7
    p += [".p2align 6", "L_loop:"]
    pro_ = p
    bodyA = []
    for k in range(8):
        if k == JOIN: bodyA.append("L_join:"); jpos = len(bodyA)
        eo = [f"s_sub_u32 s{S_CNT}, s{S_CNT}, 1", f"s_cmp_lg_u32 s{S_CNT}, 0", "s_cbranch_scc1 L_loop"] if k == 7 else ()
        bodyA += kstamp(f"k{k}") + gen_iter(16 + k, steady(k), endops=eo, name=f"k{k}")
    mid = []
    for k in range(4): mid += kstamp(f"m{k}") + gen_iter(48 + k, steady(k, last=True), name=f"mid{k}")
    mid += [f"s_mov_b32 s{S_CNT}, 2", ".p2align 6", "L_loop2:"]
    bodyC = []
    for k in range(4):
        eo = [f"s_sub_u32 s{S_CNT}, s{S_CNT}, 1", f"s_cmp_lg_u32 s{S_CNT}, 0", "s_cbranch_scc1 L_loop2"] if k == 3 else ()
        t = {1: [("pollld", 2, 10)] + ([("pf", 60, 76)] if OPT["pf2"] else []), 2: [("pollchk0", OPT["pc"]), ("dmaw", OPT["pc"] + 7, 76)]}.get(k, [])
        bodyC += gen_iter(52 + k, t, name=f"C{k}", endops=eo)
    LE = (stamp("loop end") + ["s_memtime s[10:11]"]) if OPT["stamp"] not in (0, 7) else []
    if OPT["tail"] == 3:
        tailc = LE + kstamp("a0", 9) + gen_tail3() + ["L_fin:"]
    else:
        t60 = gen_iter(60, name="T60", extra=epi_addr())
        t61 = gen_iter(61, dma=[], name="T61", extra_late=[f"v_add_u32 v{RD2[i]}, {2*STAGE}, v{V_RDV[i]}" for i in range(3)])
        for x in t61:
            if isinstance(x, W): x.n = 0; x.tags = ()
        tailc = LE + kstamp("t60", 9) + t60 + kstamp("t61", 9)
        tailc += t61 + gen_tail() + ["L_fin:"]
    resolve(pro_ + bodyA[jpos:] + bodyA + bodyA + mid + bodyC + bodyC + tailc)
    P_ = Prog()
    P_.extend(fin(pro_))
    a0 = len(P_.ins); P_.extend(fin(bodyA)); a1 = len(P_.ins)
    P_.extend(fin(mid))
    c0_ = len(P_.ins); P_.extend(fin(bodyC)); c1 = len(P_.ins)
    P_.extend(fin(tailc))
    p = P_
    if OPT["stamp"] == 8:
        p("s_waitcnt vmcnt(0)")
        p.extend(stamp("end"))
        p("s_load_dwordx2 s[8:9], s[100:101], 64")
        p("s_waitcnt lgkmcnt(0)")
        p("s_mov_b32 s10, 256"); p("s_mov_b32 s11, 0x20000")
        p("s_mov_b64 exec, 1")
        nm = {n: SR(i) for i, n in enumerate(STAMPS)}
        vals = [("not", 98), ("", 98), ("", nm["loop start"]), ("", nm["loop end"]), ("", nm["end"]), ("not", nm["end"]), ("not", nm["loop start"]), ("", nm["posted"])]
        for i, (op, r) in enumerate(vals):
            if op: p(f"s_not_b32 s24, s{r}"); p(f"v_mov_b32 v{64+i}, s24")
            else: p(f"v_mov_b32 v{64+i}, s{r}")
            p(f"buffer_atomic_umax v{64+i}, off, s[8:11], 0 offset:{8*i+4}")
    elif OPT["stamp"] and OPT["stamp"] != 7:
        p("s_waitcnt vmcnt(0)")
        p.extend(stamp("end") + kstamp("drain", 9))
        p("s_memtime s[22:23]")
        p("s_waitcnt lgkmcnt(0)")
        p("s_sub_u32 s22, s22, s100")
        regs = [98] + [SR(i) for i in range(len(STAMPS))]
        p("s_sub_u32 s10, s10, s8")
        regs += [10] * (14 - len(regs)) + [22]
        regs = regs[:15] + [S_LEAD]
        for i, s in enumerate(regs): p(f"v_mov_b32 v{64+i}, s{s}")
        p("s_add_u32 s8, s18, 0xfa00000"); p("s_addc_u32 s9, s19, 0"); p("s_mov_b32 s10, 1048576"); p("s_mov_b32 s11, 0x20000")
        p("s_lshl_b32 s24, s2, 2"); p(f"s_add_u32 s24, s24, s{S_WAVE}"); p("s_lshl_b32 s24, s24, 6")
        p("v_mov_b32 v32, s24")
        p(f"v_cmp_eq_u32 vcc, 0, v{GA[0]}")
        p("s_and_saveexec_b64 s[20:21], vcc")
        for i in range(4):
            p(f"buffer_store_dwordx4 v[{64+4*i}:{67+4*i}], v32, s[8:11], 0 offen offset:{16*i}")
        open(sys.argv[1] + ".stamps", "w").write("\n".join(STAMPS))
    p("L_done:")
    p("s_endpgm")
    main_end0 = len(p.ins)
    for ps in POLLSITES + ["P"]: p.extend(poll_slow(ps))
    p.extend(tag_slow())
    main_end = len(p.ins)
    p.extend(gen_slow())
    slow_end = len(p.ins)
    ji = [i for i, x in enumerate(p.ins) if x.text == "L_join:"][0]
    lin = p.ins[:a0] + p.ins[ji:a1] + p.ins[a0:c1] + p.ins[c0_:main_end0]
    sl = [i for i, x in enumerate(p.ins) if x.text == "L_slowloop:"][0]
    ei = [i for i, x in enumerate(p.ins) if x.text == "L_fin:"][0]
    bi = [i for i, x in enumerate(p.ins) if x.text == "s_cbranch_scc1 L_slowloop"][0]
    probs = check_hazards(lin, "main") + check_hazards(p.ins[main_end:bi+1] + p.ins[sl:slow_end] + p.ins[ei:ei+60], "slow") + check_hazards(p.ins[main_end0:main_end], "aux")
    for x in probs: print(x, file=sys.stderr)
    return p

def kd(name, vgpr, sgpr, accum):
    return f""".amdhsa_kernel {name}
  .amdhsa_next_free_vgpr {vgpr}
  .amdhsa_next_free_sgpr {sgpr}
  .amdhsa_accum_offset {accum}
  .amdhsa_group_segment_fixed_size 0
  .amdhsa_kernarg_size 80
  .amdhsa_user_sgpr_count 2
  .amdhsa_user_sgpr_kernarg_segment_ptr 1
  .amdhsa_system_sgpr_workgroup_id_x 1
.end_amdhsa_kernel
"""
def wrap(body):
    out = HEADER
    out += f"; @launch grid=(256,1,1) block=(256,1,1) lds={LDS_BYTES}\n"
    out += '.amdgcn_target "amdgcn-amd-amdhsa--gfx950"\n.text\n'
    out += f".globl {NAME}_kernel\n.p2align 8\n.type {NAME}_kernel,@function\n" + body
    out += '.section .rodata,"a"\n.p2align 6\n' + kd(NAME + "_kernel", 512, 102, 256)
    return out
def add_touch(prog):
    import subprocess, tempfile, os
    d = tempfile.mkdtemp(); open(d + "/a.s", "w").write(wrap(prog.text()))
    subprocess.run(["clang", "-x", "assembler", "-target", "amdgcn-amd-amdhsa", "-mcpu=gfx950", "-c", d + "/a.s", "-o", d + "/a.o"], check=True)
    dis = subprocess.run(["llvm-objdump", "-d", d + "/a.o"], capture_output=True, text=True).stdout
    enc = [(l.split("//")[0].split()[0], 4 * len(l.split("//")[1].split(":")[1].split())) for l in dis.split("\n") if "//" in l and l.startswith("\t")]
    L = prog.ins; size = {}; j = 0
    for i, x in enumerate(L):
        if x.kind == "none": continue
        while enc[j][0].split("_e")[0] != x.op.split("_e")[0] and enc[j][0] in ("s_nop", "s_code_end"): j += 1
        assert enc[j][0].replace("_e32", "").replace("_e64", "") == x.op.replace("_e32", "").replace("_e64", ""), (enc[j], x.text)
        size[i] = enc[j][1]; j += 1
    a0 = [i for i, x in enumerate(L) if x.text == "L_anchor:"][0]
    end = [i for i, x in enumerate(L) if x.text == "L_done:"][0]
    addr = 0; page = 1; ins_at = []; cand = []; nm = 0
    for i in range(a0 + 1, end):
        x = L[i]
        if x.text.startswith(".p2align"):
            al = 1 << int(x.text.split()[1]); addr = (addr + al - 1) // al * al; continue
        if x.text.startswith("; ----"): nm = 0
        if x.kind == "none": continue
        if 4096 * page - 4 <= addr <= 4096 * page + 56:
            prev = L[i - 1]
            score = (2 if (x.kind == "mfma" and nm % 2 == 0) else 0) + (1 if x.kind == "mfma" else 0)
            if prev.op == "s_branch" and "L_t" not in prev.text: score = 9
            cand.append((score, -addr, i, addr))
        if addr + size[i] > 4096 * page + 56 and cand:
            sc, _, k, ad = max(cand); ins_at.append((k, page, sc == 9)); cand = []; page += 1
            addr += 4 if sc == 9 else 8
        if x.kind == "mfma": nm += 1
        addr += size[i]
    print(f"pages after anchor: {page}, bytes {addr}", file=sys.stderr)
    n1, n2 = OPT["nt1"], OPT["nt2"]
    use = ins_at[:n1 + n2]
    assert len(use) == n1 + n2
    stub = {k: (pg, bare) for k, pg, bare in use}
    slot = {f"L_tb1_{k}": use[n1 - 1 - k][1] for k in range(n1)}
    slot.update({f"L_tb2_{k}": use[n1 + k][1] for k in range(n2)})
    back = {pg: l for l, pg in slot.items()}
    out = Prog()
    for i, x in enumerate(L):
        if i in stub:
            pg, bare = stub[i]
            out.extend([f"L_pad{pg}:", f"s_branch {back[pg]}"] if bare else [f"s_branch L_skip{pg}", f"L_pad{pg}:", f"s_branch {back[pg]}", f"L_skip{pg}:"])
        if x.op == "s_branch" and x.text.split()[1] in slot: out(f"s_branch L_pad{slot[x.text.split()[1]]}")
        else: out.ins.append(x)
    return out
prog = gen_main()
if OPT["touch"]: prog = add_touch(prog)
open(sys.argv[1], "w").write(wrap(prog.text()))
```

```python
import sys, math
from asmlib import *

NAME = "standalone__kv_cache_quant_int4_int2_kv_with_per_channel_or_per_token_scales__prompt"
OPT = dict(stamp=0, prod=1, vmgap=4, sb=3, sa=3, pl=10, ahead=4, thr=64, tden=32, ab=0, pf2=1,
           q0=0, qa=3, qb=3, qc=4, qd=4, qe=2, sl=28, sb0=28, sb1=36, sb2=24, c0=20, c1=81, c2=81, c3=16, pq=53, touch=1, dpol=0, wt=4, wp=0, stag=0, strict=0, safe=1, a4=1, nA=26, rs=0, nt1=14, nt2=2, koff=0, voff=0, v23=0, kq=0, vqd=208, kst0=5, rot=1, win=8, nv=4, sch=5, sd=16, pc=29, plate=0, su=2, pa=58, pb=29, fin=1, wins=3, tail=3, td=16, tq=1, tw=1)
for a in sys.argv[2:]:
    k, v = a.split("="); assert k in OPT, k; OPT[k] = int(v)
NS = 6; D = 4
STAGE = 24576
HEADBYTES = 64 * STAGE
RING = NS * STAGE
TS = 1792
TAB = RING + 128
LDS_BYTES = TAB + 8 * TS
CSCALE = (192.0 ** -0.5) * math.log2(math.e)
HEADER = open("cdna_kernels/" + NAME + ".s.ref").read().split("; Override launch geometry")[0]
MF = "v_mfma_f32_16x16x32_bf16"
NG = 96

V_FV = 55; V_RDV = [1, 21, 22]; V_RDK = [2, 3]; V_DMA = 8; V_L = [4, 5, 6, 7]; SEL = 14
V_KLD = 9; V_KTAB = 10; V_KST = 11; V_VLD = 12; V_FLAG = 13
V_T = 16; NTP = 2
V_VST = 20; V_VTAB = 23
V_FR = 24; NFS = 6
TQ = [48, 56, 60]; V_VO = 52; BX = 224; BY = 240; BZ = 144
V_POLL = V_VO; V_KA = V_VO + 2
UNIT = [64, 80, 160, 176]; HI = [96, 112]
def Sq(t, qb, tb):
    if tb and (t == 3 or (t == 2 and qb >= 2)): return HI[t % 2] + 4 * (qb ^ 2)
    return (UNIT[t % 4] if tb == 0 else HI[t % 2]) + 4 * qb
def P(t, qb): return UNIT[t % 4] + 4 * qb
def NEGM(qb): return 128 + 4 * qb
def O(qb, db): return (qb * 12 + db) * 4
def Qf(qb, s, half=None):
    i = qb * 6 + s
    base, f = (192 + 4 * i, ar) if i < 16 else (192 + 4 * (i - 16), vr)
    return f(base, 4) if half is None else f(base + 2 * half, 2)
def FR(f): return vr(V_FR + 4 * (f % NFS), 4)

S_RDELTA = 3; S_WS = 4; S_Q = 8; S_OUT = 12; S_FLG = 20
S_WAVE = 25; S_DMK = 26; S_GOFF = 27; S_RK = 28; S_TMP = 29; S_RV = 30; S_CNT = 31; S_GOFFK = 32
S_PK0 = 33; S_PK1 = 34; S_PV0 = 35; S_PV1 = 36; S_KW = 37; S_CS = 38; S_RET = 39; S_KW2 = 80; S_VW = 81; S_QL = 82; S_LEAD = 83
S_PT = 48; S_DMV = 56; S_TK = 57; S_TV = 58; S_TP = 59
S_QK = 64; S_QV = 68; S_DBG = 88
S_NEED = 92; S_HOFF = 93; S_HEAD = 94; S_QB = 95; S_BUDGET = 96; S_MASK = 97
FLAG_OFF = 64 << 20
WSHEAD = HEADBYTES + 8 * STAGE
SC1 = [" sc1", "", " nt", " sc0 sc1", " sc1 nt", " sc0"][OPT["dpol"]]; NTKV = " nt"; NTQ = " nt"; STF = " sc1"; OF = " sc0 sc1"

STAMPS = []
def SR(i): return ([40, 42, 44, 46, 0, 72, 74, 76, 78, 84, 86, 16, 98, 100] if OPT['stamp'] in (3, 4, 6, 9) else [16, 40, 42, 44, 84, 86, 0])[i]
def kstamp(name, mode=6):
    if OPT["stamp"] != mode: return []
    i = len(STAMPS); STAMPS.append(name)
    return [f"s_memtime s[{SR(i)}:{SR(i)+1}]"]
def vstamp(name):
    if OPT["stamp"] != 7: return []
    i = len(STAMPS); STAMPS.append(name)
    return ["s_memrealtime s[100:101]", "s_waitcnt lgkmcnt(0)", f"v_writelane_b32 v14, s100, {i}"]
def stamp(name):
    if OPT["stamp"] not in (1, 8): return []
    i = len(STAMPS); STAMPS.append(name)
    return [f"s_memrealtime s[{SR(i)}:{SR(i)+1}]"]

class W:
    def __init__(self, *tags): self.tags = tags; self.n = None
ALL = "ALL"
class VM:
    def __init__(self, tag, text): self.tag = tag; self.text = text
class LG:
    def __init__(self, tag, soft=False): self.tag = tag; self.n = None; self.need = False; self.soft = soft
class DS:
    def __init__(self, tag, text): self.tag = tag; self.text = text
class SIG:
    def __init__(self, name): self.name = name
class CHK:
    def __init__(self, name): self.name = name

def softmax_part(t, half, qbs=None, more=()):
    flat = []; prev = None; late = []
    qbs = [(t, q) for q in (qbs or (2 * half, 2 * half + 1))] + list(more)
    for gp in range(4 * len(qbs)):
        t, qb = qbs[gp // 4]; pi = gp % 4
        t0 = V_T + 2 * (gp % NTP); t1 = t0 + 1
        src = Sq(t, qb, pi >> 1) + 2 * (pi & 1)
        E = [f"v_exp_f32 v{t0}, v{src}", f"v_exp_f32 v{t1}, v{src+1}"]
        A = [f"v_add_f32 v{V_L[qb]}, v{V_L[qb]}, v{t0}", f"v_add_f32 v{V_L[qb]}, v{V_L[qb]}, v{t1}"]
        C = [f"v_cvt_pk_bf16_f32 v{P(t,qb)+pi}, v{t0}, v{t1}"]
        if OPT["rs"]:
            A = []
            if late: C = C + [late.pop()]
            if pi & 1: late.append(f"v_mfma_f32_4x4x4_16b_bf16 v[{V_L[0]}:{V_L[3]}], v[{SEL}:{SEL+1}], v[{P(t,qb)+pi-1}:{P(t,qb)+pi}], v[{V_L[0]}:{V_L[3]}] cbsz:4 abid:{qb}")
        if OPT["ab"] == 1: A = []
        if OPT["ab"] == 2: A = [f"v_pk_add_f32 v[6:7], v[6:7], v[{t0}:{t1}]"]
        if OPT["ab"] == 3: A = []; C = C + [f"v_dot2_f32_bf16 v{V_L[qb]}, v{P(t,qb)+pi}, v14, v{V_L[qb]}"]
        if OPT["ab"] == 4: A = []; C = C + [f"v_dot2c_f32_bf16 v{V_L[qb]}, v{P(t,qb)+pi}, v14"]
        flat += E if prev is None else [E[0]] + prev[0] + [E[1]] + prev[1]
        prev = (A, C)
    return flat + prev[0] + prev[1] + late

def kfrag(g):
    return 2 * (g >> 2) + (g & 1), (g >> 1) & 1
def vfrag(db):
    return (db >> 2, (db & 3) * 768)
def frag_read(kind, f, regs=None, tag=None):
    if kind == "q":
        s, tb = kfrag(f % 12)
        return DS(tag or ("f", kind, f), f"ds_read_b128 {FR(f)}, v{V_RDK[s&1]} offset:{(f//12)*12288 + tb*6144 + (s>>1)*128}")
    a, off = vfrag(f >> 1)
    return DS(tag or ("f", kind, f), f"ds_read_b128 {FR(f)}, v{(regs or V_RDV)[a]} offset:{(f&1)*12288 + off}")

def dma_tile(part, pos, peel=False):
    dm, go, tmp = (S_DMK, S_GOFFK, S_TK) if part == "k" else (S_DMV, S_GOFF, S_TV)
    l = [f"s_mov_b32 m0, s{dm}"]
    for j in range(3):
        l.append(VM(("d" + part, (pos >> 1) % 4), f"buffer_load_dwordx4 v{V_DMA}, s[{S_WS}:{S_WS+3}], s{go} offen offset:{j*1024}{SC1} lds"))
    if peel and pos < 7:
        l += [f"s_add_u32 s{go}, s{go}, {STAGE}", f"s_sub_u32 s{tmp}, s{go}, {8*STAGE}", f"s_min_u32 s{go}, s{go}, s{tmp}"]
    elif peel and pos == 7:
        l += [f"s_mov_b32 s{go}, {8*STAGE + (0 if part == 'k' else 12288)}"]
    else:
        l += [f"s_add_u32 s{go}, s{go}, {STAGE}"]
    if pos % 2 == 0: l += [f"s_add_u32 s{dm}, s{dm}, 12288"]
    else: l += [f"s_add_u32 s{dm}, s{dm}, {2*STAGE - 12288}", f"s_sub_u32 s{tmp}, s{dm}, {RING}", f"s_min_u32 s{dm}, s{dm}, s{tmp}"]
    return l
def with_nop(l):
    out = []
    real = [i for i, x in enumerate(l) if not isinstance(x, (SIG, CHK))]
    nxt = {a: b for a, b in zip(real, real[1:])}
    for i, x in enumerate(l):
        out.append(x)
        if isinstance(x, str) and " m0," in x and i in nxt and isinstance(l[nxt[i]], VM): out.append("s_nop 0")
    return out
def rd_step(kind):
    cur, regs = (S_RK, V_RDK) if kind == "q" else (S_RV, V_RDV)
    return [f"s_add_u32 s{S_TMP}, s{cur}, {2*STAGE}", f"s_sub_u32 s{S_RDELTA}, s{S_TMP}, {RING}",
            f"s_min_u32 s{S_TMP}, s{S_TMP}, s{S_RDELTA}", f"s_sub_u32 s{S_RDELTA}, s{S_TMP}, s{cur}", f"s_mov_b32 s{cur}, s{S_TMP}"] + \
           [f"v_add_u32 v{r}, s{S_RDELTA}, v{r}" for r in regs]

def k_ld(h, buf, tag, js=range(4)):
    return [VM((tag, j >> 1), f"buffer_load_dwordx4 v[{buf+4*j}:{buf+4*j+3}], v{V_KLD}, s[{S_QK}:{S_QK+3}], s{S_PK0 if j < 2 else S_PK1} offen offset:{(j&1)*1536+384*h}{NTKV}")
            for j in js]
def v_ld(h, buf, tag, js=range(4)):
    return [VM((tag, r >> 1), f"buffer_load_dwordx4 v[{buf+4*r}:{buf+4*r+3}], v{V_VLD}, s[{S_QV}:{S_QV+3}], s{S_PV0 if h == 0 else S_PV1} offen offset:{r*768}{NTKV}")
            for r in js]
def k_unit(h, buf, out, jp, i, q):
    ab = [(buf + 4 * j + 2 * i, buf + 4 * j + 2 * i + 1) for j in (2 * jp, 2 * jp + 1)]
    return [f"v_cvt_f32_i32 v{r}, v{r}" for a, b in ab for r in (a, b)] + \
           [f"v_fma_f32 v{r}, v{r}, v{q+x}, v{q+2+x}" for a, b in ab for x, r in enumerate((a, b))] + \
           [f"v_cvt_pk_bf16_f32 v{out+4*j+2*h+i}, v{a}, v{b}" for j, (a, b) in zip((2 * jp, 2 * jp + 1), ab)]
def v_unit(buf, i, q):
    l = []
    for e0 in (0, 2):
        ab = [(buf + 8 * i + e, buf + 8 * i + 4 + e) for e in (e0, e0 + 1)]
        l += [f"v_cvt_f32_i32 v{r}, v{r}" for a, b in ab for r in (a, b)]
        l += [f"v_fma_f32 v{r}, v{r}, v{q+x}, v{q+2+x}" for a, b in ab for x, r in enumerate((a, b))]
    return l
def v_pack(h, buf, out, lst):
    return [f"v_cvt_pk_bf16_f32 v{out+4*e+2*h+i}, v{buf+8*i+e}, v{buf+8*i+4+e}" for e, i in lst]
V_INPLACE = [(0, 0), (1, 0), (0, 1), (1, 1), (2, 0), (2, 1), (3, 0), (3, 1)]
def tq_rd(name, q):
    if name[0] == "k": va, off = V_KTAB, "ab".index(name[1]) * 768 + int(name[2]) * 384
    else: va, off = V_VTAB, ("ab".index(name[1]) * 2 + int(name[2])) * 16
    return DS(("tq", name), f"ds_read_b128 v[{q}:{q+3}], v{va} offset:{off}")
def ins(l, i, x): return l[:i] + x + l[i:]
def chain_k():
    T0, T1, T2 = TQ
    c = [tq_rd("ka1", T1), W(("ka", 0)), LG(("tq", "ka0"), True)] + ins(k_unit(0, BX, BX, 0, 0, T0), 3, [tq_rd("kb0", T2)])
    c += [LG(("tq", "ka1"), True)] + k_unit(0, BX, BX, 0, 1, T1) + [W(("ka", 1))] + k_unit(0, BX, BX, 1, 0, T0) + k_unit(0, BX, BX, 1, 1, T1)
    c += [tq_rd("kb1", T0), W(("kb", 0)), LG(("tq", "kb0"), True)] + ins(k_unit(1, BY, BX, 0, 0, T2), 3, [tq_rd("va0", T1), f"v_add_u32 v{V_KTAB}, {TS}, v{V_KTAB}"])
    c += [LG(("tq", "kb1"), True)] + k_unit(1, BY, BX, 0, 1, T0) + [SIG("BY0"), W(("kb", 1))] + k_unit(1, BY, BX, 1, 0, T2) + k_unit(1, BY, BX, 1, 1, T0)
    return c + [SIG("BY1"), SIG("Kdone")]
def chain_v(last=False):
    T0, T1, T2 = TQ
    c = [tq_rd("va1", T2), W(("va", 0)), LG(("tq", "va0"), True)] + ins(v_unit(BZ, 0, T1), 3, [tq_rd("vb0", T0)])
    c += [tq_rd("vb1", T1), W(("va", 1)), LG(("tq", "va1"), True)] + ins(v_unit(BZ, 1, T2), 3, [f"v_add_u32 v{V_VTAB}, {TS}, v{V_VTAB}"]) + v_pack(0, BZ, BZ, V_INPLACE)
    c += [W(("vb", 0)), LG(("tq", "vb0"), True)] + v_unit(BY, 0, T0) + ([] if last else [tq_rd("ka0", T0)]) + v_pack(1, BY, BZ, [(e, 0) for e in range(4)]) + [SIG("BY0")]
    c += [W(("vb", 1)), LG(("tq", "vb1"), True)] + v_unit(BY, 1, T1) + v_pack(1, BY, BZ, [(e, 1) for e in range(4)])
    return c + [SIG("BY1"), SIG("Vdone")]
def cut(c, n0, n1):
    out = []; n = 0; pend = []
    for x in c:
        if isinstance(x, str) and x.startswith("v_"):
            if n0 <= n < n1: out += pend + [x]
            pend = []; n += 1
        elif isinstance(x, SIG):
            if n0 <= n - 1 < n1: out.append(x)
        else: pend.append(x)
    assert not pend
    return out
def k_st(j, out, tag="kst"):
    return [VM(tag, f"buffer_store_dwordx4 v[{out+4*j}:{out+4*j+3}], v{V_KA if j & 1 else V_KST}, s[{S_WS}:{S_WS+3}], s{S_KW if j < 2 else S_KW2} offen offset:{(j&1)*768}{STF}")]
def v_st(e, out, tag="vst"):
    return [VM(tag, f"buffer_store_dwordx4 v[{out+4*e}:{out+4*e+3}], v{V_VST}, s[{S_WS}:{S_WS+3}], s{S_VW} offen offset:{e*768}{STF}")]
def adv(r0, r1, w):
    return [f"s_add_u32 s{r0}, s{r0}, {8*STAGE}", f"s_sub_u32 s{r1}, s{r0}, {HEADBYTES}", f"s_min_u32 s{r0}, s{r0}, s{r1}", f"s_add_u32 s{r1}, s{r0}, 3072"] + \
           [f"s_add_u32 s{x}, s{x}, {8*STAGE}" for x in w]
def k_adv(): return adv(S_PK0, S_PK1, (S_KW, S_KW2))
def v_adv(): return adv(S_PV0, S_PV1, (S_VW,))
HT = {"ka": (k_ld, 0, BX), "kb": (k_ld, 1, BY), "va": (v_ld, 0, BZ), "vb": (v_ld, 1, BY)}
def flag_post():
    return [f"v_add_u32 v{V_FV}, 1, v{V_FV}",
            VM("flag", f"buffer_store_dword v{V_FV}, v{V_FLAG}, s[{S_FLG}:{S_FLG+3}], 0 offen sc1")]
def poll_addr():
    return [f"v_bfe_u32 v{V_POLL+1}, v{V_DMA}, 4, 6", f"v_lshlrev_b32 v{V_POLL+1}, 2, v{V_POLL+1}"]
def poll_load():
    return poll_addr() + [VM("poll", f"buffer_load_dword v{V_POLL}, v{V_POLL+1}, s[{S_FLG}:{S_FLG+3}], 0 offen sc1")]
def poll_test():
    return [f"v_subrev_u32 v{V_POLL}, s{S_NEED}, v{V_POLL}", f"v_cmp_lt_u32 vcc, 15, v{V_POLL}", "s_nop 0", f"s_and_b32 s{S_TP}, vcc_lo, 0xff"]
def smem_flags():
    return [f"s_buffer_load_dwordx8 s[{S_PT}:{S_PT+7}], s[{S_FLG}:{S_FLG+3}], 0 glc"]
def smem_test():
    l = smem_flags() + ["s_waitcnt lgkmcnt(0)"]
    for i in range(8): l.append(f"s_sub_u32 s{S_PT+i}, s{S_PT+i}, s{S_NEED}")
    for i in range(1, 8): l.append(f"s_max_u32 s{S_PT}, s{S_PT}, s{S_PT+i}")
    return l + [f"s_cmp_lt_u32 s{S_PT}, 16"]
def poll_slow(site):
    l = [f"L_pollslow{site}:"]
    if OPT["stamp"] and site != "P": l += [f"s_add_u32 s{S_LEAD}, s{S_LEAD}, {1 << (3 * site)}"]
    if site != "P":
        l += [f"s_mov_b32 s{S_TP}, 200", f"L_pollsm{site}:"] + smem_test() + [f"s_cbranch_scc1 L_pollok{site}",
              f"s_sub_u32 s{S_TP}, s{S_TP}, 1", f"s_cbranch_scc1 L_pollvec{site}", "s_sleep 1", f"s_branch L_pollsm{site}"]
    l += [f"L_pollvec{site}:",
            f"s_sub_u32 s{S_BUDGET}, s{S_BUDGET}, 1",
            f"s_cbranch_scc1 L_pollgiveup{site}",
            "s_sleep 2",
            f"buffer_load_dword v{V_POLL}, v{V_POLL+1}, s[{S_FLG}:{S_FLG+3}], 0 offen sc1",
            "s_waitcnt vmcnt(0)"] + poll_test() + [
            f"s_cbranch_scc1 L_pollvec{site}",
            f"s_branch L_pollok{site}",
            f"L_pollgiveup{site}:",
            f"s_mov_b32 s{S_BUDGET}, 0",
            f"s_branch L_pollok{site}"]
    return l
def tag_load():
    return [VM("tag", f"buffer_load_dword v{V_POLL}, off, s[{S_DBG}:{S_DBG+3}], s{S_HOFF} sc1")]
def tag_check():
    return [f"v_readfirstlane_b32 s{S_NEED}, v{V_POLL}", f"s_mov_b32 s{S_RET}, 100",
            "L_tagretry:", f"s_cmp_lg_u32 s{S_NEED}, 0", "s_cbranch_scc1 L_tagok",
            f"s_sub_u32 s{S_RET}, s{S_RET}, 1", "s_cbranch_scc1 L_tagslow", "s_sleep 8",
            f"s_buffer_load_dword s{S_NEED}, s[{S_DBG}:{S_DBG+3}], s{S_HOFF} glc", "s_waitcnt lgkmcnt(0)", "s_branch L_tagretry",
            "L_tagok:", f"s_add_u32 s{S_NEED}, s{S_NEED}, 1", f"v_mov_b32 v{V_FV}, s{S_NEED}"]
def first_post():
    return ["s_mov_b64 exec, 1", f"v_mov_b32 v{V_T}, 1", f"v_mov_b32 v{V_T+1}, {RING}",
            f"ds_add_rtn_u32 v{V_T}, v{V_T+1}, v{V_T}", "s_waitcnt lgkmcnt(0)",
            f"v_readfirstlane_b32 s24, v{V_T}", "s_nop 0", "s_cmp_lg_u32 s24, 3", "s_cbranch_scc1 L_nopost",
            f"s_lshl_b32 s{S_RET}, s{S_QB}, 2",
            f"buffer_store_dword v{V_FV}, off, s[{S_FLG}:{S_FLG+3}], s{S_RET} sc1",
            "L_nopost:", "s_mov_b64 exec, -1"]
def poll_smem():
    l = poll_addr() + [f"s_mov_b32 s{S_RET}, 200", "s_waitcnt lgkmcnt(0)"]
    l += [f"s_sub_u32 s{72+i}, s{72+i}, s{S_NEED}" for i in range(8)] + [f"s_max_u32 s72, s72, s{72+i}" for i in range(1, 8)]
    l += ["s_cmp_lt_u32 s72, 16", "s_cbranch_scc1 L_pollokP", "L_pollretry:"] + smem_test()
    l += ["s_cbranch_scc1 L_pollokP",
          f"s_sub_u32 s{S_RET}, s{S_RET}, 1", "s_cbranch_scc1 L_pollslowP", "s_sleep 1", "s_branch L_pollretry",
          "L_pollokP:", f"s_add_u32 s{S_NEED}, s{S_NEED}, 1"]
    return l
def tag_slow():
    return ["L_tagslow:",
            f"s_sub_u32 s{S_BUDGET}, s{S_BUDGET}, 1",
            "s_cbranch_scc1 L_taggiveup",
            "s_sleep 2",
            f"buffer_load_dword v{V_POLL}, off, s[{S_DBG}:{S_DBG+3}], s{S_HOFF} sc1",
            "s_waitcnt vmcnt(0)",
            f"v_readfirstlane_b32 s{S_NEED}, v{V_POLL}", "s_nop 0", f"s_cmp_eq_u32 s{S_NEED}, 0", "s_cbranch_scc1 L_tagslow",
            "s_branch L_tagok",
            "L_taggiveup:",
            f"s_mov_b32 s{S_BUDGET}, 0",
            "s_branch L_tagok"]

def text_of(x):
    if isinstance(x, (W, LG)): return "s_waitcnt"
    if isinstance(x, (VM, DS)): return x.text
    if isinstance(x, (SIG, CHK)): return ""
    return x
def kind_of(x):
    if isinstance(x, (SIG, CHK)) or (isinstance(x, LG) and x.soft): return "label"
    t = text_of(x)
    if t.endswith(":"): return "label"
    if t.startswith("v_mfma_f32_4x4x4"): return "smf"
    if t.startswith("v_"): return "valu"
    if t.startswith("ds_"): return "ds"
    if t.startswith("buffer_store"): return "store"
    if t.startswith("buffer_"): return "load"
    return "salu"
def cost_of(x):
    k = kind_of(x)
    if k == "label": return 0
    if k == "smf": return 4
    t = text_of(x)
    if k == "store": return 20 if "x4" in t else (12 if "x2" in t else 8)
    if k == "load": return 8
    if t.startswith("ds_write_b128"): return 12
    if t.startswith("v_exp"): return 8
    if t.startswith("s_nop"): return 4 * (int(t.split()[1]) + 1)
    if t.startswith("s_cbranch") or t.startswith("s_branch"): return 12
    if t.startswith("s_barrier"): return 8
    return 4
def gap_time(ops):
    t = 4; prev = None
    for o in ops:
        k = kind_of(o)
        if k in ("label", "smf"): continue
        if k == "salu": t += cost_of(o)
        else: t = max(t, 8) + cost_of(o) + (8 if (k != "valu" and prev == "valu") else 0)
        prev = k
    return t

class Stream:
    def __init__(self, ops, first, last, maxper=99):
        self.ops = list(ops); self.first = first; self.last = last; self.maxper = maxper
        self.total = sum(cost_of(o) for o in self.ops); self.done = 0; self.i = 0; self.lastg = -9

def pack(A, B, C, T, streams, novm=(), nosalu=(), ng=NG):
    out = []; over = 0; lastvm = -99
    pend = {o.name for st in streams for o in st.ops if isinstance(o, SIG)} | {o.name for l in B for o in l if isinstance(o, SIG)}
    placed = set()
    for g in range(ng):
        pend -= placed
        placed |= {o.name for o in B[g] if isinstance(o, SIG)}
        a, b, c, tl = list(A[g]), list(B[g]), list(C[g]), list(T[g])
        cnt = {}; inC = set(); blocked = set(); tm = []; stop = set()
        while True:
            best = None; bl = None; bsec = None
            for st in streams:
                if st.i >= len(st.ops) or g < st.first: continue
                force = g >= st.last
                o = st.ops[st.i]; k = kind_of(o); cst = cost_of(o)
                if id(st) in stop and not force: continue
                if k == "smf":
                    near = st.i == len(st.ops) - 1 and (st.lastg == g or (st.lastg == g - 1 and not (a or b or c)))
                    if force or (g % 2 == 1 and not tm and g != GBAR and not near):
                        best = st; bsec = "m"; bl = (True, True, 1e9); break
                    continue
                if isinstance(o, CHK) and o.name in pend:
                    assert not force, o.name
                    continue
                if k == "label":
                    if isinstance(o, SIG): placed.add(o.name)
                    best = st; bsec = "c" if (id(st) in inC or isinstance(o, SIG)) else "b"; bl = (True, True, 1e9); break
                if (cnt.get(id(st), 0) >= st.maxper or id(st) in blocked) and not force: continue
                if k == "salu" and g in nosalu:
                    assert not force
                    continue
                if k in ("load", "store") and (g in novm or g - lastvm < OPT["vmgap"]) and not force: continue
                if k == "ds" and any(kind_of(x) in ("ds", "load", "store") for x in b) and not force: continue
                if k in ("load", "store", "ds"):
                    sec = "b" if id(st) not in inC and id(st) not in blocked else "c"
                    if sec == "c" and not force: continue
                elif k == "salu" and not a and cnt.get(id(st), 0) == 0 and not any(x is not None for x in b if isinstance(x, (LG, CHK))):
                    sec = "a"
                else: sec = "c"
                tgt = st.total * (g - st.first + 1) / (st.last - st.first + 1)
                lag = tgt - st.done
                if not force:
                    if lag < cst / 2 - OPT["ahead"] and cst: continue
                    trial = (a + [o] if sec == "a" else a) + (b + [o] if sec == "b" else b) + (c + [o] if sec == "c" else c) + tl
                    if gap_time(trial) > 16:
                        if not (lag > 24 and gap_time(trial) <= 20): continue
                        if g % 2 == 0: continue
                key = (force, k in ("load", "store"), lag / max(1, (st.last - g + 1)) ** 0.5)
                if best is None or key > bl: best = st; bl = key; bsec = sec
            if best is None: break
            o = best.ops[best.i]
            if id(best) in stop: bsec = "m"
            {"a": a, "b": b, "c": c, "m": tm}[bsec].append(o)
            if bsec == "m": stop.add(id(best))
            if bsec == "c": inC.add(id(best))
            if kind_of(o) != "label":
                if " m0," in text_of(o): blocked.add(id(best))
                if kind_of(o) in ("load", "store"): lastvm = g
                cnt[id(best)] = cnt.get(id(best), 0) + 1
            best.i += 1; best.done += cost_of(o); best.lastg = g
        ops = a + b + c + tm + tl
        tt = gap_time(ops)
        if tt > 16: over += tt - 16
        out.append(ops)
    for st in streams: assert st.i == len(st.ops), [text_of(o) for o in st.ops[st.i:]]
    return out, over

NK = 81; NV = 81
SCHED = {
    0: ((0, 6, 23, 40, 57, 72, NK), (0, 12, 40, 66, NV)),
    1: ((0, 0, 19, 38, 57, 76, NK), (0, 6, 37, 69, NV)),
    2: ((0, 0, 20, 40, 60, 80, NK), (0, 6, 38, 70, NV)),
    3: ((0, 0, 20, 40, 61, NK, NK), (0, 8, 38, 70, NV)),
    4: ((0, 9, 27, 45, 63, NK, NK), (0, 22, 52, NV, NV)),
    5: ((0, 14, 31, 48, 65, NK, NK), (0, 25, 53, NV, NV)),
}
def steady(k, last=False):
    s0 = OPT["kst0"]; sd = OPT["sd"]; kc, vc = SCHED[OPT["sch"]]
    gs = [s0, s0 + sd, s0 + 2 * sd, s0 + 3 * sd]
    gs = [g + 4 if GBAR - 2 <= g <= GBAR + 2 else g for g in gs]
    st = lambda w: [(w, j, g) for j, g in enumerate(gs)] + [("dmaw", 0, s0 - OPT["sb"] - 1) if s0 > 30 else ("dmaw", 10, 92)]
    pc = OPT["pc"]
    if OPT["plate"]:
        pl2, pl5 = [("pollld", 92, 94)], [("pollld", 84, 94)]
    else:
        pl2, pl5 = [("pollld", 0, 8)], [("pollld", 2, 10)]
    k0s = kc[5] if OPT["sch"] == 3 else None
    t = {
        0: [("post", "kst"), ("cv", "v", vc[1], vc[2], 0, 95), ("ld", "vb", (2, 3), 0, 14), ("ld", "ka", (0, 1, 2, 3), 16, 50), ("dmaw", 20, 74)],
        1: [("cv", "v", vc[2], vc[3], 0, 95), ("ld", "kb", (0, 1), 76, 94), ("dmaw", 0, 72)],
        2: [("cv", "v", vc[3], NV, 0, s0 - 3), ("cv", "k", kc[0], kc[1], s0 + 6 if vc[3] < NV else 0, 95)] + pl2 + st("vst"),
        3: [("post", "vst"), ("pollchk", pc), ("ld", "kb", (2, 3), 0, 20), ("cv", "k", kc[1], kc[2], 0, 95), ("dmaw", pc + 7, 76)],
        4: [("cv", "k", kc[2], kc[3], 0, 95), ("ld", "va", (0, 1, 2, 3), 0, 44)],
        5: [("cv", "k", kc[3], kc[4], 0, 95)] + pl5 + ([("pf", 60, 76)] if OPT["pf2"] else []),
        6: [("cv", "k", kc[4], kc[5], 0, 95), ("pollchk", pc), ("ld", "vb", (0, 1), 80, 94), ("dmaw", pc + 7, 76)],
        7: [("cv", "k", kc[5], kc[6], 0, s0 - 3), ("cv", "v", vc[0], vc[1], s0 + 6 if kc[5] < NK else 0, 94)] + st("kst"),
    }[k]
    t = [x for x in t if not (x[0] == "cv" and x[2] >= x[3])]
    if last:
        t = [x for x in t if not ((x[0] == "cv" and x[1] == "k") or (x[0] == "ld" and x[1] != "vb") or (x[0] == "ld" and k > 0))]
        t = [("cv", "vl") + x[2:] if x[:2] == ("cv", "v") else x for x in t]
    return t

GBAR = 4 * (24 - D) - 1
POLLSITES = []
def qk_mfma(t0, g):
    qb = (g >> 1) & 3
    F = 2 * (g >> 3) + (g & 1)
    t = t0 + F // 12; s, tb = kfrag(F % 12)
    d = vr(Sq(t, qb, tb), 4)
    c = vr(NEGM(qb), 4) if (s < 2 and g % 2 == 0) else d
    return f"{MF} {d}, {FR(F)}, {Qf(qb,s)}, {c}"
def pv_mfma(t0, db, qb, w, first=False):
    d = ar(O(qb, db), 4)
    return f"{MF} {d}, {vr(P(t0+w,qb),4)}, {FR(2*db+w)}, {'0' if (first and w == 0) else d}"

def gen_iter(it, tasks=(), dma=None, name=None, endops=(), peel=False, extra_sm=False, nostep=False, extra=(), extra_late=()):
    kind = "q" if it % 2 else "p"
    nk = "p" if kind == "q" else "q"
    A = [[] for _ in range(NG)]; B = [[] for _ in range(NG)]; C = [[] for _ in range(NG)]; T = [[] for _ in range(NG)]
    streams = []; novm = set(range(0, NG, 2)); nosalu = set()
    for F in range(24):
        fr = F + D
        B[4 * F].append(frag_read(kind, fr) if fr < 24 else frag_read(nk, fr - 24))
    for F in range(2, 25, 2):
        A[4 * F - 1].append(LG(("f", kind, F + 1) if F < 24 else ("f", nk, 1)))
    smB = softmax_part(it, 1); smA = softmax_part(it + 1, 0)
    if extra_sm: smB = softmax_part(it, 0) + smB
    if kind == "q":
        streams.append(Stream(smB, 0, 50)); streams.append(Stream(smA, 52, 95))
    else:
        streams.append(Stream(softmax_part(it, 1, more=[(it + 1, 0), (it + 1, 1)]), 0, 95))
    if endops:
        A[92] += endops[:1]; A[94] += [A[95][0]] + list(endops[1:-1]); A[95] = []; T[95] = list(endops[-1:]); nosalu |= {94, 95}
    if extra: streams.append(Stream(extra, 0, 90))
    if extra_late: streams.append(Stream(extra_late, GBAR + 1, 94))
    if not OPT["prod"]: tasks = ()
    if dma is None:
        w = [t[1:] for t in tasks if t[0] == "dmaw"]
        w = w[0] if w else (0, GBAR - 5)
        p0 = it + 5 if kind == "q" else it + 2
        c_ = "k" if kind == "q" else "v"
        dma = [((c_, p0), (c_, p0 + 1)) + tuple(w)]
    for grp in dma:
        dl = []
        for part, pos in grp[:-2]: dl += dma_tile(part, pos, peel)
        n = max(i for i, x in enumerate(dl) if isinstance(x, VM)) + 1
        streams.append(Stream(dl[:n], grp[-2], grp[-1], maxper=2))
        streams.append(Stream(dl[n:], grp[-1] + 1, min(93 if endops else 95, grp[-1] + 12), maxper=2))
    nj = ((it + 2) // 2) if nk == "q" else (it - 1) // 2
    wtags = [("dk" if nk == "q" else "dv", nj % 4)]
    if not nostep:
        streams.append(Stream(rd_step(nk), 30, GBAR - 3, maxper=1))
    for t in tasks:
        k_ = t[0]
        if k_ == "cv":
            c = {"k": chain_k, "v": chain_v, "vl": lambda: chain_v(True)}[t[1]]()
            streams.append(Stream(cut(c, t[2], t[3]), t[4], t[5]))
        elif k_ in ("kst", "vst"):
            grp = k_st(t[1], BX) if k_ == "kst" else v_st(t[1], BZ)
            g = t[2]; assert g % 4 == 1 and not B[g], g
            if t[1] == 0: B[g].append(CHK("Kdone" if k_ == "kst" else "Vdone"))
            B[g].append(grp[-1]); novm |= set(range(g - OPT["sb"], g + OPT["sa"] + 1))
            if t[1] == 3: B[g].append(SIG("BX" if k_ == "kst" else "BZ"))
            if grp[:-1]: streams.append(Stream(grp[:-1], max(0, g - 5), g - 1))
        elif k_ in ("ld", "ldn"):
            ld, h, buf = HT[t[1]]
            adv = ({"ka": k_adv(), "va": v_adv()}.get(t[1], []) if k_ == "ld" else [])
            chk = {"ka": [CHK("BX")], "va": [CHK("BZ")]}.get(t[1], [CHK(f"BY{j>>1}") for j in t[2] if j % 2 == 0])
            streams.append(Stream(chk + adv + ld(h, buf, t[1], t[2]), t[3], t[4], maxper=1))
        elif k_ == "post":
            wtags += list(t[1:])
            streams.append(Stream(flag_post(), GBAR + 1, 93, maxper=1))
        elif k_ == "pf":
            streams.append(Stream([VM("pf", f"buffer_load_dword v0, v{V_DMA}, s[{S_DBG}:{S_DBG+3}], s{S_HOFF} offen")], t[1], t[2]))
        elif k_ == "pollld": streams.append(Stream(poll_load(), t[1], t[2], maxper=1))
        elif k_ in ("pollchk", "pollchk0"):
            ps = len(POLLSITES); POLLSITES.append(ps)
            g = t[1]; assert g % 4 == 1 and not (GBAR - 6 <= g <= GBAR)
            pt = poll_test()
            A[g] += [W("poll")]; T[g] += pt[:2]; novm |= {g, g + 4}
            A[g + 3] += [pt[3]]; A[g + 4] += [f"s_cbranch_scc1 L_pollslow{ps}", f"L_pollok{ps}:"]; nosalu |= {g + 3, g + 4}
            if k_ == "pollchk": A[g + 5] += [f"s_add_u32 s{S_NEED}, s{S_NEED}, 1"]
    A[GBAR - 1] += [W(*wtags)]; novm |= {GBAR}
    A[GBAR - 2] += A[GBAR]; A[GBAR] = ["s_barrier"]
    if endops:
        for st_ in streams: st_.last = min(st_.last, 94)
    fill, over = pack(A, B, C, T, streams, novm, nosalu)
    if over: print(f"iter {name or it}: over budget by {over} cycles", file=sys.stderr)
    out = [f"; ---- iteration {name or it}"]
    for g in range(NG):
        if kind == "q": out.append(qk_mfma(it + 1, g))
        else: out.append(pv_mfma(it - 2, g >> 3, (g >> 1) & 3, g & 1, first=(peel and it == 2)))
        out += fill[g]
    return with_nop(out)

GA = [60, 61]; BP = 62; ONE = 63; RD2 = [9, 10, 11]
RLQ = [48, 52, 56, 128]
RT = [20, 23]
def epi_addr():
    ta = 63
    return [f"v_bfe_u32 v{ta}, v{V_DMA}, 4, 6", f"v_and_b32 v{BP}, 48, v{ta}", f"v_and_b32 v{ta}, 15, v{ta}",
            f"v_mul_u32_u24 v{GA[1]}, 96, v{BP}", f"v_lshl_add_u32 v{GA[0]}, v{ta}, 4, v{GA[1]}", f"v_lshl_add_u32 v{GA[1]}, v{ta}, 3, v{GA[1]}",
            f"s_lshl_b32 s24, s{S_QB}, 2", f"s_add_u32 s24, s24, s{S_WAVE}", f"s_mul_i32 s24, s24, {STAGE}", f"v_mov_b32 v{ONE}, 1.0"] + \
           [f"s_add_u32 s{S_PK0+i}, s24, {6144*i}" for i in range(4)]
def epi_l(qs):
    fl = [f"v_mfma_f32_16x16x4_f32 v[{RLQ[q]}:{RLQ[q]+3}], v{V_L[q]}, v{ONE}, 0" for q in qs]
    return fl, [f"v_rcp_f32 v{RLQ[q]+i}, v{RLQ[q]+i}" for q in qs for i in range(4)]
def epi_q(qb, temps, pk):
    of = OF if qb < OPT["wt"] else ["", " nt", " sc1"][OPT["wp"]]
    p = []
    for i in range(4):
        ob = temps[(4 * qb + i) % len(temps)]
        rl = RLQ[qb] + i
        p += [f"v_accvgpr_read_b32 v{ob+db}, a{O(qb,db)+i}" for db in range(12)]
        if pk: p += [f"v_pk_mul_f32 v[{ob+2*j}:{ob+2*j+1}], v[{ob+2*j}:{ob+2*j+1}], v[{rl&~1}:{(rl&~1)+1}] op_sel:[0,{rl&1}] op_sel_hi:[1,{rl&1}]" for j in range(6)]
        else: p += [f"v_mul_f32 v{ob+j}, v{ob+j}, v{rl}" for j in range(12)]
        p += [f"v_cvt_pk_bf16_f32 v{ob+j}, v{ob+2*j}, v{ob+2*j+1}" for j in range(6)]
        p += [f"buffer_store_dwordx4 v[{ob}:{ob+3}], v{GA[0]}, s[{S_OUT}:{S_OUT+3}], s{S_PK0+qb} offen offset:{384*i}{of}",
              f"buffer_store_dwordx2 v[{ob+4}:{ob+5}], v{GA[1]}, s[{S_OUT}:{S_OUT+3}], s{S_PK0+qb} offen offset:{384*i+256}{of}"]
    return p

def gen_tail():
    passes = [(60, (0, 1)), (62, (0, 1)), (60, (2, 3)), (62, (2, 3))]
    def tg(i): return ("f", "p", i) if i < 24 else ("f", "t", i)
    def rd(i):
        ps, f = divmod(i, 24)
        return frag_read("p", f, V_RDV if passes[ps][0] == 60 else RD2, tg(i))
    def run(ps, fill, lim):
        t0, qbs = passes[ps]
        out = []; fill = list(fill)
        for db in range(12):
            for i, (qb, w) in enumerate([(q, w) for q in qbs for w in (0, 1)]):
                out.append(pv_mfma(t0, db, qb, w))
                cur = []
                gi = 24 * ps + 2 * db
                if i in (0, 2) and gi + (i >> 1) + D < 96: cur.append(rd(gi + (i >> 1) + D))
                if i == 3 and gi + 3 < 96: cur.append(LG(tg(gi + 3)))
                L_ = 16 if i % 2 == 0 else lim
                while fill and gap_time(cur + [fill[0]]) <= L_ + (12 if (text_of(fill[0]).startswith(("buffer", "ds_")) and i % 2) else 0):
                    cur.append(fill.pop(0))
                out += cur
        return out, fill
    thr = f"s_mov_b32 s{S_TMP}, 0x{f32bits(2.0**OPT['thr']):08x}"
    seq = []
    seq += kstamp("ps0", 9)
    c, r = run(0, softmax_part(63, 0), 16); seq += c + r + ["s_nop 1"] + kstamp("ps1", 9)
    c, r = run(1, [f"v_max_f32 v{RT[0]}, v{V_L[0]}, v{V_L[1]}", thr, f"v_cmp_lt_f32 vcc, s{S_TMP}, v{RT[0]}"] + softmax_part(62, 1), 16)
    seq += c + r + ["s_cbranch_vccnz L_slow"] + kstamp("ps2", 9)
    tempsA = [BX, BX + 12, BZ, 132]
    must = softmax_part(63, 1) + [f"v_max_f32 v{RT[0]}, v{V_L[2]}, v{V_L[3]}", f"v_cmp_lt_f32 vcc, s{S_TMP}, v{RT[0]}"]
    m01, r01 = epi_l((0, 1)); m23, r23 = epi_l((2, 3))
    seq += m01
    rest = r01 + epi_q(0, tempsA, False) + epi_q(1, tempsA, False)
    c, r = run(2, must + rest, OPT["tden"])
    nm = max(0, len(r) - len(rest)); c += r[:nm]; r = r[nm:]
    seq += c + ["s_nop 1", "s_cbranch_vccnz L_slow"] + kstamp("ps3", 9)
    seq += m23
    c, r = run(3, r + r23, OPT["tden"]); seq += c + kstamp("rest", 9) + r
    print("tail: left after pass 3:", len(r), file=sys.stderr)
    tempsB = [64 + 12 * i for i in range(5)]
    seq += ["s_nop 4"] + kstamp("e2", 9) + epi_q(2, tempsB, True) + kstamp("e3", 9) + epi_q(3, tempsB, True) + kstamp("fin", 9)
    return seq
class Passes:
    def __init__(self, passes, ring, name, issued=0, t0kind=None):
        self.ps = passes; self.ring = ring; self.LA = len(ring) - 2; self.name = name
        self.idx = []
        self.start = []
        for n, p in enumerate(passes):
            self.start.append(len(self.idx))
            self.idx += [(n, f) for f in range(p.get("f0", 0), D if p.get("look") else p.get("f1", 24))]
        self.next = issued; self.issued = issued; self.t0kind = t0kind
    def tg(self, i):
        n, f = self.idx[i]
        if self.ps[n].get("look"): return ("f", self.ps[n]["kind"], f)
        if i < self.issued: return ("f", self.t0kind, i)
        return ("f", self.name, i)
    def reg(self, i): return vr(self.ring[i % len(self.ring)], 4)
    def rd(self, i):
        n, f = self.idx[i]; p = self.ps[n]
        x = frag_read(p["kind"], f, p.get("addr"), self.tg(i))
        x.text = x.text.replace(FR(f), self.reg(i), 1)
        if p.get("look"): assert self.reg(i) == FR(f)
        return (list(p.get("pre", ())) if i == self.start[n] else []) + [x]
    def prime(self, n):
        out = []
        while self.next < n: out += self.rd(self.next); self.next += 1
        return out + [LG(self.tg(1))]
    def run(self, ps, fill, lim, bar=None, sec=(), vm=(), barF=14, vmi=1):
        p = self.ps[ps]; kind, t0, qbs = p["kind"], p["t0"], p["qbs"]
        out = [f"; ---- pass {self.name}{ps}"]; fill = list(fill); sec = list(sec); vm = list(vm); n = 2 * len(qbs); nf = len(self.idx)
        f0 = p.get("f0", 0)
        for F in range(f0, p.get("f1", 24), 2):
            gi = self.start[ps] + F - f0
            if F == 12 and self.name == "t" and "HOLD" in fill: assert fill[0] == "HOLD", (ps, fill[:3])
            for i, (qb, w) in enumerate([(q, w) for q in qbs for w in (0, 1)]):
                a = self.reg(gi + w)
                if kind == "q":
                    t = t0 + F // 12; s_, tb = kfrag((F + w) % 12); d = vr(Sq(t, qb, tb), 4)
                    c = ("0" if p.get("cz") else vr(NEGM(qb), 4)) if (s_ < 2 and w == 0) else d
                    out.append(f"{MF} {d}, {a}, {Qf(qb,s_)}, {c}")
                else:
                    d = ar(O(qb, F >> 1), 4)
                    out.append(f"{MF} {d}, {vr(P(t0+w,qb),4)}, {a}, {'0' if (p.get('first') and w == 0) else d}")
                cur = []
                lim_ = gi + (6 if len(self.ring) == 6 else self.LA)
                k = (2 if (n == 2 or self.next < lim_ - 2) else 1) if i % 2 == 0 else 0
                while k and self.next < min(nf, lim_):
                    cur += self.rd(self.next); self.next += 1; k -= 1
                if i == n - 1 and gi + 3 < nf: cur.append(LG(self.tg(gi + 3)))
                if bar and F == barF and i == 1: cur += [W(*bar), "s_barrier"]
                elif vm and i == vmi: cur += vm.pop(0)
                L_ = 16 if i % 2 == 0 else lim
                tm = []
                for l in (fill, sec):
                    while l and l[0] != "HOLD" and gap_time(cur + [l[0]]) <= L_ + (12 if (text_of(l[0]).startswith(("buffer", "ds_")) and i % 2) else 0):
                        if kind_of(l[0]) == "ds" and any(kind_of(x) == "valu" for x in cur): break
                        if kind_of(l[0]) == "smf":
                            if i % 2: tm.append(l.pop(0))
                            break
                        cur.append(l.pop(0))
                cur += tm
                if fill and fill[0] == "HOLD" and F >= 12 and i >= 1 and (F > 12 or i == n - 1): fill.pop(0)
                out += cur
        assert not vm, vm
        return with_nop(out), [x for x in fill if x != "HOLD"], sec

def gen_tail3():
    tw = OPT["tw"]
    RD3 = [12, 13, 0]
    VA = {58: V_RDV, 60: RD2, 62: RD3}
    pl = [("p", 58, (0, 1) if tw else (0, 1, 2, 3)), ("q", 62, (0, 1)), ("p", 60, (0, 1)), ("p", 62, (0, 1))] + ([("p", 58, (2, 3))] if tw else []) + \
         [("q", 62, (2, 3)), ("p", 60, (2, 3))] + ([("p", 62, (2,)), ("p", 62, (3,))] if OPT["tq"] else [("p", 62, (2, 3))])
    PS = Passes([dict(kind=k, t0=t, qbs=q, addr=(VA[t] if k == "p" else None)) for k, t, q in pl],
                [V_FR + 4 * i for i in range(NFS)] + [240 + 4 * i for i in range(4)], "t", issued=D, t0kind="p")
    def run(ps, fill, lim, bar=None, sec=(), vm=()): return PS.run(ps, fill, lim, (bar,) if bar else None, sec, vm)
    den = OPT["tden"]; d0 = OPT["td"]
    thr = f"s_mov_b32 s{S_TMP}, 0x{f32bits(2.0**OPT['thr']):08x}"
    seq = []
    l = dma_tile("v", 62) + dma_tile("v", 63)
    vm = [l[0:1], l[1:2], l[2:3], l[3:4], l[4:7], l[7:8], l[8:9], l[9:10]]
    assert " m0," in l[6]
    rd23 = [f"v_subrev_u32 v{RD2[i]}, {4*STAGE}, v{V_RDV[i]}" for i in range(3)] + [f"v_subrev_u32 v{RD3[i]}, {2*STAGE}, v{V_RDV[i]}" for i in range(3)]
    m01, r01 = epi_l((0, 1)); m23, r23 = epi_l((2, 3))
    c, r, _ = run(0, rd_step("q") + ([] if tw else softmax_part(60, 1)) + softmax_part(61, 0), d0, ("dk", 1), vm=vm); seq += c + r + kstamp("a1", 9)
    c, r, _ = run(1, rd23 + epi_addr() + ["HOLD"] + softmax_part(62, 0), d0, ("dv", 0)); seq += c + kstamp("a2", 9)
    chk = lambda a, b: ["s_nop 4", f"v_cmp_nge_f32 vcc, s{S_TMP}, v{V_L[a]}", f"v_cmp_nge_f32_e64 s[56:57], s{S_TMP}, v{V_L[b]}", "s_nop 0", "s_or_b64 vcc, vcc, s[56:57]"]
    c, r, _ = run(2, [thr] + r + softmax_part(63, 0), d0, ("dv", 3)); seq += c + r + chk(0, 1) + m01 + ["s_cbranch_vccnz L_slow"] + kstamp("a3", 9)
    tempsA = [BX, BZ]
    c, r, _ = run(3, softmax_part(60 if tw else 61, 1) + r01, d0); seq += c + r + kstamp("b0", 9)
    e = epi_q(0, tempsA, False) + epi_q(1, tempsA, False)
    ps = 4
    if tw:
        c, r, e = run(4, ["s_nop 3", "HOLD"] + softmax_part(61, 1, (2,)), den, sec=e); seq += c + r + kstamp("b1", 9); ps = 5
    c, r, e = run(ps, (softmax_part(61, 1, (3,)) if tw else ["s_nop 3"]) + ["HOLD"] + softmax_part(62, 1), den, sec=e); seq += c + kstamp("b2", 9)
    c, r, e = run(ps + 1, r + softmax_part(63, 1), den, sec=e)
    seq += c + r + chk(2, 3) + m23 + ["s_cbranch_vccnz L_slow"] + kstamp("b3", 9)
    c, r, e = run(ps + 2, [], den, sec=e + ["s_nop 3"] + r23); seq += c + r + kstamp("b4", 9)
    tempsB = [64 + 12 * i for i in range(5)]
    if OPT["tq"]:
        c, r, e = run(ps + 3, ["s_nop 3"], den, sec=e + epi_q(2, tempsA, False)); seq += c + kstamp("rest", 9) + e
    else:
        seq += e + ["s_nop 4"] + epi_q(2, tempsB, True)
    print("tail3: left after last pass:", len(e), file=sys.stderr)
    seq += ["s_nop 4"] + kstamp("e3", 9) + epi_q(3, tempsB, True) + kstamp("fin", 9)
    return seq
def slow_epi():
    m, r = epi_l((0, 1, 2, 3))
    seq = ["s_nop 1"] + m + ["s_nop 10"] + r + ["s_nop 0"]
    for q in range(4): seq += epi_q(q, [64 + 12 * i for i in range(5)], True)
    return seq

def xlane(op, t):
    l = []
    for sw in ("v_permlane16_swap_b32", "v_permlane32_swap_b32"):
        l += [f"v_mov_b32 v{t+1}, v{t}", "s_nop 1", f"{sw} v{t}, v{t+1}", "s_nop 1", f"{op} v{t}, v{t}, v{t+1}"]
    return l

def gen_slow():
    KF = 64; VF = 112; SS = 160; PP = 224; M = [240, 241, 242, 243]; KA = [244, 245]; LA = [246, 247, 248]; AL = 250; t = V_T
    p = ["L_slow:", "s_waitcnt vmcnt(0) lgkmcnt(0)", "s_nop 15"]
    for i in range(192): p.append(f"v_accvgpr_write_b32 a{i}, 0")
    for q in range(4): p += [f"v_mov_b32 v{V_L[q]}, 0", f"v_mov_b32 v{M[q]}, 0xff7fffff"]
    p += [f"v_subrev_u32 v{KA[i]}, s{S_RK}, v{V_RDK[i]}" for i in range(2)] + [f"v_subrev_u32 v{LA[i]}, s{S_RV}, v{V_RDV[i]}" for i in range(3)]
    p += [f"s_mov_b32 s{S_PT}, 0", "L_slowloop:"]
    p += [f"s_add_u32 s{S_PT+1}, s{S_PT}, 6144", f"s_add_u32 s{S_PT+2}, s{S_PT}, 12288"]
    for f in range(12):
        s, tb = kfrag(f)
        p.append(f"buffer_load_dwordx4 v[{KF+4*f}:{KF+4*f+3}], v{KA[s&1]}, s[{S_WS}:{S_WS+3}], s{S_PT+tb} offen offset:{(s>>1)*128} sc1")
    for db in range(12):
        a, off = vfrag(db)
        p.append(f"buffer_load_dwordx4 v[{VF+4*db}:{VF+4*db+3}], v{LA[a]}, s[{S_WS}:{S_WS+3}], s{S_PT+2} offen offset:{off} sc1")
    p.append("s_waitcnt vmcnt(12)")
    for f in range(12):
        s, tb = kfrag(f)
        for qb in range(4):
            d = vr(SS + 8 * qb + 4 * tb, 4)
            p.append(f"{MF} {d}, v[{KF+4*f}:{KF+4*f+3}], {Qf(qb,s)}, {'0' if s == 0 else d}")
    p.append("s_nop 9")
    for qb in range(4):
        sb = SS + 8 * qb
        p += [f"v_max3_f32 v{t}, v{sb}, v{sb+1}, v{sb+2}", f"v_max3_f32 v{t}, v{t}, v{sb+3}, v{sb+4}",
              f"v_max3_f32 v{t}, v{t}, v{sb+5}, v{sb+6}", f"v_max3_f32 v{t}, v{t}, v{sb+7}, v{M[qb]}"]
        p += xlane("v_max_f32", t)
        p += [f"v_sub_f32 v{t+1}, v{M[qb]}, v{t}", f"v_exp_f32 v{t+1}, v{t+1}", f"v_mov_b32 v{M[qb]}, v{t}"]
        p += [f"ds_bpermute_b32 v{AL+i}, v{BP}, v{t+1} offset:{4*i}" for i in range(4)]
        for i in range(8): p.append(f"v_sub_f32 v{sb+i}, v{sb+i}, v{t}")
        for i in range(8): p.append(f"v_exp_f32 v{sb+i}, v{sb+i}")
        p.append(f"v_mul_f32 v{V_L[qb]}, v{V_L[qb]}, v{t+1}")
        for i in range(8): p.append(f"v_add_f32 v{V_L[qb]}, v{V_L[qb]}, v{sb+i}")
        for i in range(4): p.append(f"v_cvt_pk_bf16_f32 v{PP+4*qb+i}, v{sb+2*i}, v{sb+2*i+1}")
        p.append("s_waitcnt lgkmcnt(0)")
        for i in range(48):
            a = O(qb, 0) + i; tt = t + 2 + (i % 2)
            p += [f"v_accvgpr_read_b32 v{tt}, a{a}", f"v_mul_f32 v{tt}, v{tt}, v{AL+i%4}", f"v_accvgpr_write_b32 a{a}, v{tt}"]
    p += ["s_waitcnt vmcnt(0)", "s_nop 1"]
    for db in range(12):
        for qb in range(4):
            d = ar(O(qb, db), 4)
            p.append(f"{MF} {d}, v[{PP+4*qb}:{PP+4*qb+3}], v[{VF+4*db}:{VF+4*db+3}], {d}")
    p += [f"s_add_u32 s{S_PT}, s{S_PT}, {STAGE}", f"s_cmp_lt_u32 s{S_PT}, {HEADBYTES}", "s_nop 7", "s_cbranch_scc1 L_slowloop"]
    e = slow_epi(); resolve(e)
    return p + fin(e) + ["s_branch L_fin"]

def resolve(seq, check=True):
    vm = []; isdma = []; ds = []; done = 0; tok = set(); where = ""; nm = 0
    for x in seq:
        if isinstance(x, str) and x.startswith("; ----"): where = x; nm = 0
        if isinstance(x, str) and x.startswith("v_mfma"): nm += 1
        if isinstance(x, VM): vm.append(x.tag); isdma.append(x.text.endswith(" lds"))
        elif isinstance(x, DS): ds.append(x.tag)
        elif isinstance(x, W):
            for tag in x.tags:
                if tag == ALL: x.n = 0; continue
                idx = [i for i, t in enumerate(vm) if t == tag]
                if idx:
                    n = len(vm) - 1 - idx[-1]
                    if OPT["safe"] and isdma[idx[-1]]: n = sum(isdma[idx[-1] + 1:])
                    x.n = n if x.n is None else min(x.n, n)
        elif isinstance(x, LG):
            idx = [i for i, t in enumerate(ds) if t == x.tag]
            assert idx, x.tag
            n = len(ds) - 1 - idx[-1]
            x.n = n if x.n is None else min(x.n, n)
            if idx[-1] >= done:
                x.need = True
                if x.soft: print(f"soft LDS wait needed: {x.tag} n={n} {where} gap {nm}", file=sys.stderr)
            done = max(done, idx[-1] + 1)
        elif isinstance(x, SIG): tok.add(x.name)
        elif isinstance(x, CHK):
            assert x.name in tok or not OPT["prod"], f"token {x.name} missing {where} gap {nm}"
            tok.discard(x.name)
        else:
            assert not x.startswith("ds_") or "lgkmcnt(0)" in " ".join(y for y in seq[seq.index(x):seq.index(x)+3] if isinstance(y, str)), x
            if "lgkmcnt(0)" in x: done = len(ds)
def fin(seq):
    out = []
    for x in seq:
        if isinstance(x, W):
            if not OPT["prod"] and x.n is None: continue
            assert x.n is not None, x.tags
            out.append(f"s_waitcnt vmcnt({min(x.n, 63)})")
        elif isinstance(x, LG):
            if x.need:
                out.append(f"s_waitcnt lgkmcnt({min(x.n, 15)})")
            elif not x.soft: out.append("s_nop 0")
        elif isinstance(x, (VM, DS)): out.append(x.text)
        elif isinstance(x, (SIG, CHK)): pass
        else:
            if x.startswith("v_mfma_f32_4x4x4"):
                rd = Ins(x).rd; back = [y for y in out[-6:] if Ins(y).kind != "none"][-2:][::-1]
                for d, y in enumerate(back):
                    if Ins(y).kind == "valu" and Ins(y).wr & rd: out.append(f"s_nop {1 - d}"); break
            out.append(x)
    return out
def srd(s, lo, off_s, size):
    return [f"s_add_u32 s{s}, s{lo}, s{off_s}", f"s_addc_u32 s{s+1}, s{lo+1}, 0", f"s_mov_b32 s{s+2}, {size}", f"s_mov_b32 s{s+3}, 0x20000"]
def sprinkle(code, extra):
    out = []; n = len(code); m = len(extra); j = 0
    for i, x in enumerate(code):
        while j < m and (i + 1) * m > j * n:
            out += extra[j]; j += 1
        if isinstance(x, list): out += x
        else: out.append(x)
    for g in extra[j:]: out += g
    return out

def touch_slot(tag, n):
    if not n: return []
    o = []
    for w in range(1, 4): o += [f"s_cmp_eq_u32 s{S_WAVE}, {w}", f"s_cbranch_scc1 L_t{tag}_{w}"]
    for w in range(4):
        o.append(f"L_t{tag}_{w}:")
        for k in range(w, n, 4): o += [f"s_branch L_tb{tag}_{k}", f"L_tb{tag}_{k}:"]
        if w < 3: o.append(f"s_branch L_t{tag}_end")
    return o + [f"L_t{tag}_end:"]

def gen_prologue():
    p = []
    K = f"{NAME}_kernel"
    p += [f"{K}:", "s_load_dwordx16 s[40:55], s[0:1], 0", "s_getpc_b64 s[60:61]", "L_pc:",
          "s_movk_i32 s62, 0x4000", "s_lshl_b32 s63, 1, 17", "v_lshlrev_b32 v31, 6, v0",
          VM("pf", "buffer_load_dword v15, v31, s[60:63], 0 offen"),
          "s_lshr_b32 s24, s2, 8", "s_cbranch_scc1 L_done", "s_load_dwordx4 s[16:19], s[0:1], 64", "v_lshlrev_b32 v30, 4, v0"]
    if OPT["stamp"]:
        p += ["s_mov_b64 s[100:101], s[0:1]" if OPT["stamp"] == 8 else "s_memtime s[100:101]", "s_memrealtime s[98:99]"]
    p += ["v_and_b32 v25, 63, v0", "v_lshrrev_b32 v24, 6, v0", "s_movk_i32 s24, 5120",
          "v_mul_u32_u24 v26, 43, v25", f"v_mad_u32_u24 v{V_VLD}, v24, s24, v30", "s_movk_i32 s24, 384", "v_lshrrev_b32 v26, 10, v26",
          "s_and_b32 s22, s2, 7", f"s_mul_i32 s{S_TMP}, s22, {264 if OPT['rot'] else 256}", f"v_mad_u32_u24 v{V_KLD}, v26, s24, v{V_VLD}",
          "s_andn2_b32 s23, s2, 63", f"s_bfe_u32 s{S_QB}, s2, 0x30003", f"s_add_u32 s{S_TMP}, s{S_TMP}, s23", f"s_add_u32 s{S_TMP}, s{S_TMP}, s{S_QB}",
          f"s_lshr_b32 s23, s{S_TMP}, 1", "s_mulk_i32 s23, 384", f"s_mul_i32 s24, s{S_TMP}, {STAGE}", "v_lshl_add_u32 v27, v25, 3, s23",
          "s_addk_i32 s24, 2048", "s_mov_b32 exec_hi, 0xffff"]
    p += ["s_waitcnt lgkmcnt(0)"] + vstamp("kernarg")
    p += [VM("ksc", "global_load_dwordx2 v[32:33], v27, s[46:47]"), VM("ksc", "global_load_dwordx2 v[34:35], v27, s[48:49]"),
          "s_add_u32 s56, s42, s24", "s_addc_u32 s57, s43, 0"]
    for h in range(2):
        p += [VM(("k0" + "ab"[h], j >> 1), f"global_load_dwordx4 v[{64+16*h+4*j}:{67+16*h+4*j}], v{V_KLD}, s[56:57] offset:{1536*j+384*h-2048}{NTKV}") for j in range(4)]
    p += vstamp("iss k") + ["s_add_u32 s58, s44, s24", "s_addc_u32 s59, s45, 0"]
    vl = [VM(("v0" + "ab"[r >> 2], (r >> 1) & 1), f"global_load_dwordx4 v[{96+4*r}:{99+4*r}], v{V_VLD}, s[58:59] offset:{768*r-2048}{NTKV}") for r in range(8)]
    nv = OPT["nv"]
    p += vl[:nv]
    p += [f"v_readfirstlane_b32 s{S_WAVE}, v24", f"s_lshl_b32 s23, s{S_TMP}, 6", f"s_lshr_b32 s{S_HEAD}, s{S_TMP}, 6",
          f"s_lshl4_add_u32 s23, s{S_WAVE}, s23",
          "s_load_dwordx4 s[64:67], s[50:51], s23", "s_load_dwordx4 s[68:71], s[52:53], s23"]
    p += [f"s_lshl_b32 s22, s{S_HEAD}, 10", f"s_add_u32 s22, s22, {FLAG_OFF}", f"s_or_b32 s{S_LEAD}, s{S_QB}, s{S_WAVE}", "s_cbranch_scc1 L_notleader0",
          "s_load_dwordx8 s[72:79], s[18:19], s22 glc", "L_notleader0:"]
    p += ["s_mov_b32 exec_hi, -1"]
    pv = len(p)
    VQD = OPT['vqd']
    p += [f"s_mul_i32 s24, s{S_HEAD}, 786432"] + srd(S_Q, 40, 24, 786432) + srd(S_OUT, 54, 24, 786432)
    p += [f"s_lshl2_add_u32 s24, s{S_QB}, s{S_WAVE}", f"s_mul_i32 s24, s24, {STAGE}",
          f"s_mul_i32 s{S_QL}, s{S_WAVE}, 6144", f"s_add_u32 s{S_QL}, s{S_QL}, {3*STAGE}"]
    QSL = (0, 1, 2, 1)
    p += [f"v_add_u32 v{VQD+b}, {64*b}, v25" for b in range(6)]
    p += [f"v_mul_u32_u24 v{VQD+8+b}, 2731, v{VQD+b}" for b in range(6)]
    p += [f"v_bfe_u32 v{VQD+8+b}, v{VQD+8+b}, 17, 3" for b in range(6)]
    p += [f"v_xor_b32 v{VQD+b}, v{VQD+b}, v{VQD+8+b}" for b in range(6)]
    p += [f"v_lshl_add_u32 v{VQD+b}, v{VQD+b}, 4, s24" for b in range(6)]
    def q_dma(lst):
        l = []
        for i in lst:
            a, b = divmod(i, 6)
            l.append(([f"s_waitcnt vmcnt({OPT['win'] + (OPT['wins'] if i < n3 + OPT['qd'] else 0)})"] if (OPT["win"] and n2 <= i < n3 + OPT["qd"] + OPT["qe"]) else []) + [f"s_add_u32 m0, s{S_QL}, {QSL[a]*STAGE + b*1024}", f"s_movk_i32 s24, {a*6144}",
                      VM(("q", a), f"buffer_load_dwordx4 v{VQD+b}, s[{S_Q}:{S_Q+3}], s24 offen{NTQ} lds")])
        return l
    flat = lambda gs: [x for g in gs for x in g]
    n0 = OPT["q0"]; n1 = n0 + OPT["qa"]; n2 = n1 + OPT["qb"]; n3 = n2 + OPT["qc"]
    assert n3 <= 18
    QD = 128
    def kprep(q, s_, z_):
        return [f"v_lshlrev_b32 v{q}, 16, v{s_}", f"v_and_b32 v{q+1}, s{S_MASK}, v{s_}", f"v_lshlrev_b32 v{q+2}, 16, v{z_}", f"v_and_b32 v{q+3}, s{S_MASK}, v{z_}"]
    t0 = [f"s_mov_b32 s{S_MASK}, 0xffff0000", f"s_mov_b32 s{S_CS}, 0x{f32bits(CSCALE):08x}",
          "v_mul_u32_u24 v27, 24, v26", "v_sub_u32 v27, v25, v27",
          f"v_lshlrev_b32 v{V_KTAB}, 4, v27", f"v_add_u32 v{V_KTAB}, {TAB}, v{V_KTAB}",
          "v_mul_u32_u24 v36, 768, v26", f"v_add_u32 v36, v36, v{V_KTAB}",
          W("ksc")] + kprep(QD, 32, 34) + kprep(QD + 4, 33, 35)
    t0 += [f"v_mul_f32 v{QD+4*u+x}, s{S_CS}, v{QD+4*u+x}" for u in range(2) for x in range(2)]
    t0 += [f"v_mul_f32_e64 v{QD+4*u+2+x}, -v{QD+4*u+2+x}, v{QD+4*u+x}" for u in range(2) for x in range(2)]
    if OPT["koff"]: t0 += [f"v_add_f32 v{QD+4*u+2+x}, 0x{f32bits(OPT['koff'] * 0.1 * CSCALE):08x}, v{QD+4*u+2+x}" for u in range(2) for x in range(2)]
    t0 += [["s_mov_b32 exec_hi, 0xffff"] + [DS("t0w", f"ds_write_b128 v36, v[{QD+4*i}:{QD+4*i+3}] offset:{384*i}") for i in range(2)] + ["s_mov_b32 exec_hi, -1"]]
    t0 += [DS("t0r", f"ds_read_b128 v[{QD+4*u}:{QD+4*u+3}], v{V_KTAB} offset:{384*u}") for u in range(4)]
    setup0 = [f"v_mov_b32 v{V_T}, 0", f"v_mov_b32 v{V_T+1}, {RING}", DS("cnt", f"ds_write_b32 v{V_T+1}, v{V_T}")]
    setup = ["v_lshrrev_b32 v48, 1, v26", "v_lshlrev_b32 v48, 30, v48",
          "v_lshlrev_b32 v31, 4, v25", "v_mul_u32_u24 v30, 3072, v24", f"v_add_u32 v{V_DMA}, v30, v31",
          "v_lshl_add_u32 v49, v24, 2, v26", "v_mul_u32_u24 v49, 384, v49", "v_lshlrev_b32 v50, 1, v24", "v_xor_b32 v50, v27, v50",
          "v_lshl_add_u32 v49, v50, 4, v49", f"v_or_b32 v{V_KST}, v49, v48", f"v_xor_b32 v{V_KA}, 16, v{V_KST}",
          "v_lshrrev_b32 v49, 5, v25", "v_sub_u32 v49, 1, v49", "v_and_b32 v49, v49, v24", "v_lshlrev_b32 v49, 4, v49",
          f"v_xor_b32 v49, v49, v{V_DMA}", "v_add_u32 v49, 12288, v49", f"v_or_b32 v{V_VST}, v49, v48",
          f"s_mul_i32 s{S_KW}, s{S_QB}, {STAGE}", f"s_add_u32 s{S_KW2}, s{S_KW}, 6144", f"s_mov_b32 s{S_VW}, s{S_KW}",
          f"s_mul_i32 s{S_RET}, s{S_HEAD}, {WSHEAD}"]
    kv_or = [f"v_or_b32 v{V_KLD}, v{V_KLD}, v48", f"v_or_b32 v{V_VLD}, v{V_VLD}, v48"]
    p += setup0 + t0 + setup
    p[pv:] = sprinkle(p[pv:], [["s_mov_b32 exec_hi, 0xffff", x, "s_mov_b32 exec_hi, -1"] for x in vl[nv:]])
    if OPT["touch"]:
        p += ["s_mov_b32 s62, L_slow-L_pc", "s_bfe_u32 s24, s2, 0x20003", "s_add_u32 s24, s24, 1", "s_lshl_b32 s24, s24, 14", "v_lshlrev_b32 v15, 6, v0",
              VM("pf", "buffer_load_dword v15, v15, s[60:63], s24 offen")]
    p += vstamp("iss v") + kv_or + flat(q_dma(range(0, n0))) + vstamp("iss q0") + ["s_waitcnt lgkmcnt(0)"] + ["s_barrier"]
    p += srd(S_WS, 18, S_RET, HEADBYTES)
    p += srd(S_FLG, 18, 22, 32)
    p += [f"s_mov_b32 s{S_DBG}, s16", f"s_mov_b32 s{S_DBG+1}, s17", f"s_movk_i32 s{S_DBG+2}, 256", f"s_mov_b32 s{S_DBG+3}, s63", f"s_lshl_b32 s{S_HOFF}, s{S_HEAD}, 3"]
    p += [f"s_cmp_lg_u32 s{S_LEAD}, 0", "s_cbranch_scc1 L_notleader", "s_mov_b32 s24, 1"]
    for i in range(8):
        p += [f"s_lshr_b32 s{72+i}, s{72+i}, 8", f"s_min_u32 s{72+i}, s{72+i}, 31", f"s_bitset1_b32 s24, s{72+i}"]
    p += ["s_ff0_i32_b32 s24, s24", "s_lshl_b32 s24, s24, 8", f"v_mov_b32 v{V_POLL}, s24",
          "s_mov_b64 exec, 1", f"buffer_store_dword v{V_POLL}, off, s[{S_DBG}:{S_DBG+3}], s{S_HOFF} sc1", "s_mov_b64 exec, -1",
          "L_notleader:"]
    kc = []
    for h, buf in ((0, 64), (1, 80)):
        for jp in range(2):
            kc += [W(("k0a" if h == 0 else "k0b", jp))] + k_unit(h, buf, 64, jp, 0, QD + 8 * h) + k_unit(h, buf, 64, jp, 1, QD + 8 * h + 4)
    p += sprinkle(kc, q_dma(range(n0, n1))) + vstamp("kcv")
    p += [k_st(j, 64, "st0")[-1] for j in range(4)]
    p += ["s_mov_b32 exec_hi, 0xffff"] + [DS("own", f"ds_write_b128 v{V_KA if j & 1 else V_KST}, v[{64+4*j}:{64+4*j+3}] offset:{(j&1)*768+(j>>1)*6144}") for j in range(4)] + ["s_mov_b32 exec_hi, -1"]
    p += vstamp("kst")
    vc = []
    for u in range(4):
        q = QD + 4 * u
        vc += [f"s_lshl_b32 s57, s{64+u}, 16", f"s_and_b32 s58, s{64+u}, s{S_MASK}", f"v_mov_b32 v{q}, s57", f"v_mov_b32 v{q+1}, s58",
               f"s_lshl_b32 s57, s{68+u}, 16", f"s_and_b32 s58, s{68+u}, s{S_MASK}", f"v_mul_f32_e64 v{q+2}, -s57, v{q}", f"v_mul_f32_e64 v{q+3}, -s58, v{q+1}"]
    vc += [W(("v0a", 0))] + v_unit(96, 0, QD) + [W(("v0a", 1))] + v_unit(96, 1, QD + 4) + v_pack(0, 96, 96, V_INPLACE)
    vc += [W(("v0b", 0))] + v_unit(112, 0, QD + 8) + [W(("v0b", 1))] + v_unit(112, 1, QD + 12) + v_pack(1, 112, 96, V_INPLACE)
    p += sprinkle(vc, q_dma(range(n1, n2))) + vstamp("vcv")
    p += [x for e in range(4) for x in v_st(e, 96, "st0")]
    p += ["s_mov_b32 exec_hi, 0xffff"] + [DS("own", f"ds_write_b128 v{V_VST}, v[{96+4*e}:{96+4*e+3}] offset:{STAGE - 12288 + e*768}") for e in range(4)] + ["s_mov_b32 exec_hi, -1"]
    p += vstamp("vst")
    s2 = [f"s_lshl_b32 s{S_RET}, s{S_QB}, 2", f"v_lshl_add_u32 v{V_FLAG}, v0, 2, s{S_RET}", "v_cmp_lt_u32 vcc, 0, v0", "v_mov_b32 v30, 0x40000000",
          f"s_mov_b32 s{S_BUDGET}, 100000", f"v_cndmask_b32 v{V_FLAG}, v{V_FLAG}, v30, vcc"]
    s2 += [f"s_mul_i32 s{S_RET}, s{S_HEAD}, {HEADBYTES}"] + [srd(S_QK, 42, S_RET, HEADBYTES), srd(S_QV, 44, S_RET, HEADBYTES)]
    s2 += [f"s_and_b32 s{S_PK0}, s{S_TMP}, 63", f"s_mul_i32 s{S_PK0}, s{S_PK0}, {STAGE}", f"s_mov_b32 s{S_PV0}, s{S_PK0}"]
    s2 += [f"s_mul_i32 s{S_DMK}, s{S_WAVE}, 3072", f"s_add_u32 s{S_DMK}, s{S_DMK}, 12288", f"s_add_u32 s{S_DMV}, s{S_DMK}, {STAGE}",
          f"s_add_u32 s{S_RET}, s{S_QB}, 1", f"s_and_b32 s{S_RET}, s{S_RET}, 7", f"s_mul_i32 s{S_GOFFK}, s{S_RET}, {STAGE}", f"s_add_u32 s{S_GOFF}, s{S_GOFFK}, 12288",
          f"s_mov_b32 s{S_RK}, 0", f"s_mov_b32 s{S_RV}, {STAGE}"]
    s2 += ["v_and_b32 v26, 15, v25", "v_lshrrev_b32 v49, 4, v25", "v_bfe_u32 v28, v25, 1, 3",
           "v_xor_b32 v29, v49, v28", "v_mul_u32_u24 v30, 384, v26", f"v_lshl_add_u32 v{V_RDK[0]}, v29, 4, v30",
           f"v_xor_b32 v{V_RDK[1]}, 64, v{V_RDK[0]}"]
    s2 += [f"v_mul_u32_u24 v50, 3072, v49", f"v_add_u32 v50, {STAGE}, v50", "v_and_b32 v51, 1, v49", "v_lshl_add_u32 v51, v26, 1, v51",
           f"v_lshl_add_u32 v{V_RDV[0]}, v51, 4, v50", f"v_xor_b32 v{V_RDV[1]}, 16, v{V_RDV[0]}",
           f"v_lshl_add_u32 v{V_RDV[2]}, v26, 4, v50", f"v_add_u32 v{V_RDV[2]}, 512, v{V_RDV[2]}"]
    s2 += ["v_lshrrev_b32 v29, 1, v49", "v_xor_b32 v29, v29, v28", "v_lshl_add_u32 v31, v29, 4, v30",
           "v_and_b32 v29, 1, v49", "v_lshl_add_u32 v31, v29, 3, v31"]
    s2 += ([] if OPT["touch"] else ["v_lshlrev_b32 v15, 6, v0"]) + [f"v_add_u32 v0, s{S_QL}, v31"]
    s2 += [f"v_mov_b32 v{V_L[q]}, 0" for q in range(4)]
    qd = [[f"v_mov_b32 v{V_POLL}, 0"] + tag_load()] + q_dma(range(n2, n3))
    p += sprinkle(s2, qd) + vstamp("iss s2")
    pf2 = ["s_mov_b32 s62, L_slow-L_pc", "s_bfe_u32 s24, s2, 0x20003", "s_add_u32 s24, s24, 1", "s_lshl_b32 s24, s24, 14",
           VM("pf", "buffer_load_dword v15, v15, s[60:63], s24 offen")]
    TR = 80
    tl = [f"s_lshl_b32 s24, s{S_WAVE}, 4", f"s_add_u32 s24, s24, s{S_TMP}",
          f"s_and_b32 s58, s24, 63", f"s_add_u32 s24, s24, 8", "s_and_b32 s57, s24, 63", f"s_andn2_b32 s24, s{S_TMP}, 63",
          "s_or_b32 s58, s58, s24", "s_or_b32 s57, s57, s24",
          "v_mov_b32 v37, s58", "v_mov_b32 v38, s57", "v_cmp_lt_u32 vcc, 15, v25",
          "s_lshr_b32 s58, s58, 1", "s_lshr_b32 s57, s57, 1", "s_mulk_i32 s58, 384", "s_mulk_i32 s57, 384",
          "v_cndmask_b32 v37, v37, v38, vcc", "v_lshl_add_u32 v38, v25, 3, s58", "v_lshl_add_u32 v39, v25, 3, s57",
          "v_lshlrev_b32 v37, 6, v37", "v_lshl_add_u32 v37, v26, 2, v37", "s_mov_b32 exec_hi, 0xffff"]
    for x in range(2):
        tl += [VM("tab", f"global_load_dwordx2 v[{TR+4*x+2*i}:{TR+4*x+2*i+1}], v{38+x}, s[{46+2*i}:{47+2*i}]") for i in range(2)]
    tl += ["s_mov_b32 exec_hi, 0"] + [VM("tab", f"global_load_dword v{TR+8+i}, v37, s[{50+2*i}:{51+2*i}]") for i in range(2)] + ["s_mov_b32 exec_hi, -1"]
    tc = [W("tab")]
    for x in range(2):
        for i in range(2): tc += kprep(112 + 8 * x + 4 * i, TR + 4 * x + i, TR + 4 * x + 2 + i)
    tc += kprep(92, TR + 8, TR + 9)
    tc += [f"v_mul_f32 v{112+4*u+x}, s{S_CS}, v{112+4*u+x}" for u in range(4) for x in range(2)]
    tc += [f"v_mul_f32_e64 v{q+2+x}, -v{q+2+x}, v{q+x}" for q in (112, 116, 120, 124, 92) for x in range(2)]
    if OPT["koff"]: tc += [f"v_add_f32 v{q+2+x}, 0x{f32bits(OPT['koff'] * 0.1 * CSCALE):08x}, v{q+2+x}" for q in (112, 116, 120, 124) for x in range(2)]
    if OPT["voff"]: tc += [f"v_add_f32 v{94+x}, 0x{f32bits(OPT['voff'] * 0.1):08x}, v{94+x}" for x in range(2)]
    tc += [f"s_mul_i32 s57, s{S_WAVE}, {2*TS}", "v_add_u32 v36, s57, v36", f"s_add_u32 s57, s57, {TAB}", "v_lshrrev_b32 v37, 4, v25",
           f"v_mul_u32_u24 v37, {TS}, v37", "v_lshl_add_u32 v37, v26, 4, v37", "v_add_u32 v37, s57, v37",
           ]
    tc += [["s_mov_b32 exec_hi, 0xffff"] + [DS("tabw", f"ds_write_b128 v36, v[{112+8*x+4*i}:{115+8*x+4*i}] offset:{TS*x+384*i}") for x in range(2) for i in range(2)] +
           ["s_mov_b32 exec_hi, 0", DS("tabw", "ds_write_b128 v37, v[92:95] offset:1536"), "s_mov_b32 exec_hi, -1"],
           f"v_add_u32 v{V_KTAB}, {TS}, v{V_KTAB}",
           f"s_lshl_b32 s57, s{S_WAVE}, 6", f"s_add_u32 s57, s57, {TAB+TS+1536}", f"v_mov_b32 v{V_VTAB}, s57"]
    KF = 144
    tq = 48
    def q_read(qb):
        l = [f"v_xor_b32 v{V_T+kk}, {32*kk}, v0" for kk in range(1, 4)] + [W(("q", qb))] + vstamp(f"q{qb}")
        for s in range(6):
            for h in range(2):
                sp = s + 6 * h
                l.append(DS("qr", f"ds_read_b64 {Qf(qb,s,h)}, v{V_T+(sp&3) if sp&3 else 0} offset:{QSL[qb]*STAGE + (sp>>2)*128}"))
        return l
    def qk0(qb):
        l = ["s_waitcnt lgkmcnt(0)"]
        for f in sorted(range(12), key=lambda f: kfrag(f)[::-1]):
            s, tb = kfrag(f)
            d = vr(Sq(0, qb, tb), 4)
            l.append(f"{MF} {d}, v[{KF+4*f}:{KF+4*f+3}], {Qf(qb,s)}, {'0' if s == 0 else d}")
        return l
    def sm0(qb):
        a, b = Sq(0, qb, 0), Sq(0, qb, 1)
        l = [f"v_max3_f32 v{tq}, v{a}, v{a+1}, v{a+2}", f"v_max3_f32 v{tq}, v{tq}, v{a+3}, v{b}",
             f"v_max3_f32 v{tq}, v{tq}, v{b+1}, v{b+2}", f"v_max_f32 v{tq}, v{tq}, v{b+3}"] + xlane("v_max_f32", tq)
        l += [f"v_sub_f32 v{NEGM(qb)+i}, 0, v{tq}" for i in range(4)]
        rest = [f"v_sub_f32 v{r+i}, v{r+i}, v{tq}" for r in (a, b) for i in range(4)]
        rest += [f"v_exp_f32 v{r+i}, v{r+i}" for r in (a, b) for i in range(4)]
        rest += [f"v_add_f32 v{V_L[qb]}, v{V_L[qb]}, v{r+i}" for r in (a, b) for i in range(4)]
        rest += [f"v_cvt_pk_bf16_f32 v{a}, v{a}, v{a+1}", f"v_cvt_pk_bf16_f32 v{a+1}, v{a+2}, v{a+3}",
                 f"v_cvt_pk_bf16_f32 v{a+2}, v{b}, v{b+1}", f"v_cvt_pk_bf16_f32 v{a+3}, v{b+2}, v{b+3}"]
        return l, rest
    def step(qb, extra=()):
        l, rest = sm0(qb)
        return qk0(qb) + ["s_nop 7"] + sprinkle(l + rest, extra)
    assert not (OPT["rs"] and (OPT["stamp"] == 7 or not OPT["touch"]))
    sel_init = [f"v_mov_b32 v{SEL}, 0", f"v_mov_b32 v{SEL+1}, 0", "s_mov_b64 exec, 0x8421", f"v_mov_b32 v{SEL}, 0x3f803f80", f"v_mov_b32 v{SEL+1}, 0x3f803f80", "s_mov_b64 exec, -1"] * OPT["rs"]
    post = (["s_branch L_anchor", ".p2align 12", "L_anchor:"] + touch_slot(1, OPT["nt1"])) * OPT["touch"] + vstamp("pre tag") + [W("tag", "st0")] + vstamp("tag") + tag_check() + first_post() + sel_init + stamp("posted") + vstamp("posted")
    bar = q_read(0) + ["s_waitcnt lgkmcnt(0)", "s_barrier"] + stamp("barA") + vstamp("barA")
    kf = []
    for f in range(12):
        s, tb = kfrag(f)
        kf.append(DS("k0f", f"ds_read_b128 v[{KF+4*f}:{KF+4*f+3}], v{V_RDK[s&1]} offset:{tb*6144 + (s>>1)*128}"))
    n4 = n3 + OPT["qd"]
    assert n4 <= 18
    misc = [k_adv(), v_adv()]
    if OPT["pf2"]:
        misc += [f"s_mov_b32 s{S_DBG}, s60", f"s_mov_b32 s{S_DBG+1}, s61", f"s_mov_b32 s{S_DBG+2}, L_slow-L_pc",
              f"s_lshr_b32 s{S_TP}, s2, 3", f"s_mul_i32 s{S_HOFF}, s{S_TP}, 43", f"s_lshr_b32 s{S_HOFF}, s{S_HOFF}, 7",
              f"s_mul_i32 s{S_RET}, s{S_HOFF}, 3", f"s_sub_u32 s{S_TP}, s{S_TP}, s{S_RET}", f"s_lshl_b32 s{S_TP}, s{S_TP}, 10",
              f"s_mul_i32 s{S_HOFF}, s{S_HOFF}, 12288", f"s_add_u32 s{S_HOFF}, s{S_HOFF}, s{S_TP}"]
    n5 = min(18, n4 + OPT["qe"])
    flg = stamp("at poll") + vstamp("at poll") + [x.replace(f"s[{S_PT}:{S_PT+7}]", "s[72:79]") for x in smem_flags()]
    p += post + flat(q_dma(range(n3, n3 + 2))) + bar + tl + kf + step(0, q_dma(range(n3 + 2, n4))) + vstamp("qk0")
    dm = {(a, b): with_nop(dma_tile(a, b, True)) for a, b in (("k", 1), ("k", 2), ("k", 3), ("v", 1), ("v", 2), ("v", 3))}
    kraw = k_ld(0, BX, "ka") + k_ld(1, BY, "kb")
    p += flg + sprinkle(misc + tc, q_dma(range(n4, n5))) + vstamp("tc")
    p += poll_smem() + stamp("poll ok") + vstamp("poll ok")
    p += dm["k", 1] + q_read(1) + step(1, [dm["k", 2], dm["k", 3], dm["v", 1]] + [dm["v", 2], dm["v", 3]][:OPT["v23"]]) + vstamp("qk1")
    kstep = lambda d: [f"v_add_u32 v{r}, {d & 0xffffffff}, v{r}" for r in V_RDK]
    vstep = lambda d: [f"v_add_u32 v{r}, {d & 0xffffffff}, v{r}" for r in V_RDV]
    A, B = (0, 1), (2, 3)
    a4 = 1
    PS = Passes([dict(kind="q", t0=0, qbs=A, f0=12), dict(kind="q", t0=2, qbs=A, pre=kstep(2 * STAGE)),
                 dict(kind="p", t0=0, qbs=A, first=1),
                 dict(kind="q", t0=0, qbs=B, cz=1, pre=kstep(-2 * STAGE)), dict(kind="p", t0=2, qbs=A, pre=vstep(2 * STAGE)),
                 dict(kind="q", t0=2, qbs=B, pre=kstep(2 * STAGE)),
                 dict(kind="p", t0=0, qbs=B, first=1, pre=vstep(-2 * STAGE)),
                 dict(kind="q", look=1, pre=kstep(2 * STAGE) + [f"s_mov_b32 s{S_RK}, {4*STAGE}"])],
                [V_FR + 4 * i for i in range(NFS)], "s")
    def split(l):
        g = []
        for x in l:
            if isinstance(x, VM) or not g or isinstance(g[-1][-1], VM) or len(g[-1]) >= 3: g.append([x])
            else: g[-1].append(x)
        return g
    lim = OPT["sl"]
    p += kstamp("wdk", 4) + [W(("dk", 0))] + vstamp("dk0") + ["s_waitcnt lgkmcnt(0)", "s_barrier"] + PS.prime(4) + kstamp("a1", 4)
    if OPT["stamp"] == 7: p += vstamp("phase A")
    v23 = sum([split(dma_tile("v", 2, True)), split(dma_tile("v", 3, True))][OPT["v23"]:], [])
    va = v_ld(0, BZ, "va")
    kq = OPT["kq"]
    kr = [[x] for x in kraw]
    vmq = q_dma(range(n5, 24 - kq)) + v23 * a4 + kr + q_dma(range(24 - kq, 24))
    vmq += [[CHK("BZ"), va[0]]] + [[x] for x in va[1:]] + v23 * (1 - a4) + ([] if OPT["touch"] else [pf2[:4], pf2[4:]])
    p += [SIG("BZ")]
    c, r, _ = PS.run(0, [], lim, bar=[("dk", 1)], vm=vmq[:5], barF=18); p += c + vstamp("A1") + kstamp("a2", 4)
    c, r, _ = PS.run(1, softmax_part(1, 0) + ["HOLD"] + softmax_part(2, 0), lim, bar=[("dv", 0)] + [ALL] * (OPT["strict"] & 1), vm=vmq[5:16], barF=18); p += c
    assert len(r) < 38
    p += vstamp("A2") + kstamp("a3", 4)
    kc_ = chain_k(); vc_ = chain_v(); c0 = OPT["c0"]; c1 = OPT["c1"]; c2 = OPT["c2"]; c3 = OPT["c3"]
    nA = OPT["nA"]
    c, r, _ = PS.run(2, r + softmax_part(3, 0), lim, vm=vmq[16:nA]); p += c + r + vstamp("A3") + kstamp("q2", 4)
    p += [tq_rd("ka0", TQ[0])] + q_read(2) + kstamp("t2", 4)
    p += touch_slot(2, OPT["nt2"]) * OPT["touch"] + vstamp("A done") + kstamp("q3", 4) + q_read(3) + ["s_waitcnt lgkmcnt(0)"] + kstamp("bar", 4) + ["s_barrier"]
    if OPT["stamp"] == 7:
        p += vstamp("loop start") + ["v_writelane_b32 v14, s98, 31", "s_add_u32 s40, s18, 0xfa00000", "s_addc_u32 s41, s19, 0", "s_mov_b32 s42, 1048576", "s_mov_b32 s43, 0x20000",
              "s_lshl_b32 s24, s2, 2", f"s_add_u32 s24, s24, s{S_WAVE}", "s_lshl_b32 s24, s24, 7", f"v_bfe_u32 v15, v{V_DMA}, 4, 6", "v_lshlrev_b32 v15, 2, v15", "s_mov_b64 exec, 0xffffffff",
              VM("stamp", "buffer_store_dword v14, v15, s[40:43], s24 offen"), "s_mov_b64 exec, -1"]
        open(sys.argv[1] + ".stamps", "w").write("\n".join(STAMPS))
    elif OPT["stamp"]:
        p += stamp("loop start") + ["s_memtime s[8:9]"]
    mx = []
    T2 = {2: V_T, 3: V_T + 2}
    def both(f): return [f(q) for q in B]
    a_ = lambda q: Sq(0, q, 0); b_ = lambda q: Sq(0, q, 1)
    mx += both(lambda q: f"v_max3_f32 v{T2[q]}, v{a_(q)}, v{a_(q)+1}, v{a_(q)+2}") + both(lambda q: f"v_max3_f32 v{T2[q]}, v{T2[q]}, v{a_(q)+3}, v{b_(q)}")
    mx += both(lambda q: f"v_max3_f32 v{T2[q]}, v{T2[q]}, v{b_(q)+1}, v{b_(q)+2}") + both(lambda q: f"v_max_f32 v{T2[q]}, v{T2[q]}, v{b_(q)+3}")
    for sw in ("v_permlane16_swap_b32", "v_permlane32_swap_b32"):
        mx += both(lambda q: f"v_mov_b32 v{T2[q]+1}, v{T2[q]}") + ["s_nop 0"] + both(lambda q: f"{sw} v{T2[q]}, v{T2[q]+1}") + ["s_nop 0"]
        mx += both(lambda q: f"v_max_f32 v{T2[q]}, v{T2[q]}, v{T2[q]+1}")
    mx += [f"v_sub_f32 v{NEGM(q)+i}, 0, v{T2[q]}" for q in B for i in range(4)]
    sub = lambda t: [f"v_add_f32 v{Sq(t,q,tb)+i}, v{Sq(t,q,tb)+i}, v{NEGM(q)}" for q in B for tb in range(2) for i in range(4)]
    p += kstamp("b1", 3) + kstamp("b0", 4)
    lim2 = OPT["sb2"]
    k45 = split(dma_tile("k", 4, True)) + split(dma_tile("k", 5, True))
    rest = vmq[nA:]
    va4 = rest[-4:]; rest = rest[:-4]
    assert len(rest) <= 2
    c, r, e = PS.run(3, ["HOLD"] + mx + sub(0) + softmax_part(0, 1), OPT["sb0"], bar=[("dv", 1)], sec=cut(kc_, 0, c0), vm=k45[:6] + [[]] * 3 + rest, barF=18)
    p += c + kstamp("a4", 4)
    c, r, e = PS.run(4, r + sub(1) + softmax_part(1, 1), OPT["sb1"], sec=e + cut(kc_, c0, NK), vm=va4 + k45[6:])
    assert len(r) <= 40
    p += c + e + kstamp("b2", 3) + kstamp("b2", 4)
    vb = v_ld(1, BY, "vb")
    st = [k_st(j, BX)[0] for j in range(4)]
    vm = [[CHK("Kdone"), st[0]], [], [], [st[1]], [], [], [st[2]], [], [], [st[3], SIG("BX")]]
    c, r, e = PS.run(5, r + ["HOLD"] + softmax_part(2, 1), lim2, vm=vm)
    assert len(r) <= 40
    p += c + kstamp("b3", 3) + kstamp("b3", 4)
    c, r, e = PS.run(6, r, lim2, bar=[("dk", 2), "kst"], sec=cut(vc_, 0, c3), vm=split(dma_tile("v", 4, True)) + [[], [], [], flag_post() + [CHK("BY0"), vb[0]], [vb[1]]], barF=18)
    p += c + r + e
    p += kstamp("p3", 4)
    if OPT["stag"]:
        p += [f"s_bitcmp1_b32 s{S_HEAD}, 0", "s_cbranch_scc0 L_nostag", f"s_sleep {OPT['stag']}", "L_nostag:"]
    if OPT["stamp"]: p += [f"s_mov_b32 s{S_LEAD}, 0"]
    p += [f"s_mov_b32 s{S_CNT}, 5"]
    return p

def gen_main():
    p = gen_prologue()
    K_ = lambda *j: tuple(("k", x) for x in j)
    V_ = lambda *j: tuple(("v", x) for x in j)
    G = lambda it, t, d, **kw: (kstamp(f"p{it}", 3) if it < 14 else []) + gen_iter(it, t, dma=d, name=f"p{it}", peel=True, **kw)
    ST = lambda w, g0=57: [(w, 0, g0), (w, 1, g0 + 8), (w, 2, g0 + 16), (w, 3, 85)]
    A4 = (0, 1, 2, 3)
    kc = SCHED[OPT["sch"]][0]
    SE = lambda w: [(w, 0, 1), (w, 1, 9), (w, 2, 17), (w, 3, 25)]
    SL = lambda w: [(w, 0, 65), (w, 1, 73), (w, 2, 85), (w, 3, 93)]
    assert OPT["c1"] >= NK
    vcut = SCHED[OPT["sch"]][1]
    p += G(3, [("cv", "v", OPT["c3"], 30, 0, 95), ("ld", "vb", (2, 3), 0, 8)], [V_(5) + K_(6, 7) + (10, 78)])
    if OPT["a4"]:
        PS = Passes([dict(kind="p", t0=2, qbs=(2, 3)), dict(kind="q", look=1)], [V_FR + 4 * i for i in range(NFS)], "h", issued=D, t0kind="p")
        l = dma_tile("v", 6, True) + dma_tile("v", 7, True)
        vm = [l[0:1], l[1:2], l[2:3], l[3:4], l[4:8], l[8:9], l[9:10], l[10:11], l[11:12]]
        c, r, e = PS.run(0, rd_step("q") + softmax_part(4, 1, more=[(5, 0), (5, 1)]), OPT["sb2"], bar=[("dk", 3)], sec=cut(chain_v(), 30, 44), vm=vm + [l[12:]], barF=18)
        p += kstamp("p4", 3) + c + r + e
    else:
        p += G(4, [("cv", "v", 30, 56, 0, 95)], [V_(6, 7) + (0, 74)])
    pc = OPT["pq"]
    p += G(5, [("pollld", 0, 6), ("ld", "ka", A4, 8, 36), ("ld", "kb", (0, 1), 44, pc - 2), ("pollchk", pc), ("cv", "v", 44 if OPT["a4"] else 56, NV, 0, 95)], [K_(8, 9) + (pc + 6, 92)])
    p += G(6, [("post", "vst"), ("ld", "kb", (2, 3), 84, 94), ("cv", "k", 0, 24, 30, 95)] + SE("vst"), [K_(10, 11) + (34, 78)])
    p += G(7, [("ld", "va", A4, 0, 30), ("cv", "k", 24, 56, 0, 95), ("pollld", 66, 72)], [K_(12, 13) + (32, 62)])
    p += G(8, [("cv", "k", 56, NK, 0, 95), ("pollchk", pc - 8), ("ld", "vb", (0, 1), 24, 40)], [V_(8, 9) + (pc - 2, 84)])
    if OPT["su"] == 1:
        p += G(9, [("post", "kst"), ("ld", "vb", (2, 3), 32, 40), ("cv", "v", 0, 24, 30, 95)] + SE("kst"), [V_(10, 11) + K_(14, 15) + (42, 94)])
        p += G(10, [("ld", "ka", A4, 0, 30), ("cv", "v", 24, 54, 0, 95), ("pollld", 66, 72)], [V_(12, 13) + (32, 62)])
        p += G(11, [("cv", "v", 54, NV, 0, 95), ("pollchk", pc - 8), ("ld", "kb", (0, 1), 28, 40)], [K_(16, 17) + (pc - 2, 84)])
    else:
        p += G(9, [("post", "kst"), ("ld", "vb", (2, 3), 84, 94), ("cv", "v", 0, 24, 30, 95)] + SE("kst"), [V_(10, 11) + (34, 78)])
        p += G(10, [("ld", "ka", A4, 76, 94), ("cv", "v", 24, 54, 0, 95), ("pollld", 68, 74)], [K_(14) + V_(12, 13) + (0, 64)])
        p += G(11, [("cv", "v", 54, NV, 0, 95), ("pollchk", pc - 8), ("ld", "kb", (0, 1), 30, 40)], [K_(15) + (0, 24), K_(16, 17) + (pc - 2, 92)])
    p += G(12, [("post", "vst"), ("ld", "kb", (2, 3), 84, 94), ("cv", "k", 0, 20, 30, 95)] + SE("vst"), [V_(14, 15) + (34, 78)])
    p += G(13, [("ld", "va", A4, 0, 30), ("cv", "k", 20, 48, 0, 95), ("pollld", 66, 72)], [K_(18, 19) + (32, 62)])
    p += G(14, [("cv", "k", 48, kc[5], 0, 94), ("pollchk", pc - 8), ("ld", "vb", (0, 1), 84, 93)], [V_(16, 17) + (pc - 2, 78)], endops=["s_nop 0", "s_branch L_join"])
    JOIN = 7
    p += [".p2align 6", "L_loop:"]
    pro_ = p
    bodyA = []
    for k in range(8):
        if k == JOIN: bodyA.append("L_join:"); jpos = len(bodyA)
        eo = [f"s_sub_u32 s{S_CNT}, s{S_CNT}, 1", f"s_cmp_lg_u32 s{S_CNT}, 0", "s_cbranch_scc1 L_loop"] if k == 7 else ()
        bodyA += kstamp(f"k{k}") + gen_iter(16 + k, steady(k), endops=eo, name=f"k{k}")
    mid = []
    for k in range(4): mid += kstamp(f"m{k}") + gen_iter(48 + k, steady(k, last=True), name=f"mid{k}")
    mid += [f"s_mov_b32 s{S_CNT}, 2", ".p2align 6", "L_loop2:"]
    bodyC = []
    for k in range(4):
        eo = [f"s_sub_u32 s{S_CNT}, s{S_CNT}, 1", f"s_cmp_lg_u32 s{S_CNT}, 0", "s_cbranch_scc1 L_loop2"] if k == 3 else ()
        t = {1: [("pollld", 2, 10)] + ([("pf", 60, 76)] if OPT["pf2"] else []), 2: [("pollchk0", OPT["pc"]), ("dmaw", OPT["pc"] + 7, 76)]}.get(k, [])
        bodyC += gen_iter(52 + k, t, name=f"C{k}", endops=eo)
    LE = (stamp("loop end") + ["s_memtime s[10:11]"]) if OPT["stamp"] not in (0, 7) else []
    if OPT["tail"] == 3:
        tailc = LE + kstamp("a0", 9) + gen_tail3() + ["L_fin:"]
    else:
        t60 = gen_iter(60, name="T60", extra=epi_addr())
        t61 = gen_iter(61, dma=[], name="T61", extra_late=[f"v_add_u32 v{RD2[i]}, {2*STAGE}, v{V_RDV[i]}" for i in range(3)])
        for x in t61:
            if isinstance(x, W): x.n = 0; x.tags = ()
        tailc = LE + kstamp("t60", 9) + t60 + kstamp("t61", 9)
        tailc += t61 + gen_tail() + ["L_fin:"]
    resolve(pro_ + bodyA[jpos:] + bodyA + bodyA + mid + bodyC + bodyC + tailc)
    P_ = Prog()
    P_.extend(fin(pro_))
    a0 = len(P_.ins); P_.extend(fin(bodyA)); a1 = len(P_.ins)
    P_.extend(fin(mid))
    c0_ = len(P_.ins); P_.extend(fin(bodyC)); c1 = len(P_.ins)
    P_.extend(fin(tailc))
    p = P_
    if OPT["stamp"] == 8:
        p("s_waitcnt vmcnt(0)")
        p.extend(stamp("end"))
        p("s_load_dwordx2 s[8:9], s[100:101], 64")
        p("s_waitcnt lgkmcnt(0)")
        p("s_mov_b32 s10, 256"); p("s_mov_b32 s11, 0x20000")
        p("s_mov_b64 exec, 1")
        nm = {n: SR(i) for i, n in enumerate(STAMPS)}
        vals = [("not", 98), ("", 98), ("", nm["loop start"]), ("", nm["loop end"]), ("", nm["end"]), ("not", nm["end"]), ("not", nm["loop start"]), ("", nm["posted"])]
        for i, (op, r) in enumerate(vals):
            if op: p(f"s_not_b32 s24, s{r}"); p(f"v_mov_b32 v{64+i}, s24")
            else: p(f"v_mov_b32 v{64+i}, s{r}")
            p(f"buffer_atomic_umax v{64+i}, off, s[8:11], 0 offset:{8*i+4}")
    elif OPT["stamp"] and OPT["stamp"] != 7:
        p("s_waitcnt vmcnt(0)")
        p.extend(stamp("end") + kstamp("drain", 9))
        p("s_memtime s[22:23]")
        p("s_waitcnt lgkmcnt(0)")
        p("s_sub_u32 s22, s22, s100")
        regs = [98] + [SR(i) for i in range(len(STAMPS))]
        p("s_sub_u32 s10, s10, s8")
        regs += [10] * (14 - len(regs)) + [22]
        regs = regs[:15] + [S_LEAD]
        for i, s in enumerate(regs): p(f"v_mov_b32 v{64+i}, s{s}")
        p("s_add_u32 s8, s18, 0xfa00000"); p("s_addc_u32 s9, s19, 0"); p("s_mov_b32 s10, 1048576"); p("s_mov_b32 s11, 0x20000")
        p("s_lshl_b32 s24, s2, 2"); p(f"s_add_u32 s24, s24, s{S_WAVE}"); p("s_lshl_b32 s24, s24, 6")
        p("v_mov_b32 v32, s24")
        p(f"v_cmp_eq_u32 vcc, 0, v{GA[0]}")
        p("s_and_saveexec_b64 s[20:21], vcc")
        for i in range(4):
            p(f"buffer_store_dwordx4 v[{64+4*i}:{67+4*i}], v32, s[8:11], 0 offen offset:{16*i}")
        open(sys.argv[1] + ".stamps", "w").write("\n".join(STAMPS))
    p("L_done:")
    p("s_endpgm")
    main_end0 = len(p.ins)
    for ps in POLLSITES + ["P"]: p.extend(poll_slow(ps))
    p.extend(tag_slow())
    main_end = len(p.ins)
    p.extend(gen_slow())
    slow_end = len(p.ins)
    ji = [i for i, x in enumerate(p.ins) if x.text == "L_join:"][0]
    lin = p.ins[:a0] + p.ins[ji:a1] + p.ins[a0:c1] + p.ins[c0_:main_end0]
    sl = [i for i, x in enumerate(p.ins) if x.text == "L_slowloop:"][0]
    ei = [i for i, x in enumerate(p.ins) if x.text == "L_fin:"][0]
    bi = [i for i, x in enumerate(p.ins) if x.text == "s_cbranch_scc1 L_slowloop"][0]
    probs = check_hazards(lin, "main") + check_hazards(p.ins[main_end:bi+1] + p.ins[sl:slow_end] + p.ins[ei:ei+60], "slow") + check_hazards(p.ins[main_end0:main_end], "aux")
    for x in probs: print(x, file=sys.stderr)
    return p

def kd(name, vgpr, sgpr, accum):
    return f""".amdhsa_kernel {name}
  .amdhsa_next_free_vgpr {vgpr}
  .amdhsa_next_free_sgpr {sgpr}
  .amdhsa_accum_offset {accum}
  .amdhsa_group_segment_fixed_size 0
  .amdhsa_kernarg_size 80
  .amdhsa_user_sgpr_count 2
  .amdhsa_user_sgpr_kernarg_segment_ptr 1
  .amdhsa_system_sgpr_workgroup_id_x 1
.end_amdhsa_kernel
"""
def wrap(body):
    out = HEADER
    out += f"; @launch grid=(256,1,1) block=(256,1,1) lds={LDS_BYTES}\n"
    out += '.amdgcn_target "amdgcn-amd-amdhsa--gfx950"\n.text\n'
    out += f".globl {NAME}_kernel\n.p2align 8\n.type {NAME}_kernel,@function\n" + body
    out += '.section .rodata,"a"\n.p2align 6\n' + kd(NAME + "_kernel", 512, 102, 256)
    return out
def add_touch(prog):
    import subprocess, tempfile, os
    d = tempfile.mkdtemp(); open(d + "/a.s", "w").write(wrap(prog.text()))
    subprocess.run(["clang", "-x", "assembler", "-target", "amdgcn-amd-amdhsa", "-mcpu=gfx950", "-c", d + "/a.s", "-o", d + "/a.o"], check=True)
    dis = subprocess.run(["llvm-objdump", "-d", d + "/a.o"], capture_output=True, text=True).stdout
    enc = [(l.split("//")[0].split()[0], 4 * len(l.split("//")[1].split(":")[1].split())) for l in dis.split("\n") if "//" in l and l.startswith("\t")]
    L = prog.ins; size = {}; j = 0
    for i, x in enumerate(L):
        if x.kind == "none": continue
        while enc[j][0].split("_e")[0] != x.op.split("_e")[0] and enc[j][0] in ("s_nop", "s_code_end"): j += 1
        assert enc[j][0].replace("_e32", "").replace("_e64", "") == x.op.replace("_e32", "").replace("_e64", ""), (enc[j], x.text)
        size[i] = enc[j][1]; j += 1
    a0 = [i for i, x in enumerate(L) if x.text == "L_anchor:"][0]
    end = [i for i, x in enumerate(L) if x.text == "L_done:"][0]
    addr = 0; page = 1; ins_at = []; cand = []; nm = 0
    for i in range(a0 + 1, end):
        x = L[i]
        if x.text.startswith(".p2align"):
            al = 1 << int(x.text.split()[1]); addr = (addr + al - 1) // al * al; continue
        if x.text.startswith("; ----"): nm = 0
        if x.kind == "none": continue
        if 4096 * page - 4 <= addr <= 4096 * page + 56:
            prev = L[i - 1]
            score = (2 if (x.kind == "mfma" and nm % 2 == 0) else 0) + (1 if x.kind == "mfma" else 0)
            if prev.op == "s_branch" and "L_t" not in prev.text: score = 9
            cand.append((score, -addr, i, addr))
        if addr + size[i] > 4096 * page + 56 and cand:
            sc, _, k, ad = max(cand); ins_at.append((k, page, sc == 9)); cand = []; page += 1
            addr += 4 if sc == 9 else 8
        if x.kind == "mfma": nm += 1
        addr += size[i]
    print(f"pages after anchor: {page}, bytes {addr}", file=sys.stderr)
    n1, n2 = OPT["nt1"], OPT["nt2"]
    use = ins_at[:n1 + n2]
    assert len(use) == n1 + n2
    stub = {k: (pg, bare) for k, pg, bare in use}
    slot = {f"L_tb1_{k}": use[n1 - 1 - k][1] for k in range(n1)}
    slot.update({f"L_tb2_{k}": use[n1 + k][1] for k in range(n2)})
    back = {pg: l for l, pg in slot.items()}
    out = Prog()
    for i, x in enumerate(L):
        if i in stub:
            pg, bare = stub[i]
            out.extend([f"L_pad{pg}:", f"s_branch {back[pg]}"] if bare else [f"s_branch L_skip{pg}", f"L_pad{pg}:", f"s_branch {back[pg]}", f"L_skip{pg}:"])
        if x.op == "s_branch" and x.text.split()[1] in slot: out(f"s_branch L_pad{slot[x.text.split()[1]]}")
        else: out.ins.append(x)
    return out
prog = gen_main()
if OPT["touch"]: prog = add_touch(prog)
open(sys.argv[1], "w").write(wrap(prog.text()))
```
